```python
import torch

def _softmax(x, axis=-1):
    return torch.softmax(x, dim=axis)
def _gelu(x):
    return torch.nn.functional.gelu(x, approximate="tanh")
def _silu(x):
    return torch.nn.functional.silu(x)
def _sigmoid(x):
    return torch.sigmoid(x)
def _layernorm(x, axis=-1, eps=1e-5):
    m = x.mean(dim=axis, keepdim=True)
    v = x.var(dim=axis, keepdim=True, unbiased=False)
    return (x - m) / torch.sqrt(v + eps)
def _scatter_add(tgt, idx, src, axis=0):
    return tgt.clone().index_add_(axis, idx, src)
def _segment_sum(src, seg, n):
    out = torch.zeros((n,) + src.shape[1:], dtype=src.dtype)
    return out.index_add_(0, seg, src)
def _pad(x, pw):
    flat = tuple(v for pair in reversed(pw) for v in pair)
    return torch.nn.functional.pad(x, flat)

kernel_name = 'sequential_preLN__sliding_block_cached__swiglu_ffn__decode'

def setup_inputs():

    _w = (lambda a: (lambda t: t.to(torch.bfloat16) if t.is_floating_point() else t)(torch.as_tensor(a)))
    def _A_setup():
        B, Sq, D = 1, 1, 512
        Hq, Hkv, Sk, Dh = 32, 8, 65536, 128
        assert Hq % Hkv == 0, (Hq, Hkv)
        return {
            "x": _w((lambda *s: torch.randn(*s, dtype=torch.bfloat16) * 0.05)(B, Sq, D)),
            "k_cache": _w((lambda *s: torch.randn(*s, dtype=torch.bfloat16) * 3.2)(B, Hkv, Sk, Dh)),
            "v_cache": _w((lambda *s: torch.randn(*s, dtype=torch.bfloat16) * 0.4)(B, Hkv, Sk, Dh)),
            "wq": _w((lambda *s: torch.randn(*s, dtype=torch.bfloat16) * 3.2)(D, Hq * Dh) * (D ** -0.5)),
            "wo": _w((lambda *s: torch.randn(*s, dtype=torch.bfloat16) * 0.4)(Hq * Dh, D) * ((Hq * Dh) ** -0.5)),
        }
    _A_in = _A_setup()

    def _B_setup():
        B, S, D, F = 1, 1, 512, 1792
        return {
            "x": _w((lambda *s: torch.randn(*s, dtype=torch.bfloat16) * 0.05)(B, S, D)),
            "w_gate": _w((lambda *s: torch.randn(*s, dtype=torch.bfloat16) * 0.05)(D, F)),
            "w_up": _w((lambda *s: torch.randn(*s, dtype=torch.bfloat16) * 0.05)(D, F)),
            "w_down": _w((lambda *s: torch.randn(*s, dtype=torch.bfloat16) * 0.05)(F, D)),
        }
    _B_in = _B_setup()

    return {
        "A_x": _A_in["x"],
        "A_k_cache": _A_in["k_cache"],
        "A_v_cache": _A_in["v_cache"],
        "A_wq": _A_in["wq"],
        "A_wo": _A_in["wo"],
        "B_x": _B_in["x"],
        "B_w_gate": _B_in["w_gate"],
        "B_w_up": _B_in["w_up"],
        "B_w_down": _B_in["w_down"],
    }

def reference(A_x, A_k_cache, A_v_cache, A_wq, A_wo, B_x, B_w_gate, B_w_up, B_w_down):
    def _A_ref(x, k_cache, v_cache, wq, wo):
        B, Sq, D = x.shape
        Hq, Dh = 32, 128
        Hkv, Sk = k_cache.shape[1], k_cache.shape[2]
        W = min(4096, max(256, Sk // 4))
        rep = Hq // Hkv
        q = (lambda x, *d: x.permute(*d))((x @ wq).reshape(B, Sq, Hq, Dh), 0, 2, 1, 3)
        k = (lambda x, n, axis: torch.repeat_interleave(x, n, dim=axis))(k_cache[:, :, Sk - W:, :], rep, axis=1)
        v = (lambda x, n, axis: torch.repeat_interleave(x, n, dim=axis))(v_cache[:, :, Sk - W:, :], rep, axis=1)
        scores = torch.einsum("bhqd,bhkd->bhqk", q, k) * (Dh ** -0.5)
        p = _softmax(scores, axis=-1)
        o = torch.einsum("bhqk,bhkd->bhqd", p, v)
        return (lambda x, *d: x.permute(*d))(o, 0, 2, 1, 3).reshape(B, Sq, Hq * Dh) @ wo

    def _B_ref(x, w_gate, w_up, w_down):
        g = _silu(x @ w_gate)
        u = x @ w_up
        return (g * u) @ w_down

    x = A_x
    h = x + _A_ref(_layernorm(x, axis=-1), A_k_cache, A_v_cache, A_wq, A_wo)
    h2 = h + _B_ref(_layernorm(h, axis=-1), B_w_gate, B_w_up, B_w_down)
    return h2
```

```python
import re

TRANS = ("v_exp_f32", "v_log_f32", "v_rcp_f32", "v_rsq_f32", "v_sqrt_f32", "v_sin_f32", "v_cos_f32")


def _regs(tok):
    tok = tok.strip()
    tok = tok.lstrip("-")
    if tok.startswith("abs(") and tok.endswith(")"):
        tok = tok[4:-1]
    m = re.fullmatch(r"([vs])\[(\d+):(\d+)\]", tok)
    if m:
        return [(m.group(1), i) for i in range(int(m.group(2)), int(m.group(3)) + 1)]
    m = re.fullmatch(r"([vs])(\d+)", tok)
    if m:
        return [(m.group(1), int(m.group(2)))]
    if tok == "vcc":
        return [("s", "vcc")]
    if tok == "m0":
        return [("s", "m0")]
    return []


class Ins:
    def __init__(self, text):
        self.text = text
        t = text.split(";")[0].strip()
        self.label = t.endswith(":")
        self.directive = t.startswith(".")
        self.empty = t == ""
        self.op = ""
        self.wr = []
        self.rd = []
        self.srcc = []
        self.srcab = []
        self.store_data = []
        if self.label or self.directive or self.empty:
            return
        parts = t.split(None, 1)
        self.op = parts[0]
        ops = []
        if len(parts) > 1:
            rest = re.sub(r"quad_perm:\[[^\]]*\]|op_sel(_hi)?:\[[^\]]*\]|hwreg\([^)]*\)", "", parts[1])
            ops = [o.strip().split()[0] if o.strip() else "" for o in rest.split(",")]
        op = self.op
        self.is_mfma = op.startswith("v_mfma")
        self.is_valu = op.startswith("v_") and not self.is_mfma
        self.is_vmem = op.startswith("global_") or op.startswith("buffer_")
        self.is_ds = op.startswith("ds_")
        self.is_salu = op.startswith("s_")
        self.is_dpp = "_dpp" in op
        self.is_perml = op.startswith("v_permlane")
        self.is_trans = op.startswith(TRANS)
        self.is_dot = op.startswith("v_dot")
        self.is_rdlane = op.startswith("v_readfirstlane") or op.startswith("v_readlane")
        self.is_ldsdma = "_lds_" in op or " lds" in t
        R = [_regs(o) for o in ops]
        if self.is_mfma:
            self.wr = R[0]
            self.srcab = R[1] + R[2]
            self.srcc = R[3] if len(R) > 3 else []
            self.rd = self.srcab + self.srcc
        elif self.is_valu:
            self.wr = list(R[0])
            self.rd = [r for x in R[1:] for r in x]
            if self.is_perml:
                self.wr = R[0] + R[1]
                self.rd = R[0] + R[1]
            if op.startswith("v_dot2c") or op.startswith("v_fmac") or self.is_dpp:
                self.rd = self.rd + R[0]
            if op.startswith("v_cndmask") and len(R) == 3:
                self.rd.append(("s", "vcc"))
        elif self.is_vmem:
            if self.is_ldsdma:
                self.rd = [r for x in R for r in x] + [("s", "m0")]
            elif "load" in op:
                self.wr = R[0]
                self.rd = [r for x in R[1:] for r in x]
            else:
                self.rd = [r for x in R for r in x]
                if op.endswith("x4") or op.endswith("x3"):
                    self.store_data = R[1] if op.startswith("global_") else R[0]
        elif self.is_ds:
            if op.startswith("ds_read"):
                self.wr = R[0]
                self.rd = [r for x in R[1:] for r in x]
            else:
                self.rd = [r for x in R for r in x]
        elif self.is_salu:
            if op.startswith(("s_cmp", "s_cbranch", "s_branch", "s_waitcnt", "s_nop", "s_sleep", "s_barrier", "s_endpgm", "s_setprio", "s_bitcmp")):
                self.rd = [r for x in R for r in x]
            else:
                self.wr = R[0] if R else []
                self.rd = [r for x in R[1:] for r in x]

    @property
    def real(self):
        return not (self.label or self.directive or self.empty)

    def states(self):
        if self.op == "s_nop":
            return int(self.text.split()[1]) + 1
        return 1


def need(prod, cons):
    n = 0
    pw, cr, cw = set(prod.wr), set(cons.rd), set(cons.wr)
    pv = {r for r in pw if r[0] == "v"}
    ps = {r for r in pw if r[0] == "s"}
    if prod.is_valu:
        if pv & cr:
            if cons.is_dpp or cons.is_perml:
                n = max(n, 2)
            if cons.is_mfma:
                n = max(n, 2)
            if cons.is_rdlane:
                n = max(n, 1)
            if prod.is_trans and cons.is_valu and not cons.is_trans:
                n = max(n, 1)
            if prod.is_trans and (cons.is_vmem or cons.is_ds):
                n = max(n, 1)
        if prod.is_dot and (pv & (cr | cw)):
            same_acc = cons.is_dot and cons.op == prod.op and not (pv & (set(cons.rd) - set(cons.wr)))
            if not same_acc:
                n = max(n, 3)
        if ps & cr:
            if cons.is_valu or cons.is_mfma:
                n = max(n, 2)
            if cons.is_vmem:
                n = max(n, 5)
            if cons.is_salu:
                n = max(n, 1)
    if prod.is_mfma:
        if cons.is_mfma:
            if pv & set(cons.srcab):
                n = max(n, 8)
            if pv & set(cons.srcc) and list(prod.wr) != list(cons.srcc):
                n = max(n, 6)
            if pv & cw and list(prod.wr) != list(cons.srcc):
                n = max(n, 8)
        elif pv & (cr | cw):
            n = max(n, 8)
        if cons.is_valu and set(prod.srcc) & cw:
            n = max(n, 3)
    if prod.store_data and set(prod.store_data) & cw:
        n = max(n, 2)
    if prod.is_salu and ("s", "m0") in pw and cons.is_ldsdma:
        n = max(n, 1)
    return n


def pad(lines):
    out = []
    hist = []
    for text in lines:
        ins = Ins(text)
        if not ins.real:
            out.append(text)
            continue
        req = 0
        dist = 0
        for p in reversed(hist):
            k = need(p, ins)
            if k > dist:
                req = max(req, k - dist)
            dist += p.states()
            if dist >= 8:
                break
        if req > 0:
            nop = f"  s_nop {req - 1}"
            out.append(nop)
            hist.append(Ins(nop))
        out.append(text)
        hist.append(ins)
        hist = hist[-12:]
    return out
```

```python
import sys
from asmlib import pad

NAME = "sequential_preLN__sliding_block_cached__swiglu_ffn__decode"

WS_HI, WS_QA, WS_QB, WS_ML, WS_B2A, WS_A1, WS_C, WS_ST = 0x1000, 0x2000, 0x6000, 0xA000, 0xC000, 0x10000, 0x90000, 0x100000
L_QS, L_MX, L_LS, L_QP, L_OV, L_HV, L_CS, L_GU, L_ST = 0, 1024, 1088, 1152, 1664, 1792, 2048, 2560, 3072
L_OR, OR_STRIDE, OR_D1 = 4096, 2304, 1024 + 128
L_G, L_U = 16384, 32768
LDS_BYTES = 49152

sW, sG, sJ, sE, sXCC, sHX, sFAST = 3, 28, 29, 30, 31, 32, 33
sTA4, sTA2, sTB4, sTH4 = 34, 35, 36, 37
sSLO, sSHI, sPLO, sPHI = 38, 39, 40, 41
sM = [42, 44, 46, 48]
sG1 = 50
sQP = 52
sT0, sT1, sT2, sT3 = 54, 55, 56, 57
sQN, sSPIN = 59, 60
sCODE = 62
ST0 = 64
X, KP, VP, WQ, WO, GA, UP, DN, OUT, DBG, WS = 4, 6, 8, 10, 12, 16, 18, 20, 22, 24, 26

vL, vK, vV, vN, vGp, vSEL, vQ = 0, 1, 2, 3, 4, 5, 6
vA, vB, vC, vD = 7, 8, 9, 10
vHI, vHA = 124, 125
t0, t1, t2, t3 = 12, 13, 14, 15
RK, RV, RA, RD, RP, RX = 16, 48, 80, 96, 104, 112
LOG2E = "0x3fb8aa3b"
DPP = "row_mask:0xf bank_mask:0xf"


def sp(r):
    return f"s[{r}:{r + 1}]"


def vr(r, n):
    return f"v[{r}:{r + n - 1}]"


class Gen:
    def __init__(self, prof=False, nt=True, wv0=0, qa_tries=24, d_a1=0, d_b1=0, d_b2a=0, d_c=0, force_slow=False,
                 code_bytes=8192, prew_sc1=False):
        self.L = []
        self.prof, self.nt, self.wv0, self.qa_tries = prof, " nt" if nt else "", wv0, qa_tries
        self.d_a1, self.d_b1, self.d_b2a, self.d_c = d_a1, d_b1, d_b2a, d_c
        self.force_slow = force_slow
        self.code_bytes = code_bytes
        self.prew_sc1 = prew_sc1
        self.cold = []

    def a(self, s):
        for ln in s.strip("\n").split("\n"):
            ln = ln.strip()
            if ln:
                self.L.append(ln if ln.endswith(":") or ln.startswith(".") or ln.startswith(";") else "  " + ln)

    def stamp(self, k):
        if self.prof:
            self.a(f"s_memtime {sp(ST0 + 2 * k)}")

    def sleep(self, n):
        if n:
            self.a(f"s_sleep {n}")

    def spin(self):
        self.a(f"s_sub_u32 s{sSPIN}, s{sSPIN}, 1\ns_cbranch_scc1 L_exit")

    def check4(self, r, tag, dst="vcc"):
        self.a(f"""v_perm_b32 v{t0}, v{r + 1}, v{r}, s{sSLO}
        v_perm_b32 v{t1}, v{r + 3}, v{r + 2}, s{sSHI}
        v_or_b32 v{t0}, v{t0}, v{t1}
        v_cmp_ne_u32 {dst}, s{tag}, v{t0}""")

    def check2(self, r):
        self.a(f"v_perm_b32 v{t0}, v{r + 1}, v{r}, s{sSLO}\nv_cmp_ne_u32 vcc, s{sTA2}, v{t0}")

    def untag(self, r, n):
        for i in range(n):
            self.a(f"v_and_b32 v{r + i}, 0xffffff00, v{r + i}")

    def tag(self, dst, src, tag):
        self.a(f"v_perm_b32 v{dst}, v{src}, s{tag}, v{vSEL}")

    def pub(self, name, store):
        self.a(f"s_cmp_eq_u32 s{sFAST}, 0\ns_cbranch_scc1 L_slow_{name}\n{store}\nL_back_{name}:")
        self.cold.append(f"L_slow_{name}:\n{store} sc1\ns_branch L_back_{name}")

    def bf16r(self, dst, src):
        self.a(f"v_cvt_pk_bf16_f32 v{dst}, v{src}, v{src}\nv_and_b32 v{dst}, 0xffff0000, v{dst}")

    def allred(self, r, op, rors=(8, 4, 2, 1), tmp=t3):
        for k in rors:
            self.a(f"{op}_dpp v{r}, v{r}, v{r} row_ror:{k} {DPP}")
        for sw in ("v_permlane16_swap_b32", "v_permlane32_swap_b32"):
            self.a(f"v_mov_b32 v{tmp}, v{r}\n{sw} v{r}, v{tmp}\n{op} v{r}, v{r}, v{tmp}")

    def rs4(self, r):
        self.a(f"""v_permlane32_swap_b32 v{r}, v{r + 2}
        v_permlane32_swap_b32 v{r + 1}, v{r + 3}
        v_add_f32 v{r}, v{r}, v{r + 2}
        v_add_f32 v{r + 1}, v{r + 1}, v{r + 3}
        v_permlane16_swap_b32 v{r}, v{r + 1}
        v_add_f32 v{r}, v{r}, v{r + 1}""")

    def ln_scale(self, mean, var, tmp):
        self.a(f"v_cvt_pk_bf16_f32 v{tmp}, v{mean}, v{var}")
        self.a(f"v_lshlrev_b32 v{mean}, 16, v{tmp}\nv_and_b32 v{var}, 0xffff0000, v{tmp}")
        self.a(f"v_add_f32 v{var}, 0x3727c5ac, v{var}")
        self.bf16r(var, var)
        self.a(f"v_sqrt_f32 v{var}, v{var}")
        self.bf16r(var, var)

    def perm_pair(self, src0, src1, dst, stride, slot):
        for dd in range(4):
            self.a(f"v_perm_b32 v{dst + stride * (2 * dd) + slot}, v{src1 + dd}, v{src0 + dd}, s{sPLO}")
            self.a(f"v_perm_b32 v{dst + stride * (2 * dd + 1) + slot}, v{src1 + dd}, v{src0 + dd}, s{sPHI}")

    def consts(self):
        self.a(f"""s_mov_b32 s{sSLO}, 0x0c0c0400
        s_mov_b32 s{sSHI}, 0x04000c0c
        s_mov_b32 s{sPLO}, 0x05040100
        s_mov_b32 s{sPHI}, 0x07060302
        s_mov_b32 s{sM[0]}, 0x11111111
        s_mov_b32 s{sM[0] + 1}, 0x11111111
        s_lshl_b64 {sp(sM[1])}, {sp(sM[0])}, 1
        s_lshl_b64 {sp(sM[2])}, {sp(sM[0])}, 2
        s_lshl_b64 {sp(sM[3])}, {sp(sM[0])}, 3
        s_mov_b32 s{sG1}, 0xffff0000
        s_mov_b32 s{sG1 + 1}, 0xffff0000
        s_mov_b32 s{sSPIN}, 0x20000
        s_mov_b32 s{sQN}, 0
        v_mov_b32 v{vSEL}, 0x07060500
        s_getreg_b32 s{sXCC}, hwreg(HW_REG_XCC_ID, 0, 4)
        s_lshl_b32 s{sT0}, s{sG}, 7
        s_add_u32 s{sT0}, s{sT0}, {WS_HI}
        v_lshl_add_u32 v{vHA}, v{vN}, 2, s{sT0}
        s_lshl_b32 s{sT0}, s{sG}, 11
        s_lshl_b32 s{sT1}, s{sW}, 9
        s_add_u32 s{sT0}, s{sT0}, s{sT1}
        s_add_u32 s{sT0}, s{sT0}, {WS_QA}
        v_lshl_add_u32 v{vQ}, v{vL}, 3, s{sT0}
        s_mov_b64 {sp(sQP)}, {sp(WS)}""")

    def tags(self):
        self.a(f"""s_add_u32 s{sE}, s{sE}, 1
        s_and_b32 s{sT0}, s{sE}, 0xff
        s_mul_i32 s{sTA4}, s{sT0}, 0x01010101
        s_and_b32 s{sTA2}, s{sTA4}, 0xffff
        s_xor_b32 s{sTB4}, s{sTA4}, 0x40404040
        s_xor_b32 s{sTH4}, s{sTA4}, 0x80808080
        s_lshl_b32 s{sHX}, s{sE}, 4
        s_or_b32 s{sHX}, s{sHX}, s{sXCC}""")

    def census_load(self, off):
        self.a(f"global_load_dword v{vHI}, v{vHA}, {sp(WS)} offset:{off} sc1")

    def census_eval(self):
        if self.force_slow:
            self.a(f"s_mov_b32 s{sFAST}, 0")
        else:
            self.a(f"v_cmp_ne_u32 vcc, s{sHX}, v{vHI}\ns_cmp_eq_u64 vcc, 0\ns_cselect_b32 s{sFAST}, 1, 0")

    def kloads(self):
        for tau in range(2):
            for s in range(4):
                self.a(f"global_load_dwordx4 {vr(RK + 16 * tau + 4 * s, 4)}, v{vK}, {sp(KP)} offset:{4096 * tau + 64 * s - 2048}{self.nt}")

    def vload(self, jj):
        off = (jj * 256 if jj < 4 else 4096 + (jj - 4) * 256) - 2048
        self.a(f"global_load_dwordx4 {vr(RV + 4 * jj, 4)}, v{vV}, {sp(VP)} offset:{off}{self.nt}")

    def prologue(self):
        a = self.a
        if self.prof:
            a(f"s_memrealtime {sp(ST0 + 30)}")
        self.stamp(0)
        a(f"""s_cmpk_ge_u32 s2, 0x100
        s_cbranch_scc1 L_end
        s_load_dwordx16 s[4:19], s[0:1], 0
        s_load_dwordx8 s[20:27], s[0:1], 64
        v_lshrrev_b32 v{t0}, 6, v0
        v_and_b32 v{vL}, 63, v0
        v_readfirstlane_b32 s{sW}, v{t0}
        s_and_b32 s{sG}, s2, 7
        s_lshr_b32 s{sJ}, s2, 3
        v_and_b32 v{vN}, 15, v{vL}
        v_lshrrev_b32 v{vGp}, 4, v{vL}
        s_lshl_b32 s{sT0}, s{sG}, 24
        s_lshl_b32 s{sT1}, s{sJ}, 15
        s_add_u32 s{sT0}, s{sT0}, s{sT1}
        s_lshl_b32 s{sT1}, s{sW}, 13
        s_add_u32 s{sT0}, s{sT0}, s{sT1}
        s_add_u32 s{sT0}, s{sT0}, {0xF00000 + 2048}
        v_lshlrev_b32 v{vK}, 8, v{vN}
        v_lshl_add_u32 v{vK}, v{vGp}, 4, v{vK}
        v_add_u32 v{vK}, s{sT0}, v{vK}
        v_lshlrev_b32 v{vV}, 10, v{vGp}
        v_lshl_add_u32 v{vV}, v{vN}, 4, v{vV}
        v_add_u32 v{vV}, s{sT0}, v{vV}
        s_cmp_eq_u32 s{sW}, 4
        s_cbranch_scc1 L_helper
        s_cmp_ge_u32 s{sJ}, 16
        s_cbranch_scc1 L_q_start""")

    def w_start(self):
        a = self.a
        a("s_waitcnt lgkmcnt(0)")
        self.kloads()
        a(f"s_load_dword s{sE}, {sp(WS)}, 0\ns_barrier")
        self.stamp(1)
        a(f"""v_and_b32 v{t0}, 1, v{vL}
        v_lshlrev_b32 v{vD}, 4, v{t0}
        v_lshl_add_u32 v{vD}, v{vGp}, 2, v{vD}
        v_bfe_u32 v{t0}, v{vL}, 2, 1
        v_lshl_add_u32 v{vD}, v{t0}, 1, v{vD}
        v_bfe_u32 v{t0}, v{vL}, 1, 1
        v_add_u32 v{vD}, v{t0}, v{vD}
        s_lshl_b32 s{sT0}, s{sJ}, 6
        v_lshl_add_u32 v{t0}, v{vD}, 1, s{sT0}
        global_load_ushort v11, v{t0}, {sp(X)}""")
        for i in range(self.wv0):
            self.vload(i)
        self.consts()
        for i in range(self.wv0, 8):
            a(f"s_waitcnt vmcnt({8 + self.wv0})")
            self.vload(i)
        self.stamp(2)
        a("s_waitcnt lgkmcnt(0)")
        self.tags()
        a("s_waitcnt vmcnt(0)")
        self.stamp(3)
        a("s_branch L_qpoll")

    def q_start(self):
        a = self.a
        XA, XB, XF, ACC, XN = RA, RA + 4, RA + 8, RK, RD
        a("L_q_start:")
        a(f"""v_lshlrev_b32 v{t0}, 4, v{vL}
        v_lshrrev_b32 v{t2}, 2, v{vL}
        s_lshl_b32 s{sT0}, s{sW}, 8
        v_lshl_add_u32 v{t1}, v{t2}, 4, s{sT0}
        s_lshl_b32 s{sT0}, s{sW}, 20
        s_lshl_b32 s{sT1}, s{sG}, 10
        s_add_u32 s{sT0}, s{sT0}, s{sT1}
        s_lshl_b32 s{sT1}, s{sJ}, 6
        s_add_u32 s{sT0}, s{sT0}, s{sT1}
        s_sub_u32 s{sT0}, s{sT0}, 1024
        v_lshlrev_b32 v{t2}, 16, v{t2}
        v_and_b32 v{t3}, 3, v{vL}
        v_lshl_add_u32 v{t2}, v{t3}, 4, v{t2}
        v_add_u32 v{t2}, s{sT0}, v{t2}
        s_waitcnt lgkmcnt(0)
        global_load_dwordx4 {vr(XA, 4)}, v{t0}, {sp(X)}
        global_load_dwordx4 {vr(XB, 4)}, v{t1}, {sp(X)}""")
        for i in range(8):
            a(f"global_load_dwordx4 {vr(RV + 4 * i, 4)}, v{t2}, {sp(WQ)}{self.nt}")
            if i < 7:
                a(f"v_add_u32 v{t2}, 0x2000, v{t2}")
        a(f"s_load_dword s{sE}, {sp(WS)}, 0\ns_barrier")
        self.stamp(1)
        self.consts()
        a("s_waitcnt vmcnt(8)")
        for i in range(4):
            a(f"v_lshlrev_b32 v{XF + 2 * i}, 16, v{XA + i}\nv_and_b32 v{XF + 2 * i + 1}, 0xffff0000, v{XA + i}")
        a(f"v_add_f32 v{t0}, v{XF}, v{XF + 1}")
        for i in range(2, 8):
            a(f"v_add_f32 v{t0}, v{t0}, v{XF + i}")
        self.allred(t0, "v_add_f32")
        a(f"v_mul_f32 v{t0}, 0x3b000000, v{t0}")
        for i in range(8):
            a(f"v_sub_f32 v{XF + i}, v{XF + i}, v{t0}")
        a(f"v_mul_f32 v{t1}, v{XF}, v{XF}")
        for i in range(1, 8):
            a(f"v_fmac_f32 v{t1}, v{XF + i}, v{XF + i}")
        self.allred(t1, "v_add_f32")
        a(f"v_mul_f32 v{t1}, 0x3b000000, v{t1}")
        self.ln_scale(t0, t1, t2)
        a(f"""v_rcp_f32 v{t2}, v{t1}
        v_fma_f32 v{t3}, -v{t1}, v{t2}, 1.0
        v_fmac_f32 v{t2}, v{t3}, v{t2}""")
        for i in range(4):
            a(f"v_lshlrev_b32 v{XF + 2 * i}, 16, v{XB + i}\nv_and_b32 v{XF + 2 * i + 1}, 0xffff0000, v{XB + i}")
        for i in range(8):
            a(f"v_sub_f32 v{XF + i}, v{XF + i}, v{t0}")
        for i in range(4):
            a(f"v_cvt_pk_bf16_f32 v{XB + i}, v{XF + 2 * i}, v{XF + 2 * i + 1}")
        for i in range(4):
            a(f"v_lshlrev_b32 v{XF + 2 * i}, 16, v{XB + i}\nv_and_b32 v{XF + 2 * i + 1}, 0xffff0000, v{XB + i}")
        for i in range(8):
            a(f"""v_mul_f32 v{ACC + i}, v{XF + i}, v{t2}
            v_fma_f32 v{XF + i}, -v{ACC + i}, v{t1}, v{XF + i}
            v_fmac_f32 v{ACC + i}, v{XF + i}, v{t2}""")
        for i in range(4):
            a(f"v_cvt_pk_bf16_f32 v{XN + i}, v{ACC + 2 * i}, v{ACC + 2 * i + 1}")
        for i in range(8):
            a(f"v_mov_b32 v{ACC + i}, 0")
        a(f"""v_and_b32 v{t0}, 3, v{vL}
        v_lshlrev_b32 v{t0}, 7, v{t0}
        v_lshl_add_u32 v{t0}, v{vGp}, 5, v{t0}
        s_lshl_b32 s{sT0}, s{sW}, 2
        s_add_u32 s{sT0}, s{sT0}, {L_QP}
        v_add_u32 v{vA}, s{sT0}, v{t0}
        v_and_b32 v{t0}, 31, v{vL}
        v_lshlrev_b32 v{vB}, 4, v{t0}
        s_lshl_b32 s{sT0}, s{sG}, 11
        s_lshl_b32 s{sT1}, s{sJ}, 7
        s_add_u32 s{sT0}, s{sT0}, s{sT1}
        s_add_u32 s{sT0}, s{sT0}, {WS_QA - 2048}
        v_lshl_add_u32 v{vC}, v{t0}, 2, s{sT0}
        s_waitcnt lgkmcnt(0)""")
        self.tags()
        PR = RK + 8
        for p in range(4):
            a(f"s_waitcnt vmcnt({6 - 2 * p})")
            if p == 3:
                self.stamp(2)
            self.perm_pair(RV + 8 * p, RV + 8 * p + 4, PR, 1, 0)
            for t in range(8):
                a(f"v_dot2c_f32_bf16 v{ACC + t}, v{PR + t}, v{XN + p}")
        for t in range(4):
            a(f"v_permlane32_swap_b32 v{ACC + t}, v{ACC + t + 4}")
        for t in range(4):
            a(f"v_add_f32 v{ACC + t}, v{ACC + t}, v{ACC + t + 4}")
        for t in range(2):
            a(f"v_permlane16_swap_b32 v{ACC + t}, v{ACC + t + 2}")
        for t in range(2):
            a(f"v_add_f32 v{ACC + t}, v{ACC + t}, v{ACC + t + 2}")
        for k in (8, 4):
            for t in range(2):
                a(f"v_add_f32_dpp v{ACC + t}, v{ACC + t}, v{ACC + t} row_ror:{k} {DPP}")
        a(f"""s_mov_b32 exec_lo, 0x000f000f
        s_mov_b32 exec_hi, 0x000f000f
        ds_write2_b32 v{vA}, v{ACC}, v{ACC + 1} offset0:0 offset1:4
        s_mov_b64 exec, -1
        s_waitcnt lgkmcnt(0)
        s_barrier
        s_cmp_lg_u32 s{sW}, 0
        s_cbranch_scc1 L_q_pubdone
        ds_read_b128 {vr(ACC, 4)}, v{vB} offset:{L_QP}
        s_waitcnt lgkmcnt(0)
        v_add_f32 v{ACC}, v{ACC}, v{ACC + 1}
        v_add_f32 v{ACC + 2}, v{ACC + 2}, v{ACC + 3}
        v_add_f32 v{ACC}, v{ACC}, v{ACC + 2}
        v_cvt_pk_bf16_f32 v{ACC}, 0, v{ACC}""")
        self.tag(ACC, ACC, sTA4)
        a(f"""s_lshl_b32 s{sT0}, s{sG}, 7
        s_lshl_b32 s{sT1}, s{sJ}, 2
        s_add_u32 s{sT0}, s{sT0}, s{sT1}
        s_add_u32 s{sT0}, s{sT0}, {WS_HI}
        v_mov_b32 v{t0}, s{sT0}
        v_mov_b32 v{t1}, s{sHX}
        s_mov_b32 exec_hi, 0
        global_store_dword v{vC}, v{ACC}, {sp(WS)}
        v_add_u32 v{vC}, {WS_QB - WS_QA}, v{vC}
        global_store_dword v{vC}, v{ACC}, {sp(WS)} sc1
        s_mov_b64 exec, 1
        global_store_dword v{t0}, v{t1}, {sp(WS)}
        s_mov_b64 exec, -1
        L_q_pubdone:
        s_barrier""")
        self.stamp(3)
        self.kloads()
        a(f"""s_waitcnt vmcnt(7)
        global_load_dwordx2 {vr(RX, 2)}, v{vQ}, {sp(WS)} sc1""")
        self.census_load(0)
        for jj in range(8):
            self.vload(jj)
        a("s_waitcnt vmcnt(8)")
        self.check2(RX)
        a("s_cbranch_vccz L_qok")

    def attention(self):
        a = self.a
        a(f"""L_qpoll:
        global_load_dwordx2 {vr(RX, 2)}, v{vQ}, {sp(sQP)} sc1""")
        self.census_load(0)
        self.spin()
        a(f"""s_add_u32 s{sQN}, s{sQN}, 1
        s_cmp_eq_u32 s{sQN}, {self.qa_tries}
        s_cselect_b32 s{sT0}, {WS_QB - WS_QA}, 0
        s_add_u32 s{sQP}, s{sQP}, s{sT0}
        s_addc_u32 s{sQP + 1}, s{sQP + 1}, 0
        s_waitcnt vmcnt(0)""")
        self.check2(RX)
        a("s_cbranch_vccnz L_qpoll\nL_qok:")
        self.stamp(4)
        a(f"""v_perm_b32 v{t0}, v{RX + 1}, v{RX}, s{sPHI}
        s_lshl_b32 s{sT0}, s{sW}, 8
        v_lshl_add_u32 v{t1}, v{vL}, 2, s{sT0}
        ds_write_b32 v{t1}, v{t0} offset:{L_QS}
        v_lshrrev_b32 v{vA}, 2, v{vN}
        v_lshlrev_b32 v{t2}, 8, v{vA}
        v_lshl_add_u32 v{t2}, v{vGp}, 4, v{t2}
        v_lshlrev_b32 v{vA}, 4, v{vA}
        s_lshl_b32 s{sT0}, s{sW}, 2
        v_add_u32 v{vB}, s{sT0}, v{vA}
        s_waitcnt lgkmcnt(0)
        s_barrier""")
        for s in range(4):
            a(f"ds_read_b128 {vr(RA + 4 * s, 4)}, v{t2} offset:{L_QS + 64 * s}")
        self.census_eval()
        for s in range(4):
            a(f"s_waitcnt lgkmcnt({3 - s})")
            for tau in range(2):
                c = "0" if s == 0 else vr(RD + 4 * tau, 4)
                a(f"v_mfma_f32_16x16x32_bf16 {vr(RD + 4 * tau, 4)}, {vr(RK + 16 * tau + 4 * s, 4)}, {vr(RA + 4 * s, 4)}, {c}")
        for rnd in range(2):
            for i in range(4):
                a(f"v_cvt_pk_bf16_f32 v{RP + i}, v{RD + 2 * i}, v{RD + 2 * i + 1}")
            for i in range(4):
                a(f"v_lshlrev_b32 v{RD + 2 * i}, 16, v{RP + i}\nv_and_b32 v{RD + 2 * i + 1}, 0xffff0000, v{RP + i}")
            if rnd == 0:
                for i in range(8):
                    a(f"v_mul_f32 v{RD + i}, 0x3db504f3, v{RD + i}")
        a(f"""v_max3_f32 v{t0}, v{RD}, v{RD + 1}, v{RD + 2}
        v_max3_f32 v{t1}, v{RD + 3}, v{RD + 4}, v{RD + 5}
        v_max3_f32 v{t0}, v{t0}, v{RD + 6}, v{RD + 7}
        v_max_f32 v{t0}, v{t0}, v{t1}""")
        self.allred(t0, "v_max_f32", rors=())
        a(f"""ds_write_b32 v{vB}, v{t0} offset:{L_MX}
        s_waitcnt lgkmcnt(0)
        s_barrier
        ds_read_b128 {vr(RA, 4)}, v{vA} offset:{L_MX}
        s_waitcnt lgkmcnt(0)
        v_max3_f32 v{t2}, v{RA}, v{RA + 1}, v{RA + 2}
        v_max_f32 v{t2}, v{t2}, v{RA + 3}""")
        for i in range(8):
            a(f"v_sub_f32 v{RD + i}, v{RD + i}, v{t2}")
        for i in range(8):
            a(f"v_mul_f32 v{RD + i}, {LOG2E}, v{RD + i}")
        for i in range(8):
            a(f"v_exp_f32 v{RD + i}, v{RD + i}")
        a(f"v_add_f32 v{t0}, v{RD}, v{RD + 1}")
        for i in range(2, 8):
            a(f"v_add_f32 v{t0}, v{t0}, v{RD + i}")
        self.allred(t0, "v_add_f32", rors=())
        a(f"ds_write_b32 v{vB}, v{t0} offset:{L_LS}")
        for i in range(4):
            a(f"v_cvt_pk_bf16_f32 v{RP + i}, v{RD + 2 * i}, v{RD + 2 * i + 1}")
        a(f"""s_waitcnt lgkmcnt(0)
        s_barrier
        ds_read_b128 {vr(RD, 4)}, v{vA} offset:{L_LS}""")
        for r in range(4):
            for i in range(4):
                a(f"v_cndmask_b32 v{RA + 4 * r + i}, 0, v{RP + i}, {sp(sM[r])}")
        a(f"""s_lshl_b32 s{sT0}, s{sG}, 10
        s_lshl_b32 s{sT1}, s{sJ}, 5
        s_add_u32 s{sT0}, s{sT0}, s{sT1}
        s_add_u32 s{sT0}, s{sT0}, {WS_ML}
        v_lshrrev_b32 v{t1}, 1, v{vA}
        v_add_u32 v{t1}, s{sT0}, v{t1}
        s_lshl_b32 s{sT0}, s{sW}, 2
        s_lshl_b64 {sp(sT2)}, 1, s{sT0}
        s_waitcnt lgkmcnt(0)
        v_add_f32 v{RD}, v{RD}, v{RD + 1}
        v_add_f32 v{RD + 2}, v{RD + 2}, v{RD + 3}
        v_add_f32 v{t3}, v{RD}, v{RD + 2}""")
        self.tag(t2, t2, sTA4)
        self.tag(t3, t3, sTA4)
        a(f"s_mov_b64 exec, {sp(sT2)}")
        self.pub("ml", f"global_store_dwordx2 v{t1}, {vr(t2, 2)}, {sp(WS)}")
        a("s_mov_b64 exec, -1")
        a(f"""s_mul_i32 s{sT0}, s{sW}, {OR_STRIDE}
        v_lshl_add_u32 v{vA}, v{vL}, 4, s{sT0}
        v_lshrrev_b32 v{t0}, 2, v{vL}
        v_lshlrev_b32 v{vB}, 4, v{t0}
        v_bfe_u32 v{t0}, v{vL}, 1, 1
        v_mul_u32_u24 v{t0}, {OR_D1}, v{t0}
        v_add_u32 v{vB}, v{t0}, v{vB}
        v_and_b32 v{t0}, 1, v{vL}
        v_lshl_add_u32 v{vB}, v{t0}, 3, v{vB}
        s_lshl_b32 s{sT0}, s{sW}, 8
        v_add_u32 v{vB}, s{sT0}, v{vB}
        s_lshl_b32 s{sT0}, s{sG}, 16
        s_lshl_b32 s{sT1}, s{sJ}, 11
        s_add_u32 s{sT0}, s{sT0}, s{sT1}
        s_lshl_b32 s{sT1}, s{sW}, 9
        s_add_u32 s{sT0}, s{sT0}, s{sT1}
        s_add_u32 s{sT0}, s{sT0}, {WS_A1}
        v_lshl_add_u32 v{vC}, v{vL}, 3, s{sT0}""")
        self.stamp(5)
        for p in range(3):
            a(f"s_waitcnt vmcnt({7 - 2 * p})")
            self.perm_pair(RV + 8 * p, RV + 8 * p + 4, RK, 4, p)
        a("s_waitcnt vmcnt(1)")
        self.stamp(6)
        s0, s1 = RV + 24, RV + 28

        def pm(t):
            a(f"v_perm_b32 v{RK + 4 * t + 3}, v{s1 + t // 2}, v{s0 + t // 2}, s{sPHI if t % 2 else sPLO}")

        def mf(t):
            d = vr(RD + 4 * (t // 4), 4)
            a(f"v_mfma_f32_16x16x32_bf16 {d}, {vr(RA + 4 * (t % 4), 4)}, {vr(RK + 4 * t, 4)}, {'0' if t % 4 == 0 else d}")
        order = [0, 4, 1, 5, 2, 6, 3, 7]
        pm(order[0]); pm(order[1]); pm(order[2])
        for i, t in enumerate(order):
            mf(t)
            if i + 3 < 8:
                pm(order[i + 3])
        a(f"""ds_write_b128 v{vA}, {vr(RD, 4)} offset:{L_OR}
        ds_write_b128 v{vA}, {vr(RD + 4, 4)} offset:{L_OR + OR_D1}
        s_waitcnt lgkmcnt(0)
        s_barrier""")
        for w in range(4):
            a(f"ds_read_b64 {vr(RD + 2 * w, 2)}, v{vB} offset:{L_OR + OR_STRIDE * w}")
        a(f"""s_waitcnt lgkmcnt(2)
        v_pk_add_f32 {vr(RD, 2)}, {vr(RD, 2)}, {vr(RD + 2, 2)}
        s_waitcnt lgkmcnt(0)
        v_pk_add_f32 {vr(RD + 4, 2)}, {vr(RD + 4, 2)}, {vr(RD + 6, 2)}
        v_pk_add_f32 {vr(RD, 2)}, {vr(RD, 2)}, {vr(RD + 4, 2)}""")
        self.tag(RD, RD, sTA4)
        self.tag(RD + 1, RD + 1, sTA4)
        self.pub("a1", f"global_store_dwordx2 v{vC}, {vr(RD, 2)}, {sp(WS)}")
        a("s_barrier")
        self.stamp(7)
        a(f"s_cmp_ge_u32 s{sJ}, 16\ns_cbranch_scc1 L_f_tail")

    def w_tail(self):
        a = self.a
        a(f"""s_lshl_b32 s{sT0}, s{sG}, 19
        s_lshl_b32 s{sT1}, s{sJ}, 15
        s_add_u32 s{sT0}, s{sT0}, s{sT1}
        s_lshl_b32 s{sT1}, s{sW}, 8
        s_add_u32 s{sT0}, s{sT0}, s{sT1}
        s_add_u32 s{sT0}, s{sT0}, 4096
        v_lshlrev_b32 v{t0}, 13, v{vGp}
        v_lshl_add_u32 v{t0}, v{vN}, 4, v{t0}
        v_add_u32 v{t0}, s{sT0}, v{t0}""")
        for jj in range(8):
            a(f"global_load_dwordx4 {vr(RV + 4 * jj, 4)}, v{t0}, {sp(WO)} offset:{1024 * jj - 4096}{self.nt}")
        a(f"""v_lshrrev_b32 v{t0}, 1, v{vL}
        s_lshl_b32 s{sT0}, s{sG}, 10
        s_lshr_b32 s{sT1}, s{sJ}, 2
        s_lshl_b32 s{sT1}, s{sT1}, 3
        s_add_u32 s{sT0}, s{sT0}, s{sT1}
        s_add_u32 s{sT0}, s{sT0}, {WS_ML}
        v_lshl_add_u32 v{vK}, v{t0}, 5, s{sT0}
        s_lshl_b32 s{sT2}, s{sG}, 16
        s_add_u32 s{sT2}, s{sT2}, {WS_A1}
        s_lshl_b32 s{sT1}, s{sJ}, 7
        s_add_u32 s{sT3}, s{sT2}, s{sT1}
        s_lshl_b32 s{sT1}, s{sW}, 5
        s_add_u32 s{sT0}, s{sT3}, s{sT1}
        v_lshlrev_b32 v{vV}, 11, v{t0}
        v_and_b32 v{t1}, 1, v{vL}
        v_lshl_add_u32 v{vV}, v{t1}, 4, v{vV}
        v_add_u32 v{vV}, s{sT0}, v{vV}
        v_lshlrev_b32 v{vA}, 3, v{t1}
        v_lshl_add_u32 v{vA}, v{vGp}, 1, v{vA}
        s_lshl_b32 s{sT1}, s{sW}, 4
        v_add_u32 v{vA}, s{sT1}, v{vA}
        v_lshlrev_b32 v{vB}, 4, v{vGp}
        v_lshrrev_b32 v{t0}, 2, v{vN}
        v_lshlrev_b32 v{vC}, 11, v{t0}
        v_and_b32 v{t0}, 3, v{vN}
        v_lshl_add_u32 v{vC}, v{t0}, 5, v{vC}
        v_and_b32 v{t0}, 1, v{vGp}
        v_lshl_add_u32 v{vC}, v{t0}, 4, v{vC}
        s_lshl_b32 s{sT1}, s{sW}, 13
        s_add_u32 s{sT0}, s{sT3}, s{sT1}
        v_add_u32 v{vC}, s{sT0}, v{vC}
        s_lshl_b32 s{sT1}, s{sJ}, 11
        s_add_u32 s{sT2}, s{sT2}, s{sT1}
        v_lshl_add_u32 v{vQ}, v{vL}, 4, s{sT2}""")
        for p in range(4):
            a(f"s_waitcnt vmcnt({6 - 2 * p})")
            self.perm_pair(RV + 8 * p, RV + 8 * p + 4, RK, 4, p)
        self.stamp(8)
        WT = RX + 4
        self.census_load(64)
        a(f"L_mlpoll:\nglobal_load_dwordx2 {vr(RX, 2)}, v{vK}, {sp(WS)} sc1")
        self.spin()
        a("s_waitcnt vmcnt(0)")
        self.check2(RX)
        a("s_cbranch_vccnz L_mlpoll")
        a(f"""global_load_dwordx4 {vr(RD, 4)}, v{vV}, {sp(WS)} sc1
        v_and_b32 v{RX}, 0xffff0000, v{RX}
        v_and_b32 v{RX + 1}, 0xffffff00, v{RX + 1}
        v_mov_b32 v{t2}, v{RX}""")
        self.allred(t2, "v_max_f32", rors=(8, 4, 2))
        a(f"""v_sub_f32 v{WT}, v{RX}, v{t2}
        v_mul_f32 v{WT}, {LOG2E}, v{WT}
        v_exp_f32 v{WT}, v{WT}
        v_mul_f32 v{t2}, v{WT}, v{RX + 1}""")
        self.allred(t2, "v_add_f32", rors=(8, 4, 2))
        a(f"""v_rcp_f32 v{t2}, v{t2}
        v_mul_f32 v{WT}, v{WT}, v{t2}
        s_branch L_a1wait
        L_a1poll:
        global_load_dwordx4 {vr(RD, 4)}, v{vV}, {sp(WS)} sc1""")
        self.spin()
        a("L_a1wait:\ns_waitcnt vmcnt(0)")
        self.check4(RD, sTA4)
        self.untag(RD, 4)
        a("s_cbranch_vccnz L_a1poll")
        self.stamp(9)
        for i in range(4):
            a(f"v_mul_f32 v{RD + i}, v{RD + i}, v{WT}")
        self.rs4(RD)
        for k in (8, 4, 2):
            a(f"v_add_f32_dpp v{RD}, v{RD}, v{RD} row_ror:{k} {DPP}")
        a(f"""s_mov_b32 exec_lo, 0x00030003
        s_mov_b32 exec_hi, 0x00030003
        v_cvt_pk_bf16_f32 v{RD}, v{RD}, v{RD}
        ds_write_b16 v{vA}, v{RD} offset:{L_OV}
        s_mov_b64 exec, -1
        s_waitcnt lgkmcnt(0)
        s_barrier
        ds_read_b128 {vr(RX, 4)}, v{vB} offset:{L_OV}
        s_waitcnt lgkmcnt(0)""")
        for t in range(8):
            a(f"v_mfma_f32_16x16x32_bf16 {vr(RV + 4 * t, 4)}, {vr(RX, 4)}, {vr(RK + 4 * t, 4)}, 0")
        a("s_mov_b32 exec_hi, 0")
        for i in range(4):
            a(f"v_cndmask_b32 v{RD + i}, v{RV + 4 * i}, v{RV + 16 + 4 * i}, {sp(sG1)}")
        for i in range(4):
            self.tag(RD + i, RD + i, sTB4)
        self.pub("b1", f"global_store_dwordx4 v{vC}, {vr(RD, 4)}, {sp(WS)}")
        a("s_mov_b64 exec, -1")
        self.stamp(10)
        a(f"""s_cmp_ge_u32 s{sW}, 2
        s_cbranch_scc1 L_exit
        s_cmp_eq_u32 s{sW}, 1
        s_cbranch_scc1 L_final""")
        a(f"""v_and_b32 v{t0}, 7, v{vL}
        v_lshlrev_b32 v{vA}, 2, v{t0}
        v_lshl_add_u32 v{vA}, v{vGp}, 5, v{vA}
        s_lshl_b32 s{sT0}, s{sG}, 11
        s_lshl_b32 s{sT1}, s{sJ}, 7
        s_add_u32 s{sT1}, s{sT1}, {WS_B2A}
        s_add_u32 s{sT0}, s{sT0}, s{sT1}
        v_add_u32 v{vA}, s{sT0}, v{vA}
        v_lshrrev_b32 v{vB}, 3, v{vL}
        v_lshlrev_b32 v{vB}, 11, v{vB}
        v_lshl_add_u32 v{vB}, v{t0}, 4, v{vB}
        v_add_u32 v{vB}, s{sT1}, v{vB}""")
        self.sleep(self.d_b1)
        a(f"""L_b1poll:
        global_load_dwordx4 {vr(RV, 4)}, v{vQ}, {sp(WS)} sc1
        global_load_dwordx4 {vr(RV + 4, 4)}, v{vQ}, {sp(WS)} offset:1024 sc1""")
        self.spin()
        a("s_waitcnt vmcnt(1)")
        self.check4(RV, sTB4, sp(sT2))
        self.untag(RV, 4)
        a("s_waitcnt vmcnt(0)")
        self.check4(RV + 4, sTB4)
        self.untag(RV + 4, 4)
        a(f"s_or_b64 vcc, vcc, {sp(sT2)}\ns_cbranch_vccnz L_b1poll")
        self.stamp(11)
        a(f"""v_pk_add_f32 {vr(RV, 2)}, {vr(RV, 2)}, {vr(RV + 4, 2)}
        v_pk_add_f32 {vr(RV + 2, 2)}, {vr(RV + 2, 2)}, {vr(RV + 6, 2)}""")
        self.rs4(RV)
        a(f"""v_add_f32_dpp v{RV}, v{RV}, v{RV} row_ror:8 {DPP}
        s_mov_b32 exec_lo, 0x00ff00ff
        s_mov_b32 exec_hi, 0x00ff00ff""")
        self.tag(RV, RV, sTA4)
        a(f"""global_store_dword v{vA}, v{RV}, {sp(WS)} sc1
        s_mov_b64 exec, -1
        v_lshlrev_b32 v11, 16, v11
        s_lshl_b32 s{sT0}, s{sG}, 16
        s_lshl_b32 s{sT1}, s{sJ}, 7
        s_add_u32 s{sT0}, s{sT0}, s{sT1}
        s_add_u32 s{sT0}, s{sT0}, {WS_A1 + 16 * 2048}
        v_lshl_add_u32 v{vC}, v{vD}, 2, s{sT0}
        v_lshlrev_b32 v{vD}, 2, v{vD}""")
        self.census_eval()
        self.sleep(self.d_b2a)
        a(f"L_b2poll:\nglobal_load_dwordx4 {vr(RV, 4)}, v{vB}, {sp(WS)} sc1")
        self.spin()
        a("s_waitcnt vmcnt(0)")
        self.check4(RV, sTA4)
        self.untag(RV, 4)
        a("s_cbranch_vccnz L_b2poll")
        self.stamp(12)
        self.rs4(RV)
        a(f"v_add_f32_dpp v{RV}, v{RV}, v{RV} row_ror:8 {DPP}")
        self.bf16r(RV, RV)
        a(f"""v_add_f32 v{RV}, v{RV}, v11
        v_cvt_pk_bf16_f32 v{RV}, 0, v{RV}
        s_mov_b32 exec_lo, 0x00ff00ff
        s_mov_b32 exec_hi, 0x00ff00ff""")
        self.tag(RV + 1, RV, sTH4)
        self.pub("b2b", f"global_store_dword v{vC}, v{RV + 1}, {sp(WS)}")
        a(f"""ds_write_b32 v{vD}, v{RV} offset:{L_HV}
        s_mov_b64 exec, -1
        L_final:
        s_cmp_ge_u32 s{sG}, 4
        s_cbranch_scc1 L_exit
        s_lshl_b32 s{sT0}, s{sG}, 9
        s_lshl_b32 s{sT1}, s{sJ}, 5
        s_add_u32 s{sT0}, s{sT0}, s{sT1}
        s_lshl_b32 s{sT1}, s{sW}, 4
        s_add_u32 s{sT0}, s{sT0}, s{sT1}
        s_add_u32 s{sT0}, s{sT0}, {WS_C}
        v_lshlrev_b32 v{vA}, 11, v{vL}
        v_add_u32 v{vA}, s{sT0}, v{vA}
        v_min_u32 v{vB}, 47, v{vL}
        v_lshlrev_b32 v{vB}, 11, v{vB}
        s_add_u32 s{sT0}, s{sT0}, {64 * 2048}
        v_add_u32 v{vB}, s{sT0}, v{vB}
        s_lshl_b32 s{sT0}, s{sG}, 3
        s_lshl_b32 s{sT1}, s{sW}, 2
        s_add_u32 s{sT0}, s{sT0}, s{sT1}
        v_add_u32 v{t2}, s{sT0}, v{vGp}
        v_lshlrev_b32 v{vD}, 2, v{t2}
        s_lshl_b32 s{sT1}, s{sJ}, 6
        v_lshl_add_u32 v{vC}, v{t2}, 1, s{sT1}
        v_cmp_gt_u32 {sp(sM[0])}, 48, v{vL}
        s_waitcnt lgkmcnt(0)
        s_barrier
        ds_read_b32 v11, v{vD} offset:{L_HV}""")
        self.sleep(self.d_c)
        a(f"""L_cpoll:
        global_load_dwordx4 {vr(RV, 4)}, v{vA}, {sp(WS)} sc1
        global_load_dwordx4 {vr(RV + 4, 4)}, v{vB}, {sp(WS)} sc1""")
        self.spin()
        a("s_waitcnt vmcnt(1)")
        self.check4(RV, sTA4, sp(sT2))
        self.untag(RV, 4)
        a("s_waitcnt vmcnt(0)")
        self.check4(RV + 4, sTA4)
        self.untag(RV + 4, 4)
        a(f"s_or_b64 vcc, vcc, {sp(sT2)}\ns_cbranch_vccnz L_cpoll")
        self.stamp(13)
        a(f"""s_mov_b64 exec, {sp(sM[0])}
        v_pk_add_f32 {vr(RV, 2)}, {vr(RV, 2)}, {vr(RV + 4, 2)}
        v_pk_add_f32 {vr(RV + 2, 2)}, {vr(RV + 2, 2)}, {vr(RV + 6, 2)}
        s_mov_b64 exec, -1""")
        self.rs4(RV)
        for k in (8, 4, 2, 1):
            a(f"v_add_f32_dpp v{RV}, v{RV}, v{RV} row_ror:{k} {DPP}")
        self.bf16r(RV, RV)
        a(f"""s_waitcnt lgkmcnt(0)
        v_add_f32 v{RV}, v{RV}, v11
        v_cvt_pk_bf16_f32 v{RV}, v{RV}, v{RV}
        s_mov_b32 exec_lo, 0x00010001
        s_mov_b32 exec_hi, 0x00010001
        global_store_short v{vC}, v{RV}, {sp(OUT)}
        s_or_b32 s{sT0}, s2, s{sW}
        s_cmp_lg_u32 s{sT0}, 0
        s_cbranch_scc1 L_exit
        s_mov_b64 exec, 1
        v_mov_b32 v{t0}, 0
        v_mov_b32 v{t1}, s{sE}
        global_store_dword v{t0}, v{t1}, {sp(WS)}
        s_branch L_exit""")

    def f_tail(self):
        a = self.a
        BG, BU, DW, BD, DR = RK, RK + 16, RV, RV + 16, RA
        ONES, CSG, CSU = RX + 8, RX + 9, RX + 10
        a(f"""L_f_tail:
        s_cmp_ge_u32 s{sJ}, 30
        s_cbranch_scc1 L_exit
        s_mul_i32 s{sT3}, s{sG}, 14
        s_add_u32 s{sT3}, s{sT3}, s{sJ}
        s_sub_u32 s{sT3}, s{sT3}, 16
        s_mul_i32 s{sT0}, s{sW}, {128 * 3584}
        s_lshl_b32 s{sT1}, s{sT3}, 5
        s_add_u32 s{sT0}, s{sT0}, s{sT1}
        v_lshrrev_b32 v{t0}, 1, v{vL}
        v_mul_u32_u24 v{t0}, 3584, v{t0}
        v_and_b32 v{t1}, 1, v{vL}
        v_lshl_add_u32 v{t0}, v{t1}, 4, v{t0}
        v_add_u32 v{t0}, s{sT0}, v{t0}
        s_lshl_b32 s{sT2}, s{sW}, 12""")
        for i in range(4):
            for base, ptr in ((L_G, GA), (L_U, UP)):
                a(f"s_add_u32 m0, s{sT2}, {base + 1024 * i}\nglobal_load_lds_dwordx4 v{t0}, {sp(ptr)}{self.nt}")
            if i < 3:
                a(f"v_add_u32 v{t0}, {32 * 3584}, v{t0}")
        a(f"""s_lshl_b32 s{sT0}, s{sT3}, 14
        s_lshl_b32 s{sT1}, s{sW}, 8
        s_add_u32 s{sT0}, s{sT0}, s{sT1}
        v_lshlrev_b32 v{t0}, 12, v{vGp}
        v_lshl_add_u32 v{t0}, v{vN}, 4, v{t0}
        v_add_u32 v{t0}, s{sT0}, v{t0}""")
        for jj in range(4):
            a(f"global_load_dwordx4 {vr(DW + 4 * jj, 4)}, v{t0}, {sp(DN)} offset:{1024 * jj}{self.nt}")
        a(f"""v_lshlrev_b32 v{vA}, 9, v{vGp}
        v_lshl_add_u32 v{vA}, v{vN}, 3, v{vA}
        v_add_u32 v{vA}, s{sT2}, v{vA}
        v_and_b32 v{t0}, 31, v{vL}
        v_lshlrev_b32 v{vB}, 4, v{t0}
        v_and_b32 v{t1}, 1, v{vGp}
        v_lshlrev_b32 v{t1}, 4, v{t1}
        v_add_u32 v{t1}, {L_ST - L_GU}, v{t1}
        v_cmp_gt_u32 vcc, 32, v{vL}
        v_cndmask_b32 v{vB}, v{t1}, v{vB}, vcc
        s_lshl_b32 s{sT0}, s{sW}, 2
        v_add_u32 v{vB}, s{sT0}, v{vB}
        v_and_b32 v{t0}, 3, v{vL}
        v_lshl_add_u32 v{t1}, v{vGp}, 2, v{t0}
        v_lshlrev_b32 v{vC}, 4, v{t1}
        s_lshl_b32 s{sT0}, s{sG}, 16
        s_lshl_b32 s{sT1}, s{sW}, 9
        s_add_u32 s{sT0}, s{sT0}, s{sT1}
        s_add_u32 s{sT0}, s{sT0}, {WS_A1 + 16 * 2048}
        v_add_u32 v{vK}, s{sT0}, v{vC}
        v_lshlrev_b32 v{vV}, 9, v{t0}
        v_lshrrev_b32 v{t1}, 2, v{vN}
        v_lshl_add_u32 v{vV}, v{t1}, 5, v{vV}
        v_and_b32 v{t1}, 1, v{vGp}
        v_lshl_add_u32 v{vV}, v{t1}, 4, v{vV}
        s_lshl_b32 s{sT0}, s{sT3}, 11
        s_lshl_b32 s{sT1}, s{sW}, 7
        s_add_u32 s{sT0}, s{sT0}, s{sT1}
        s_add_u32 s{sT0}, s{sT0}, {WS_C}
        v_add_u32 v{vV}, s{sT0}, v{vV}
        v_mov_b32 v{vD}, 0
        v_mov_b32 v{ONES}, 0x3f803f80
        v_mov_b32 v{RX}, 0x3f803f80
        v_mov_b32 v{RX + 1}, 0x3f803f80
        v_mov_b32 v{RX + 2}, 0x3f803f80
        v_mov_b32 v{RX + 3}, 0x3f803f80
        s_waitcnt vmcnt(4)""")
        for base, B in ((L_G, BG), (L_U, BU)):
            for s in range(4):
                for hf in range(2):
                    a(f"ds_read_b64_tr_b16 {vr(B + 4 * s + 2 * hf, 2)}, v{vA} offset:{base + 2048 * hf + 128 * s}")
        a("s_waitcnt lgkmcnt(0)")
        for s in range(4):
            for B, D in ((BG, DR), (BU, DR + 4)):
                a(f"v_mfma_f32_16x16x32_bf16 {vr(D, 4)}, {vr(RX, 4)}, {vr(B + 4 * s, 4)}, {'0' if s == 0 else vr(D, 4)}")
        a(f"""v_cndmask_b32 v{t0}, v{DR}, v{DR + 4}, {sp(sG1)}
        s_mov_b32 exec_hi, 0
        ds_write_b32 v{vB}, v{t0} offset:{L_CS}
        s_mov_b64 exec, -1
        s_waitcnt vmcnt(0)""")
        self.stamp(8)
        for p in range(2):
            self.perm_pair(DW + 8 * p, DW + 8 * p + 4, BD, 2, p)
        a(f"""s_waitcnt lgkmcnt(0)
        s_barrier
        ds_read_b128 {vr(DR, 4)}, v{vC} offset:{L_CS}
        ds_read_b128 {vr(DR + 4, 4)}, v{vC} offset:{L_CS + 256}
        s_waitcnt lgkmcnt(0)
        v_add_f32 v{CSG}, v{DR}, v{DR + 1}
        v_add_f32 v{CSU}, v{DR + 4}, v{DR + 5}
        v_add_f32 v{CSG}, v{CSG}, v{DR + 2}
        v_add_f32 v{CSU}, v{CSU}, v{DR + 6}
        v_add_f32 v{CSG}, v{CSG}, v{DR + 3}
        v_add_f32 v{CSU}, v{CSU}, v{DR + 7}""")
        H0, H1, HA = DW, DW + 4, RX
        a(f"""L_hpoll:
        global_load_dwordx4 {vr(H0, 4)}, v{vK}, {sp(WS)} sc1
        global_load_dwordx4 {vr(H1, 4)}, v{vK}, {sp(WS)} offset:256 sc1""")
        self.spin()
        a("s_waitcnt vmcnt(1)")
        self.check4(H0, sTH4, sp(sT2))
        a(f"""v_perm_b32 v{HA}, v{H0 + 1}, v{H0}, s{sPHI}
        v_perm_b32 v{HA + 1}, v{H0 + 3}, v{H0 + 2}, s{sPHI}
        s_waitcnt vmcnt(0)
        v_perm_b32 v{HA + 2}, v{H1 + 1}, v{H1}, s{sPHI}
        v_perm_b32 v{HA + 3}, v{H1 + 3}, v{H1 + 2}, s{sPHI}""")
        self.check4(H1, sTH4)
        a(f"s_or_b64 vcc, vcc, {sp(sT2)}\ns_cbranch_vccnz L_hpoll")
        self.stamp(9)
        SA, SB = RX + 4, RX + 5
        fill = [f"v_mov_b32 v{SA}, 0\nv_mov_b32 v{SB}, 0"]
        fill += [f"v_dot2c_f32_bf16 v{SA}, v{HA + i}, v{ONES}\nv_dot2c_f32_bf16 v{SB}, v{HA + i}, v{HA + i}" for i in range(4)]
        fill += ["", f"v_add_f32_dpp v{SA}, v{SA}, v{SA} quad_perm:[1,0,3,2] {DPP}\nv_add_f32_dpp v{SB}, v{SB}, v{SB} quad_perm:[1,0,3,2] {DPP}",
                 f"v_add_f32_dpp v{SA}, v{SA}, v{SA} quad_perm:[2,3,0,1] {DPP}\nv_add_f32_dpp v{SB}, v{SB}, v{SB} quad_perm:[2,3,0,1] {DPP}"]
        k = 0
        for s in range(4):
            for B, D in ((BG, DR), (BU, DR + 16)):
                a(f"v_mfma_f32_16x16x32_bf16 {vr(D + 4 * s, 4)}, {vr(HA, 4)}, {vr(B + 4 * s, 4)}, 0")
                a(fill[k]); k += 1
        a(f"""v_permlane16_swap_b32 v{SA}, v{SB}
        v_add_f32 v{t0}, v{DR}, v{DR + 5}
        v_add_f32 v{SA}, v{SA}, v{SB}
        v_add_f32 v{t1}, v{DR + 16}, v{DR + 21}
        v_mov_b32 v{SB}, v{SA}
        v_add_f32 v{t0}, v{t0}, v{DR + 10}
        v_add_f32 v{t1}, v{t1}, v{DR + 26}
        v_permlane32_swap_b32 v{SA}, v{SB}
        v_add_f32 v{t0}, v{t0}, v{DR + 15}
        v_add_f32 v{t1}, v{t1}, v{DR + 31}
        v_add_f32 v{SA}, v{SA}, v{SB}
        v_cndmask_b32 v{t0}, v{t0}, v{t1}, {sp(sG1)}
        s_mov_b32 exec_lo, 0
        v_mov_b32 v{t0}, v{SA}
        s_mov_b32 exec_lo, -1
        ds_write_b32 v{vB}, v{t0} offset:{L_GU}
        s_waitcnt lgkmcnt(0)
        s_barrier
        ds_read_b128 {vr(DR, 4)}, v{vD} offset:{L_ST}
        ds_read_b128 {vr(DR + 4, 4)}, v{vD} offset:{L_ST + 16}
        ds_read_b128 {vr(DR + 8, 4)}, v{vC} offset:{L_GU}
        ds_read_b128 {vr(DR + 12, 4)}, v{vC} offset:{L_GU + 256}
        s_waitcnt lgkmcnt(2)
        v_pk_add_f32 {vr(DR, 2)}, {vr(DR, 2)}, {vr(DR + 2, 2)}
        v_pk_add_f32 {vr(DR + 4, 2)}, {vr(DR + 4, 2)}, {vr(DR + 6, 2)}
        v_add_f32 v{t0}, v{DR}, v{DR + 1}
        v_add_f32 v{t1}, v{DR + 4}, v{DR + 5}
        v_mul_f32 v{t0}, 0x3b000000, v{t0}
        v_mul_f32 v{t1}, 0x3b000000, v{t1}
        v_fma_f32 v{t1}, -v{t0}, v{t0}, v{t1}
        v_max_f32 v{t1}, 0, v{t1}""")
        self.ln_scale(t0, t1, t2)
        a(f"""v_rcp_f32 v{t1}, v{t1}
        s_waitcnt lgkmcnt(0)
        v_pk_add_f32 {vr(DR + 8, 2)}, {vr(DR + 8, 2)}, {vr(DR + 10, 2)}
        v_pk_add_f32 {vr(DR + 12, 2)}, {vr(DR + 12, 2)}, {vr(DR + 14, 2)}
        v_add_f32 v{t2}, v{DR + 8}, v{DR + 9}
        v_add_f32 v{t3}, v{DR + 12}, v{DR + 13}
        v_fma_f32 v{t2}, -v{t0}, v{CSG}, v{t2}
        v_fma_f32 v{t3}, -v{t0}, v{CSU}, v{t3}
        v_mul_f32 v{t2}, v{t2}, v{t1}
        v_mul_f32 v{t3}, v{t3}, v{t1}
        v_cvt_pk_bf16_f32 v{t3}, v{t2}, v{t3}
        v_lshlrev_b32 v{t2}, 16, v{t3}
        v_and_b32 v{t3}, 0xffff0000, v{t3}
        v_mul_f32 v{t0}, 0xbfb8aa3b, v{t2}
        v_exp_f32 v{t0}, v{t0}
        v_add_f32 v{t0}, 1.0, v{t0}
        v_rcp_f32 v{t0}, v{t0}
        v_mul_f32 v{t2}, v{t2}, v{t0}""")
        self.bf16r(t2, t2)
        a(f"""v_mul_f32 v{t2}, v{t2}, v{t3}
        v_cvt_pk_bf16_f32 v{t2}, v{t2}, v{t2}
        v_mov_b32_dpp v{t3}, v{t2} quad_perm:[1,0,3,2] {DPP}
        v_perm_b32 v{t2}, v{t3}, v{t2}, s{sPHI}
        v_mov_b32_dpp v{HA}, v{t2} quad_perm:[0,0,0,0] {DPP}
        v_mov_b32_dpp v{HA + 1}, v{t2} quad_perm:[2,2,2,2] {DPP}""")
        for t in range(8):
            a(f"v_mfma_f32_16x16x16_bf16 {vr(DR + 4 * t, 4)}, {vr(HA, 2)}, {vr(BD + 2 * t, 2)}, 0")
        a("s_mov_b32 exec_hi, 0")
        for i in range(4):
            a(f"v_cndmask_b32 v{H0 + i}, v{DR + 4 * i}, v{DR + 16 + 4 * i}, {sp(sG1)}")
        for i in range(4):
            self.tag(H0 + i, H0 + i, sTA4)
        a(f"global_store_dwordx4 v{vV}, {vr(H0, 4)}, {sp(WS)} sc1\ns_mov_b64 exec, -1")
        self.stamp(10)
        a("s_branch L_exit")

    def helper(self):
        a = self.a
        per_wg = self.code_bytes // 32
        a(f"""L_helper:
        s_getpc_b64 {sp(sCODE)}
        L_pc:
        s_sub_u32 s{sCODE}, s{sCODE}, L_pc-{NAME}_kernel
        s_subb_u32 s{sCODE + 1}, s{sCODE + 1}, 0
        s_mul_i32 s{sT0}, s{sJ}, {per_wg}
        v_lshl_add_u32 v{t2}, v{vL}, {(per_wg // 64).bit_length() - 1}, s{sT0}
        v_min_u32 v{t2}, L_code_end-{NAME}_kernel-4, v{t2}
        global_load_dword v{RK}, v{t2}, {sp(sCODE)}
        s_waitcnt lgkmcnt(0)
        s_cmp_ge_u32 s{sJ}, 16
        s_cbranch_scc1 L_helper_q
        s_load_dword s{sE}, {sp(WS)}, 0
        s_getreg_b32 s{sXCC}, hwreg(HW_REG_XCC_ID, 0, 4)
        s_lshl_b32 s{sT0}, s{sG}, 7
        s_add_u32 s{sT0}, s{sT0}, {WS_HI}
        v_and_b32 v{t0}, 31, v{vL}
        v_lshl_add_u32 v{vB}, v{t0}, 2, s{sT0}
        s_lshl_b32 s{sT1}, s{sJ}, 2
        s_add_u32 s{sT0}, s{sT0}, s{sT1}
        v_mov_b32 v{vC}, s{sT0}
        s_lshl_b32 s{sT0}, s{sG}, 11
        s_lshl_b32 s{sT1}, s{sJ}, 7
        s_add_u32 s{sT0}, s{sT0}, s{sT1}
        s_add_u32 s{sT0}, s{sT0}, {WS_QA}
        v_and_b32 v{t0}, 31, v{vL}
        v_lshl_add_u32 v{t0}, v{t0}, 2, s{sT0}
        s_lshl_b32 s{sT0}, s{sG}, 16
        s_add_u32 s{sT0}, s{sT0}, s{sT1}
        s_add_u32 s{sT0}, s{sT0}, {WS_A1}
        v_lshrrev_b32 v{t1}, 3, v{vL}
        v_lshlrev_b32 v{t1}, 11, v{t1}
        v_and_b32 v{t2}, 7, v{vL}
        v_lshl_add_u32 v{t1}, v{t2}, 4, v{t1}
        v_add_u32 v{t1}, s{sT0}, v{t1}
        s_lshl_b32 s{sT0}, s{sG}, 10
        s_lshl_b32 s{sT1}, s{sJ}, 6
        s_add_u32 s{sT0}, s{sT0}, s{sT1}
        s_add_u32 s{sT0}, s{sT0}, {WS_ML}
        v_lshl_add_u32 v{t2}, v{vN}, 2, s{sT0}
        s_lshl_b32 s{sT0}, s{sG}, 19
        s_lshl_b32 s{sT1}, s{sJ}, 15
        s_add_u32 s{sT0}, s{sT0}, s{sT1}
        v_mov_b32 v{t3}, s{sT0}
        v_mov_b32 v{vA}, 0
        s_barrier
        global_load_dword v{RK + 21}, v{vB}, {sp(WS)} sc1
        global_load_dword v{RK + 1}, v{t0}, {sp(WS)} sc1""")
        for i in range(4):
            a(f"global_load_dwordx4 {vr(RK + 4 + 4 * i, 4)}, v{t1}, {sp(WS)} sc1")
            if i < 3:
                a(f"v_add_u32 v{t1}, 0x4000, v{t1}")
        a(f"""global_load_dword v{RK + 2}, v{t2}, {sp(WS)} sc1
        global_load_dword v{RK + 3}, v{t3}, {sp(WO)}{self.nt}
        global_load_dword v{RK + 20}, v{vA}, {sp(OUT)}
        s_waitcnt lgkmcnt(0)
        s_add_u32 s{sE}, s{sE}, 1
        s_lshl_b32 s{sE}, s{sE}, 4
        s_or_b32 s{sE}, s{sE}, s{sXCC}
        v_mov_b32 v{vD}, s{sE}
        s_mov_b64 exec, 1
        global_store_dword v{vC}, v{vD}, {sp(WS)}
        s_endpgm
        L_helper_q:
        v_mov_b32 v{t0}, {WS_QB}
        v_mov_b32 v{t1}, 0
        v_mov_b32 v{t2}, {512 * 3584 - 4}
        s_barrier
        global_load_dword v{RK + 1}, v{t0}, {sp(WS)} sc1
        global_load_dword v{RK + 2}, v{t1}, {sp(GA)}{self.nt}
        global_load_dword v{RK + 3}, v{t2}, {sp(GA)}{self.nt}
        global_load_dword v{RK + 4}, v{t1}, {sp(UP)}{self.nt}
        global_load_dword v{RK + 5}, v{t2}, {sp(UP)}{self.nt}
        global_load_dword v{RK + 6}, v{t1}, {sp(DN)}{self.nt}
        global_load_dword v{RK + 7}, v{t2}, {sp(DN)}{self.nt}
        s_endpgm""")

    def exit(self):
        a = self.a
        a("L_exit:")
        if self.prof:
            self.stamp(14)
            a(f"""s_memrealtime {sp(ST0 + 32)}
            s_mov_b64 exec, 1
            s_lshl_b32 s{sT0}, s2, 2
            s_add_u32 s{sT0}, s{sT0}, s{sW}
            s_lshl_b32 s{sT0}, s{sT0}, 7
            s_add_u32 s{sT0}, s{sT0}, {WS_ST}
            v_mov_b32 v{t0}, s{sT0}
            s_waitcnt lgkmcnt(0)""")
            for k in range(17):
                a(f"v_mov_b32 v{t1}, s{ST0 + 2 * k}\nglobal_store_dword v{t0}, v{t1}, {sp(WS)} offset:{4 * k}")
            a(f"v_mov_b32 v{t1}, s{sFAST}\nglobal_store_dword v{t0}, v{t1}, {sp(WS)} offset:68")
            a(f"v_mov_b32 v{t1}, s{sQN}\nglobal_store_dword v{t0}, v{t1}, {sp(WS)} offset:72")
            a(f"v_mov_b32 v{t1}, s{sSPIN}\nglobal_store_dword v{t0}, v{t1}, {sp(WS)} offset:76")
        a("L_end:\ns_endpgm")

    def build(self):
        head = open("cdna_kernels/" + NAME + ".s.ref").read().split("; Override launch")[0]
        if self.prof:
            for k in range(17):
                self.a(f"s_mov_b32 s{ST0 + 2 * k}, 0")
        self.prologue()
        self.w_start()
        self.q_start()
        self.attention()
        self.w_tail()
        self.f_tail()
        self.exit()
        self.helper()
        for c in self.cold:
            self.a(c)
        self.a("L_code_end:")
        body = "\n".join(pad(self.L))
        return f"""{head}; @launch grid=(256,1,1) block=(320,1,1) lds={LDS_BYTES}
.amdgcn_target "amdgcn-amd-amdhsa--gfx950"
.text
.globl {NAME}_kernel
.p2align 8
.type {NAME}_kernel,@function
{NAME}_kernel:
{body}
.section .rodata,"a"
.p2align 6
.amdhsa_kernel {NAME}_kernel
  .amdhsa_next_free_vgpr 128
  .amdhsa_next_free_sgpr 102
  .amdhsa_accum_offset 128
  .amdhsa_group_segment_fixed_size 0
  .amdhsa_kernarg_size 96
  .amdhsa_user_sgpr_count 2
  .amdhsa_user_sgpr_kernarg_segment_ptr 1
  .amdhsa_system_sgpr_workgroup_id_x 1
.end_amdhsa_kernel
"""


if __name__ == "__main__":
    out = sys.argv[1]
    kw = {}
    for arg in sys.argv[2:]:
        k, v = arg.split("=")
        kw[k] = int(v)
    open(out, "w").write(Gen(**kw).build())
```

```python
import sys
from asmlib import pad

NAME = "sequential_preLN__sliding_block_cached__swiglu_ffn__decode"

WS_HI, WS_QA, WS_QB, WS_ML, WS_B2A, WS_A1, WS_C, WS_ST = 0x1000, 0x2000, 0x6000, 0xA000, 0xC000, 0x10000, 0x90000, 0x100000
L_QS, L_MX, L_LS, L_QP, L_OV, L_HV, L_CS, L_GU, L_ST = 0, 1024, 1088, 1152, 1664, 1792, 2048, 2560, 3072
L_OR, OR_STRIDE, OR_D1 = 4096, 2304, 1024 + 128
L_G, L_U = 16384, 32768
LDS_BYTES = 49152

sW, sG, sJ, sE, sXCC, sHX, sFAST = 3, 28, 29, 30, 31, 32, 33
sTA4, sTA2, sTB4, sTH4 = 34, 35, 36, 37
sSLO, sSHI, sPLO, sPHI = 38, 39, 40, 41
sM = [42, 44, 46, 48]
sG1 = 50
sQP = 52
sT0, sT1, sT2, sT3 = 54, 55, 56, 57
sQN, sSPIN = 59, 60
sCODE = 62
ST0 = 64
X, KP, VP, WQ, WO, GA, UP, DN, OUT, DBG, WS = 4, 6, 8, 10, 12, 16, 18, 20, 22, 24, 26

vL, vK, vV, vN, vGp, vSEL, vQ = 0, 1, 2, 3, 4, 5, 6
vA, vB, vC, vD = 7, 8, 9, 10
vHI, vHA = 124, 125
t0, t1, t2, t3 = 12, 13, 14, 15
RK, RV, RA, RD, RP, RX = 16, 48, 80, 96, 104, 112
LOG2E = "0x3fb8aa3b"
DPP = "row_mask:0xf bank_mask:0xf"


def sp(r):
    return f"s[{r}:{r + 1}]"


def vr(r, n):
    return f"v[{r}:{r + n - 1}]"


class Gen:
    def __init__(self, prof=False, nt=True, wv0=0, qa_tries=24, d_a1=0, d_b1=0, d_b2a=0, d_c=0, force_slow=False,
                 code_bytes=16384, prew_sc1=False, dbgwg=-1):
        self.L = []
        self.prof, self.nt, self.wv0, self.qa_tries = prof, " nt" if nt else "", wv0, qa_tries
        self.d_a1, self.d_b1, self.d_b2a, self.d_c = d_a1, d_b1, d_b2a, d_c
        self.force_slow = force_slow
        self.code_bytes = code_bytes
        self.prew_sc1 = prew_sc1
        self.cold = []
        self.dbgwg = dbgwg

    def a(self, s):
        for ln in s.strip("\n").split("\n"):
            ln = ln.strip()
            if ln:
                self.L.append(ln if ln.endswith(":") or ln.startswith(".") or ln.startswith(";") else "  " + ln)

    def stamp(self, k):
        if self.prof:
            self.a(f"s_memtime {sp(ST0 + 2 * k)}")

    def sleep(self, n):
        if n:
            self.a(f"s_sleep {n}")

    def spin(self):
        self.a(f"s_sub_u32 s{sSPIN}, s{sSPIN}, 1\ns_cbranch_scc1 L_exit")

    def check4(self, r, tag, dst="vcc"):
        self.a(f"""v_perm_b32 v{t0}, v{r + 1}, v{r}, s{sSLO}
        v_perm_b32 v{t1}, v{r + 3}, v{r + 2}, s{sSHI}
        v_or_b32 v{t0}, v{t0}, v{t1}
        v_cmp_ne_u32 {dst}, s{tag}, v{t0}""")

    def check2(self, r):
        self.a(f"v_perm_b32 v{t0}, v{r + 1}, v{r}, s{sSLO}\nv_cmp_ne_u32 vcc, s{sTA2}, v{t0}")

    def untag(self, r, n):
        for i in range(n):
            self.a(f"v_and_b32 v{r + i}, 0xffffff00, v{r + i}")

    def tag(self, dst, src, tag):
        self.a(f"v_perm_b32 v{dst}, v{src}, s{tag}, v{vSEL}")

    def pub(self, name, store):
        self.a(f"s_cmp_eq_u32 s{sFAST}, 0\ns_cbranch_scc1 L_slow_{name}\n{store}\nL_back_{name}:")
        self.cold.append(f"L_slow_{name}:\n{store} sc1\ns_branch L_back_{name}")

    def bf16r(self, dst, src):
        self.a(f"v_cvt_pk_bf16_f32 v{dst}, v{src}, v{src}\nv_and_b32 v{dst}, 0xffff0000, v{dst}")

    def allred(self, r, op, rors=(8, 4, 2, 1), tmp=t3):
        for k in rors:
            self.a(f"{op}_dpp v{r}, v{r}, v{r} row_ror:{k} {DPP}")
        for sw in ("v_permlane16_swap_b32", "v_permlane32_swap_b32"):
            self.a(f"v_mov_b32 v{tmp}, v{r}\n{sw} v{r}, v{tmp}\n{op} v{r}, v{r}, v{tmp}")

    def rs4(self, r):
        self.a(f"""v_permlane32_swap_b32 v{r}, v{r + 2}
        v_permlane32_swap_b32 v{r + 1}, v{r + 3}
        v_add_f32 v{r}, v{r}, v{r + 2}
        v_add_f32 v{r + 1}, v{r + 1}, v{r + 3}
        v_permlane16_swap_b32 v{r}, v{r + 1}
        v_add_f32 v{r}, v{r}, v{r + 1}""")

    def ln_scale(self, mean, var, tmp):
        self.a(f"v_cvt_pk_bf16_f32 v{tmp}, v{mean}, v{var}")
        self.a(f"v_lshlrev_b32 v{mean}, 16, v{tmp}\nv_and_b32 v{var}, 0xffff0000, v{tmp}")
        self.a(f"v_add_f32 v{var}, 0x3727c5ac, v{var}")
        self.bf16r(var, var)
        self.a(f"v_sqrt_f32 v{var}, v{var}")
        self.bf16r(var, var)

    def perm_pair(self, src0, src1, dst, stride, slot):
        for dd in range(4):
            self.a(f"v_perm_b32 v{dst + stride * (2 * dd) + slot}, v{src1 + dd}, v{src0 + dd}, s{sPLO}")
            self.a(f"v_perm_b32 v{dst + stride * (2 * dd + 1) + slot}, v{src1 + dd}, v{src0 + dd}, s{sPHI}")

    def consts(self):
        self.a(f"""s_mov_b32 s{sSLO}, 0x0c0c0400
        s_mov_b32 s{sSHI}, 0x04000c0c
        s_mov_b32 s{sPLO}, 0x05040100
        s_mov_b32 s{sPHI}, 0x07060302
        s_mov_b32 s{sM[0]}, 0x11111111
        s_mov_b32 s{sM[0] + 1}, 0x11111111
        s_lshl_b64 {sp(sM[1])}, {sp(sM[0])}, 1
        s_lshl_b64 {sp(sM[2])}, {sp(sM[0])}, 2
        s_lshl_b64 {sp(sM[3])}, {sp(sM[0])}, 3
        s_mov_b32 s{sG1}, 0xffff0000
        s_mov_b32 s{sG1 + 1}, 0xffff0000
        s_mov_b32 s{sSPIN}, 0x20000
        s_mov_b32 s{sQN}, 0
        v_mov_b32 v{vSEL}, 0x07060500
        s_getreg_b32 s{sXCC}, hwreg(HW_REG_XCC_ID, 0, 4)
        s_lshl_b32 s{sT0}, s{sG}, 7
        s_add_u32 s{sT0}, s{sT0}, {WS_HI}
        v_lshl_add_u32 v{vHA}, v{vN}, 2, s{sT0}
        s_lshl_b32 s{sT0}, s{sG}, 11
        s_lshl_b32 s{sT1}, s{sW}, 9
        s_add_u32 s{sT0}, s{sT0}, s{sT1}
        s_add_u32 s{sT0}, s{sT0}, {WS_QA}
        v_lshl_add_u32 v{vQ}, v{vL}, 3, s{sT0}
        s_mov_b64 {sp(sQP)}, {sp(WS)}""")

    def tags(self):
        self.a(f"""s_add_u32 s{sE}, s{sE}, 1
        s_and_b32 s{sT0}, s{sE}, 0xff
        s_mul_i32 s{sTA4}, s{sT0}, 0x01010101
        s_and_b32 s{sTA2}, s{sTA4}, 0xffff
        s_xor_b32 s{sTB4}, s{sTA4}, 0x40404040
        s_xor_b32 s{sTH4}, s{sTA4}, 0x80808080
        s_lshl_b32 s{sHX}, s{sE}, 4
        s_or_b32 s{sHX}, s{sHX}, s{sXCC}""")

    def census_load(self, off):
        self.a(f"global_load_dword v{vHI}, v{vHA}, {sp(WS)} offset:{off} sc1")

    def census_eval(self):
        if self.force_slow:
            self.a(f"s_mov_b32 s{sFAST}, 0")
        else:
            self.a(f"v_cmp_ne_u32 vcc, s{sHX}, v{vHI}\ns_cmp_eq_u64 vcc, 0\ns_cselect_b32 s{sFAST}, 1, 0")

    def kloads(self):
        for tau in range(2):
            for s in range(4):
                self.a(f"global_load_dwordx4 {vr(RK + 16 * tau + 4 * s, 4)}, v{vK}, {sp(KP)} offset:{4096 * tau + 64 * s - 2048}{self.nt}")

    def vload(self, jj):
        off = (jj * 256 if jj < 4 else 4096 + (jj - 4) * 256) - 2048
        self.a(f"global_load_dwordx4 {vr(RV + 4 * jj, 4)}, v{vV}, {sp(VP)} offset:{off}{self.nt}")

    def prologue(self):
        a = self.a
        if self.prof:
            a(f"s_memrealtime {sp(ST0 + 30)}")
        self.stamp(0)
        a(f"""s_cmpk_ge_u32 s2, 0x100
        s_cbranch_scc1 L_end
        s_load_dwordx16 s[4:19], s[0:1], 0
        s_load_dwordx8 s[20:27], s[0:1], 64
        v_lshrrev_b32 v{t0}, 6, v0
        v_and_b32 v{vL}, 63, v0
        v_readfirstlane_b32 s{sW}, v{t0}
        s_and_b32 s{sG}, s2, 7
        s_lshr_b32 s{sJ}, s2, 3
        v_and_b32 v{vN}, 15, v{vL}
        v_lshrrev_b32 v{vGp}, 4, v{vL}
        s_lshl_b32 s{sT0}, s{sG}, 24
        s_lshl_b32 s{sT1}, s{sJ}, 15
        s_add_u32 s{sT0}, s{sT0}, s{sT1}
        s_lshl_b32 s{sT1}, s{sW}, 13
        s_add_u32 s{sT0}, s{sT0}, s{sT1}
        s_add_u32 s{sT0}, s{sT0}, {0xF00000 + 2048}
        v_lshlrev_b32 v{vK}, 8, v{vN}
        v_lshl_add_u32 v{vK}, v{vGp}, 4, v{vK}
        v_add_u32 v{vK}, s{sT0}, v{vK}
        v_lshlrev_b32 v{vV}, 10, v{vGp}
        v_lshl_add_u32 v{vV}, v{vN}, 4, v{vV}
        v_add_u32 v{vV}, s{sT0}, v{vV}
        s_cmp_eq_u32 s{sW}, 4
        s_cbranch_scc1 L_helper
        s_cmp_ge_u32 s{sJ}, 16
        s_cbranch_scc1 L_q_start""")

    def w_start(self):
        a = self.a
        a("s_waitcnt lgkmcnt(0)")
        self.kloads()
        a(f"s_load_dword s{sE}, {sp(WS)}, 0\ns_barrier")
        self.stamp(1)
        a(f"""v_and_b32 v{t0}, 1, v{vL}
        v_lshlrev_b32 v{vD}, 4, v{t0}
        v_lshl_add_u32 v{vD}, v{vGp}, 2, v{vD}
        v_bfe_u32 v{t0}, v{vL}, 2, 1
        v_lshl_add_u32 v{vD}, v{t0}, 1, v{vD}
        v_bfe_u32 v{t0}, v{vL}, 1, 1
        v_add_u32 v{vD}, v{t0}, v{vD}
        s_lshl_b32 s{sT0}, s{sJ}, 6
        v_lshl_add_u32 v{t0}, v{vD}, 1, s{sT0}
        global_load_ushort v11, v{t0}, {sp(X)}""")
        for i in range(self.wv0):
            self.vload(i)
        self.consts()
        for i in range(self.wv0, 8):
            a(f"s_waitcnt vmcnt({8 + self.wv0})")
            self.vload(i)
        self.stamp(2)
        a("s_waitcnt lgkmcnt(0)")
        self.tags()
        a("s_waitcnt vmcnt(0)")
        self.stamp(3)
        a("s_branch L_qpoll")

    def q_start(self):
        a = self.a
        XA, XB, XF, ACC, XN = RA, RA + 4, RA + 8, RK, RD
        a("L_q_start:")
        a(f"""v_lshlrev_b32 v{t0}, 4, v{vL}
        v_lshrrev_b32 v{t2}, 2, v{vL}
        s_lshl_b32 s{sT0}, s{sW}, 8
        v_lshl_add_u32 v{t1}, v{t2}, 4, s{sT0}
        s_lshl_b32 s{sT0}, s{sW}, 20
        s_lshl_b32 s{sT1}, s{sG}, 10
        s_add_u32 s{sT0}, s{sT0}, s{sT1}
        s_lshl_b32 s{sT1}, s{sJ}, 6
        s_add_u32 s{sT0}, s{sT0}, s{sT1}
        s_sub_u32 s{sT0}, s{sT0}, 1024
        v_lshlrev_b32 v{t2}, 16, v{t2}
        v_and_b32 v{t3}, 3, v{vL}
        v_lshl_add_u32 v{t2}, v{t3}, 4, v{t2}
        v_add_u32 v{t2}, s{sT0}, v{t2}
        s_waitcnt lgkmcnt(0)
        global_load_dwordx4 {vr(XA, 4)}, v{t0}, {sp(X)}
        global_load_dwordx4 {vr(XB, 4)}, v{t1}, {sp(X)}""")
        for i in range(8):
            a(f"global_load_dwordx4 {vr(RV + 4 * i, 4)}, v{t2}, {sp(WQ)}{self.nt}")
            if i < 7:
                a(f"v_add_u32 v{t2}, 0x2000, v{t2}")
        a(f"s_load_dword s{sE}, {sp(WS)}, 0\ns_barrier")
        self.stamp(1)
        self.consts()
        a("s_waitcnt vmcnt(8)")
        for i in range(4):
            a(f"v_lshlrev_b32 v{XF + 2 * i}, 16, v{XA + i}\nv_and_b32 v{XF + 2 * i + 1}, 0xffff0000, v{XA + i}")
        a(f"v_add_f32 v{t0}, v{XF}, v{XF + 1}")
        for i in range(2, 8):
            a(f"v_add_f32 v{t0}, v{t0}, v{XF + i}")
        self.allred(t0, "v_add_f32")
        a(f"v_mul_f32 v{t0}, 0x3b000000, v{t0}")
        for i in range(8):
            a(f"v_sub_f32 v{XF + i}, v{XF + i}, v{t0}")
        a(f"v_mul_f32 v{t1}, v{XF}, v{XF}")
        for i in range(1, 8):
            a(f"v_fmac_f32 v{t1}, v{XF + i}, v{XF + i}")
        self.allred(t1, "v_add_f32")
        a(f"v_mul_f32 v{t1}, 0x3b000000, v{t1}")
        self.ln_scale(t0, t1, t2)
        a(f"""v_rcp_f32 v{t2}, v{t1}
        v_fma_f32 v{t3}, -v{t1}, v{t2}, 1.0
        v_fmac_f32 v{t2}, v{t3}, v{t2}""")
        for i in range(4):
            a(f"v_lshlrev_b32 v{XF + 2 * i}, 16, v{XB + i}\nv_and_b32 v{XF + 2 * i + 1}, 0xffff0000, v{XB + i}")
        for i in range(8):
            a(f"v_sub_f32 v{XF + i}, v{XF + i}, v{t0}")
        for i in range(4):
            a(f"v_cvt_pk_bf16_f32 v{XB + i}, v{XF + 2 * i}, v{XF + 2 * i + 1}")
        for i in range(4):
            a(f"v_lshlrev_b32 v{XF + 2 * i}, 16, v{XB + i}\nv_and_b32 v{XF + 2 * i + 1}, 0xffff0000, v{XB + i}")
        for i in range(8):
            a(f"""v_mul_f32 v{ACC + i}, v{XF + i}, v{t2}
            v_fma_f32 v{XF + i}, -v{ACC + i}, v{t1}, v{XF + i}
            v_fmac_f32 v{ACC + i}, v{XF + i}, v{t2}""")
        for i in range(4):
            a(f"v_cvt_pk_bf16_f32 v{XN + i}, v{ACC + 2 * i}, v{ACC + 2 * i + 1}")
        for i in range(8):
            a(f"v_mov_b32 v{ACC + i}, 0")
        a(f"""v_and_b32 v{t0}, 3, v{vL}
        v_lshlrev_b32 v{t0}, 7, v{t0}
        v_lshl_add_u32 v{t0}, v{vGp}, 5, v{t0}
        s_lshl_b32 s{sT0}, s{sW}, 2
        s_add_u32 s{sT0}, s{sT0}, {L_QP}
        v_add_u32 v{vA}, s{sT0}, v{t0}
        v_and_b32 v{t0}, 31, v{vL}
        v_lshlrev_b32 v{vB}, 4, v{t0}
        s_lshl_b32 s{sT0}, s{sG}, 11
        s_lshl_b32 s{sT1}, s{sJ}, 7
        s_add_u32 s{sT0}, s{sT0}, s{sT1}
        s_add_u32 s{sT0}, s{sT0}, {WS_QA - 2048}
        v_lshl_add_u32 v{vC}, v{t0}, 2, s{sT0}
        s_waitcnt lgkmcnt(0)""")
        self.tags()
        PR = RK + 8
        for p in range(4):
            a(f"s_waitcnt vmcnt({6 - 2 * p})")
            if p == 3:
                self.stamp(2)
            self.perm_pair(RV + 8 * p, RV + 8 * p + 4, PR, 1, 0)
            for t in range(8):
                a(f"v_dot2c_f32_bf16 v{ACC + t}, v{PR + t}, v{XN + p}")
        for t in range(4):
            a(f"v_permlane32_swap_b32 v{ACC + t}, v{ACC + t + 4}")
        for t in range(4):
            a(f"v_add_f32 v{ACC + t}, v{ACC + t}, v{ACC + t + 4}")
        for t in range(2):
            a(f"v_permlane16_swap_b32 v{ACC + t}, v{ACC + t + 2}")
        for t in range(2):
            a(f"v_add_f32 v{ACC + t}, v{ACC + t}, v{ACC + t + 2}")
        for k in (8, 4):
            for t in range(2):
                a(f"v_add_f32_dpp v{ACC + t}, v{ACC + t}, v{ACC + t} row_ror:{k} {DPP}")
        a(f"""s_mov_b32 exec_lo, 0x000f000f
        s_mov_b32 exec_hi, 0x000f000f
        ds_write2_b32 v{vA}, v{ACC}, v{ACC + 1} offset0:0 offset1:4
        s_mov_b64 exec, -1
        s_waitcnt lgkmcnt(0)
        s_barrier
        s_cmp_lg_u32 s{sW}, 0
        s_cbranch_scc1 L_q_pubdone
        ds_read_b128 {vr(ACC, 4)}, v{vB} offset:{L_QP}
        s_waitcnt lgkmcnt(0)
        v_add_f32 v{ACC}, v{ACC}, v{ACC + 1}
        v_add_f32 v{ACC + 2}, v{ACC + 2}, v{ACC + 3}
        v_add_f32 v{ACC}, v{ACC}, v{ACC + 2}
        v_cvt_pk_bf16_f32 v{ACC}, 0, v{ACC}""")
        self.tag(ACC, ACC, sTA4)
        a(f"""s_lshl_b32 s{sT0}, s{sG}, 7
        s_lshl_b32 s{sT1}, s{sJ}, 2
        s_add_u32 s{sT0}, s{sT0}, s{sT1}
        s_add_u32 s{sT0}, s{sT0}, {WS_HI}
        v_mov_b32 v{t0}, s{sT0}
        v_mov_b32 v{t1}, s{sHX}
        s_mov_b32 exec_hi, 0
        global_store_dword v{vC}, v{ACC}, {sp(WS)}
        v_add_u32 v{vC}, {WS_QB - WS_QA}, v{vC}
        global_store_dword v{vC}, v{ACC}, {sp(WS)} sc1
        s_mov_b64 exec, 1
        global_store_dword v{t0}, v{t1}, {sp(WS)}
        s_mov_b64 exec, -1
        L_q_pubdone:
        s_barrier""")
        self.stamp(3)
        self.kloads()
        a(f"""s_waitcnt vmcnt(7)
        global_load_dwordx2 {vr(RX, 2)}, v{vQ}, {sp(WS)} sc1""")
        self.census_load(0)
        for jj in range(8):
            self.vload(jj)
        a("s_waitcnt vmcnt(8)")
        self.check2(RX)
        a("s_cbranch_vccz L_qok")

    def attention(self):
        a = self.a
        a(f"""L_qpoll:
        global_load_dwordx2 {vr(RX, 2)}, v{vQ}, {sp(sQP)} sc1""")
        self.census_load(0)
        self.spin()
        a(f"""s_add_u32 s{sQN}, s{sQN}, 1
        s_cmp_eq_u32 s{sQN}, {self.qa_tries}
        s_cselect_b32 s{sT0}, {WS_QB - WS_QA}, 0
        s_add_u32 s{sQP}, s{sQP}, s{sT0}
        s_addc_u32 s{sQP + 1}, s{sQP + 1}, 0
        s_waitcnt vmcnt(0)""")
        self.check2(RX)
        a("s_cbranch_vccnz L_qpoll\nL_qok:")
        self.stamp(4)
        a(f"""v_perm_b32 v{t0}, v{RX + 1}, v{RX}, s{sPHI}
        s_lshl_b32 s{sT0}, s{sW}, 8
        v_lshl_add_u32 v{t1}, v{vL}, 2, s{sT0}
        ds_write_b32 v{t1}, v{t0} offset:{L_QS}
        v_lshrrev_b32 v{vA}, 2, v{vN}
        v_lshlrev_b32 v{t2}, 8, v{vA}
        v_lshl_add_u32 v{t2}, v{vGp}, 4, v{t2}
        v_lshlrev_b32 v{vA}, 4, v{vA}
        s_lshl_b32 s{sT0}, s{sW}, 2
        v_add_u32 v{vB}, s{sT0}, v{vA}
        s_waitcnt lgkmcnt(0)
        s_barrier""")
        for s in range(4):
            a(f"ds_read_b128 {vr(RA + 4 * s, 4)}, v{t2} offset:{L_QS + 64 * s}")
        self.census_eval()
        for s in range(4):
            a(f"s_waitcnt lgkmcnt({3 - s})")
            for tau in range(2):
                c = "0" if s == 0 else vr(RD + 4 * tau, 4)
                a(f"v_mfma_f32_16x16x32_bf16 {vr(RD + 4 * tau, 4)}, {vr(RK + 16 * tau + 4 * s, 4)}, {vr(RA + 4 * s, 4)}, {c}")
        for rnd in range(2):
            for i in range(4):
                a(f"v_cvt_pk_bf16_f32 v{RP + i}, v{RD + 2 * i}, v{RD + 2 * i + 1}")
            for i in range(4):
                a(f"v_lshlrev_b32 v{RD + 2 * i}, 16, v{RP + i}\nv_and_b32 v{RD + 2 * i + 1}, 0xffff0000, v{RP + i}")
            if rnd == 0:
                for i in range(8):
                    a(f"v_mul_f32 v{RD + i}, 0x3db504f3, v{RD + i}")
        a(f"""v_max3_f32 v{t0}, v{RD}, v{RD + 1}, v{RD + 2}
        v_max3_f32 v{t1}, v{RD + 3}, v{RD + 4}, v{RD + 5}
        v_max3_f32 v{t0}, v{t0}, v{RD + 6}, v{RD + 7}
        v_max_f32 v{t0}, v{t0}, v{t1}""")
        self.allred(t0, "v_max_f32", rors=())
        a(f"""ds_write_b32 v{vB}, v{t0} offset:{L_MX}
        s_waitcnt lgkmcnt(0)
        s_barrier
        ds_read_b128 {vr(RA, 4)}, v{vA} offset:{L_MX}
        s_waitcnt lgkmcnt(0)
        v_max3_f32 v{t2}, v{RA}, v{RA + 1}, v{RA + 2}
        v_max_f32 v{t2}, v{t2}, v{RA + 3}""")
        for i in range(8):
            a(f"v_sub_f32 v{RD + i}, v{RD + i}, v{t2}")
        for i in range(8):
            a(f"v_mul_f32 v{RD + i}, {LOG2E}, v{RD + i}")
        for i in range(8):
            a(f"v_exp_f32 v{RD + i}, v{RD + i}")
        a(f"v_add_f32 v{t0}, v{RD}, v{RD + 1}")
        for i in range(2, 8):
            a(f"v_add_f32 v{t0}, v{t0}, v{RD + i}")
        self.allred(t0, "v_add_f32", rors=())
        a(f"ds_write_b32 v{vB}, v{t0} offset:{L_LS}")
        for i in range(4):
            a(f"v_cvt_pk_bf16_f32 v{RP + i}, v{RD + 2 * i}, v{RD + 2 * i + 1}")
        a(f"""s_waitcnt lgkmcnt(0)
        s_barrier
        ds_read_b128 {vr(RD, 4)}, v{vA} offset:{L_LS}""")
        for r in range(4):
            for i in range(4):
                a(f"v_cndmask_b32 v{RA + 4 * r + i}, 0, v{RP + i}, {sp(sM[r])}")
        a(f"""s_lshl_b32 s{sT0}, s{sG}, 10
        s_lshl_b32 s{sT1}, s{sJ}, 5
        s_add_u32 s{sT0}, s{sT0}, s{sT1}
        s_add_u32 s{sT0}, s{sT0}, {WS_ML}
        v_lshrrev_b32 v{t1}, 1, v{vA}
        v_add_u32 v{t1}, s{sT0}, v{t1}
        s_lshl_b32 s{sT0}, s{sW}, 2
        s_lshl_b64 {sp(sT2)}, 1, s{sT0}
        s_waitcnt lgkmcnt(0)
        v_add_f32 v{RD}, v{RD}, v{RD + 1}
        v_add_f32 v{RD + 2}, v{RD + 2}, v{RD + 3}
        v_add_f32 v{t3}, v{RD}, v{RD + 2}""")
        self.tag(t2, t2, sTA4)
        self.tag(t3, t3, sTA4)
        a(f"s_mov_b64 exec, {sp(sT2)}")
        self.pub("ml", f"global_store_dwordx2 v{t1}, {vr(t2, 2)}, {sp(WS)}")
        a("s_mov_b64 exec, -1")
        a(f"""s_mul_i32 s{sT0}, s{sW}, {OR_STRIDE}
        v_lshl_add_u32 v{vA}, v{vL}, 4, s{sT0}
        v_lshrrev_b32 v{t0}, 2, v{vL}
        v_lshlrev_b32 v{vB}, 4, v{t0}
        v_bfe_u32 v{t0}, v{vL}, 1, 1
        v_mul_u32_u24 v{t0}, {OR_D1}, v{t0}
        v_add_u32 v{vB}, v{t0}, v{vB}
        v_and_b32 v{t0}, 1, v{vL}
        v_lshl_add_u32 v{vB}, v{t0}, 3, v{vB}
        s_lshl_b32 s{sT0}, s{sW}, 8
        v_add_u32 v{vB}, s{sT0}, v{vB}
        s_lshl_b32 s{sT0}, s{sG}, 16
        s_lshl_b32 s{sT1}, s{sJ}, 11
        s_add_u32 s{sT0}, s{sT0}, s{sT1}
        s_lshl_b32 s{sT1}, s{sW}, 9
        s_add_u32 s{sT0}, s{sT0}, s{sT1}
        s_add_u32 s{sT0}, s{sT0}, {WS_A1}
        v_lshl_add_u32 v{vC}, v{vL}, 3, s{sT0}""")
        self.stamp(5)
        for p in range(3):
            a(f"s_waitcnt vmcnt({7 - 2 * p})")
            self.perm_pair(RV + 8 * p, RV + 8 * p + 4, RK, 4, p)
        a("s_waitcnt vmcnt(1)")
        self.stamp(6)
        s0, s1 = RV + 24, RV + 28

        def pm(t):
            a(f"v_perm_b32 v{RK + 4 * t + 3}, v{s1 + t // 2}, v{s0 + t // 2}, s{sPHI if t % 2 else sPLO}")

        def mf(t):
            d = vr(RD + 4 * (t // 4), 4)
            a(f"v_mfma_f32_16x16x32_bf16 {d}, {vr(RA + 4 * (t % 4), 4)}, {vr(RK + 4 * t, 4)}, {'0' if t % 4 == 0 else d}")
        order = [0, 4, 1, 5, 2, 6, 3, 7]
        pm(order[0]); pm(order[1]); pm(order[2])
        for i, t in enumerate(order):
            mf(t)
            if i + 3 < 8:
                pm(order[i + 3])
        a(f"""ds_write_b128 v{vA}, {vr(RD, 4)} offset:{L_OR}
        ds_write_b128 v{vA}, {vr(RD + 4, 4)} offset:{L_OR + OR_D1}
        s_waitcnt lgkmcnt(0)
        s_barrier""")
        for w in range(4):
            a(f"ds_read_b64 {vr(RD + 2 * w, 2)}, v{vB} offset:{L_OR + OR_STRIDE * w}")
        a(f"""s_waitcnt lgkmcnt(2)
        v_pk_add_f32 {vr(RD, 2)}, {vr(RD, 2)}, {vr(RD + 2, 2)}
        s_waitcnt lgkmcnt(0)
        v_pk_add_f32 {vr(RD + 4, 2)}, {vr(RD + 4, 2)}, {vr(RD + 6, 2)}
        v_pk_add_f32 {vr(RD, 2)}, {vr(RD, 2)}, {vr(RD + 4, 2)}""")
        self.tag(RD, RD, sTA4)
        self.tag(RD + 1, RD + 1, sTA4)
        self.pub("a1", f"global_store_dwordx2 v{vC}, {vr(RD, 2)}, {sp(WS)}")
        a("s_barrier")
        self.stamp(7)
        a(f"s_cmp_ge_u32 s{sJ}, 16\ns_cbranch_scc1 L_f_tail")

    def w_tail(self):
        a = self.a
        a(f"""s_lshl_b32 s{sT0}, s{sG}, 19
        s_lshl_b32 s{sT1}, s{sJ}, 15
        s_add_u32 s{sT0}, s{sT0}, s{sT1}
        s_lshl_b32 s{sT1}, s{sW}, 8
        s_add_u32 s{sT0}, s{sT0}, s{sT1}
        s_add_u32 s{sT0}, s{sT0}, 4096
        v_lshlrev_b32 v{t0}, 13, v{vGp}
        v_lshl_add_u32 v{t0}, v{vN}, 4, v{t0}
        v_add_u32 v{t0}, s{sT0}, v{t0}""")
        for jj in range(8):
            a(f"global_load_dwordx4 {vr(RV + 4 * jj, 4)}, v{t0}, {sp(WO)} offset:{1024 * jj - 4096}{self.nt}")
        a(f"""v_lshrrev_b32 v{t0}, 1, v{vL}
        s_lshl_b32 s{sT0}, s{sG}, 10
        s_lshr_b32 s{sT1}, s{sJ}, 2
        s_lshl_b32 s{sT1}, s{sT1}, 3
        s_add_u32 s{sT0}, s{sT0}, s{sT1}
        s_add_u32 s{sT0}, s{sT0}, {WS_ML}
        v_lshl_add_u32 v{vK}, v{t0}, 5, s{sT0}
        s_lshl_b32 s{sT2}, s{sG}, 16
        s_add_u32 s{sT2}, s{sT2}, {WS_A1}
        s_lshl_b32 s{sT1}, s{sJ}, 7
        s_add_u32 s{sT3}, s{sT2}, s{sT1}
        s_lshl_b32 s{sT1}, s{sW}, 5
        s_add_u32 s{sT0}, s{sT3}, s{sT1}
        v_lshlrev_b32 v{vV}, 11, v{t0}
        v_and_b32 v{t1}, 1, v{vL}
        v_lshl_add_u32 v{vV}, v{t1}, 4, v{vV}
        v_add_u32 v{vV}, s{sT0}, v{vV}
        v_lshlrev_b32 v{vA}, 3, v{t1}
        v_lshl_add_u32 v{vA}, v{vGp}, 1, v{vA}
        s_lshl_b32 s{sT1}, s{sW}, 4
        v_add_u32 v{vA}, s{sT1}, v{vA}
        v_lshlrev_b32 v{vB}, 4, v{vGp}
        v_lshrrev_b32 v{t0}, 2, v{vN}
        v_lshlrev_b32 v{vC}, 11, v{t0}
        v_and_b32 v{t0}, 3, v{vN}
        v_lshl_add_u32 v{vC}, v{t0}, 5, v{vC}
        v_and_b32 v{t0}, 1, v{vGp}
        v_lshl_add_u32 v{vC}, v{t0}, 4, v{vC}
        s_lshl_b32 s{sT1}, s{sW}, 13
        s_add_u32 s{sT0}, s{sT3}, s{sT1}
        v_add_u32 v{vC}, s{sT0}, v{vC}
        s_lshl_b32 s{sT1}, s{sJ}, 11
        s_add_u32 s{sT2}, s{sT2}, s{sT1}
        v_lshl_add_u32 v{vQ}, v{vL}, 4, s{sT2}""")
        for p in range(4):
            a(f"s_waitcnt vmcnt({6 - 2 * p})")
            self.perm_pair(RV + 8 * p, RV + 8 * p + 4, RK, 4, p)
        self.stamp(8)
        WT = RX + 4
        self.census_load(64)
        a(f"L_mlpoll:\nglobal_load_dwordx2 {vr(RX, 2)}, v{vK}, {sp(WS)} sc1")
        self.spin()
        a("s_waitcnt vmcnt(0)")
        self.check2(RX)
        a("s_cbranch_vccnz L_mlpoll")
        a(f"""global_load_dwordx4 {vr(RD, 4)}, v{vV}, {sp(WS)} sc1
        v_and_b32 v{RX}, 0xffff0000, v{RX}
        v_and_b32 v{RX + 1}, 0xffffff00, v{RX + 1}
        v_mov_b32 v{t2}, v{RX}""")
        self.allred(t2, "v_max_f32", rors=(8, 4, 2))
        a(f"""v_sub_f32 v{WT}, v{RX}, v{t2}
        v_mul_f32 v{WT}, {LOG2E}, v{WT}
        v_exp_f32 v{WT}, v{WT}
        v_mul_f32 v{t2}, v{WT}, v{RX + 1}""")
        self.allred(t2, "v_add_f32", rors=(8, 4, 2))
        a(f"""v_rcp_f32 v{t2}, v{t2}
        v_mul_f32 v{WT}, v{WT}, v{t2}
        s_branch L_a1wait
        L_a1poll:
        global_load_dwordx4 {vr(RD, 4)}, v{vV}, {sp(WS)} sc1""")
        self.spin()
        a("L_a1wait:\ns_waitcnt vmcnt(0)")
        self.check4(RD, sTA4)
        self.untag(RD, 4)
        a("s_cbranch_vccnz L_a1poll")
        self.stamp(9)
        for i in range(4):
            a(f"v_mul_f32 v{RD + i}, v{RD + i}, v{WT}")
        self.rs4(RD)
        for k in (8, 4, 2):
            a(f"v_add_f32_dpp v{RD}, v{RD}, v{RD} row_ror:{k} {DPP}")
        a(f"""s_mov_b32 exec_lo, 0x00030003
        s_mov_b32 exec_hi, 0x00030003
        v_cvt_pk_bf16_f32 v{RD}, v{RD}, v{RD}
        ds_write_b16 v{vA}, v{RD} offset:{L_OV}
        s_mov_b64 exec, -1
        s_waitcnt lgkmcnt(0)
        s_barrier
        ds_read_b128 {vr(RX, 4)}, v{vB} offset:{L_OV}
        s_waitcnt lgkmcnt(0)""")
        for t in range(8):
            a(f"v_mfma_f32_16x16x32_bf16 {vr(RV + 4 * t, 4)}, {vr(RX, 4)}, {vr(RK + 4 * t, 4)}, 0")
        a("s_mov_b32 exec_hi, 0")
        for i in range(4):
            a(f"v_cndmask_b32 v{RD + i}, v{RV + 4 * i}, v{RV + 16 + 4 * i}, {sp(sG1)}")
        for i in range(4):
            self.tag(RD + i, RD + i, sTB4)
        self.pub("b1", f"global_store_dwordx4 v{vC}, {vr(RD, 4)}, {sp(WS)}")
        a("s_mov_b64 exec, -1")
        self.stamp(10)
        a(f"""s_cmp_ge_u32 s{sW}, 2
        s_cbranch_scc1 L_exit
        s_cmp_eq_u32 s{sW}, 1
        s_cbranch_scc1 L_final""")
        a(f"""v_and_b32 v{t0}, 7, v{vL}
        v_lshlrev_b32 v{vA}, 2, v{t0}
        v_lshl_add_u32 v{vA}, v{vGp}, 5, v{vA}
        s_lshl_b32 s{sT0}, s{sG}, 11
        s_lshl_b32 s{sT1}, s{sJ}, 7
        s_add_u32 s{sT1}, s{sT1}, {WS_B2A}
        s_add_u32 s{sT0}, s{sT0}, s{sT1}
        v_add_u32 v{vA}, s{sT0}, v{vA}
        v_lshrrev_b32 v{vB}, 3, v{vL}
        v_lshlrev_b32 v{vB}, 11, v{vB}
        v_lshl_add_u32 v{vB}, v{t0}, 4, v{vB}
        v_add_u32 v{vB}, s{sT1}, v{vB}""")
        self.sleep(self.d_b1)
        a(f"""L_b1poll:
        global_load_dwordx4 {vr(RV, 4)}, v{vQ}, {sp(WS)} sc1
        global_load_dwordx4 {vr(RV + 4, 4)}, v{vQ}, {sp(WS)} offset:1024 sc1""")
        self.spin()
        a("s_waitcnt vmcnt(1)")
        self.check4(RV, sTB4, sp(sT2))
        self.untag(RV, 4)
        a("s_waitcnt vmcnt(0)")
        self.check4(RV + 4, sTB4)
        self.untag(RV + 4, 4)
        a(f"s_or_b64 vcc, vcc, {sp(sT2)}\ns_cbranch_vccnz L_b1poll")
        self.stamp(11)
        a(f"""v_pk_add_f32 {vr(RV, 2)}, {vr(RV, 2)}, {vr(RV + 4, 2)}
        v_pk_add_f32 {vr(RV + 2, 2)}, {vr(RV + 2, 2)}, {vr(RV + 6, 2)}""")
        self.rs4(RV)
        a(f"""v_add_f32_dpp v{RV}, v{RV}, v{RV} row_ror:8 {DPP}
        s_mov_b32 exec_lo, 0x00ff00ff
        s_mov_b32 exec_hi, 0x00ff00ff""")
        self.tag(RV, RV, sTA4)
        a(f"""global_store_dword v{vA}, v{RV}, {sp(WS)} sc1
        s_mov_b64 exec, -1
        v_lshlrev_b32 v11, 16, v11
        s_lshl_b32 s{sT0}, s{sG}, 16
        s_lshl_b32 s{sT1}, s{sJ}, 7
        s_add_u32 s{sT0}, s{sT0}, s{sT1}
        s_add_u32 s{sT0}, s{sT0}, {WS_A1 + 16 * 2048}
        v_lshl_add_u32 v{vC}, v{vD}, 2, s{sT0}
        v_lshlrev_b32 v{vD}, 2, v{vD}""")
        self.census_eval()
        self.sleep(self.d_b2a)
        a(f"L_b2poll:\nglobal_load_dwordx4 {vr(RV, 4)}, v{vB}, {sp(WS)} sc1")
        self.spin()
        a("s_waitcnt vmcnt(0)")
        self.check4(RV, sTA4)
        self.untag(RV, 4)
        a("s_cbranch_vccnz L_b2poll")
        self.stamp(12)
        self.rs4(RV)
        a(f"v_add_f32_dpp v{RV}, v{RV}, v{RV} row_ror:8 {DPP}")
        self.bf16r(RV, RV)
        a(f"""v_add_f32 v{RV}, v{RV}, v11
        v_cvt_pk_bf16_f32 v{RV}, 0, v{RV}
        s_mov_b32 exec_lo, 0x00ff00ff
        s_mov_b32 exec_hi, 0x00ff00ff""")
        self.tag(RV + 1, RV, sTH4)
        self.pub("b2b", f"global_store_dword v{vC}, v{RV + 1}, {sp(WS)}")
        a(f"""ds_write_b32 v{vD}, v{RV} offset:{L_HV}
        s_mov_b64 exec, -1
        L_final:
        s_cmp_ge_u32 s{sG}, 4
        s_cbranch_scc1 L_exit
        s_lshl_b32 s{sT0}, s{sG}, 9
        s_lshl_b32 s{sT1}, s{sJ}, 5
        s_add_u32 s{sT0}, s{sT0}, s{sT1}
        s_lshl_b32 s{sT1}, s{sW}, 4
        s_add_u32 s{sT0}, s{sT0}, s{sT1}
        s_add_u32 s{sT0}, s{sT0}, {WS_C}
        v_lshlrev_b32 v{vA}, 11, v{vL}
        v_add_u32 v{vA}, s{sT0}, v{vA}
        v_min_u32 v{vB}, 47, v{vL}
        v_lshlrev_b32 v{vB}, 11, v{vB}
        s_add_u32 s{sT0}, s{sT0}, {64 * 2048}
        v_add_u32 v{vB}, s{sT0}, v{vB}
        s_lshl_b32 s{sT0}, s{sG}, 3
        s_lshl_b32 s{sT1}, s{sW}, 2
        s_add_u32 s{sT0}, s{sT0}, s{sT1}
        v_add_u32 v{t2}, s{sT0}, v{vGp}
        v_lshlrev_b32 v{vD}, 2, v{t2}
        s_lshl_b32 s{sT1}, s{sJ}, 6
        v_lshl_add_u32 v{vC}, v{t2}, 1, s{sT1}
        v_cmp_gt_u32 {sp(sM[0])}, 48, v{vL}
        s_waitcnt lgkmcnt(0)
        s_barrier
        ds_read_b32 v11, v{vD} offset:{L_HV}""")
        self.sleep(self.d_c)
        a(f"""L_cpoll:
        global_load_dwordx4 {vr(RV, 4)}, v{vA}, {sp(WS)} sc1
        global_load_dwordx4 {vr(RV + 4, 4)}, v{vB}, {sp(WS)} sc1""")
        self.spin()
        a("s_waitcnt vmcnt(1)")
        self.check4(RV, sTA4, sp(sT2))
        self.untag(RV, 4)
        a("s_waitcnt vmcnt(0)")
        self.check4(RV + 4, sTA4)
        self.untag(RV + 4, 4)
        a(f"s_or_b64 vcc, vcc, {sp(sT2)}\ns_cbranch_vccnz L_cpoll")
        self.stamp(13)
        a(f"""s_mov_b64 exec, {sp(sM[0])}
        v_pk_add_f32 {vr(RV, 2)}, {vr(RV, 2)}, {vr(RV + 4, 2)}
        v_pk_add_f32 {vr(RV + 2, 2)}, {vr(RV + 2, 2)}, {vr(RV + 6, 2)}
        s_mov_b64 exec, -1""")
        self.rs4(RV)
        for k in (8, 4, 2, 1):
            a(f"v_add_f32_dpp v{RV}, v{RV}, v{RV} row_ror:{k} {DPP}")
        self.bf16r(RV, RV)
        a(f"""s_waitcnt lgkmcnt(0)
        v_add_f32 v{RV}, v{RV}, v11
        v_cvt_pk_bf16_f32 v{RV}, v{RV}, v{RV}
        s_mov_b32 exec_lo, 0x00010001
        s_mov_b32 exec_hi, 0x00010001
        global_store_short v{vC}, v{RV}, {sp(OUT)}
        s_or_b32 s{sT0}, s2, s{sW}
        s_cmp_lg_u32 s{sT0}, 0
        s_cbranch_scc1 L_exit
        s_mov_b64 exec, 1
        v_mov_b32 v{t0}, 0
        v_mov_b32 v{t1}, s{sE}
        global_store_dword v{t0}, v{t1}, {sp(WS)}
        s_branch L_exit""")

    def f_tail(self):
        a = self.a
        BG, BU, DW, BD, DR = RK, RK + 16, RV, RV + 16, RA
        ONES, CSG, CSU = RX + 8, RX + 9, RX + 10
        a(f"""L_f_tail:
        s_cmp_ge_u32 s{sJ}, 30
        s_cbranch_scc1 L_exit
        s_mul_i32 s{sT3}, s{sG}, 14
        s_add_u32 s{sT3}, s{sT3}, s{sJ}
        s_sub_u32 s{sT3}, s{sT3}, 16
        s_mul_i32 s{sT0}, s{sW}, {128 * 3584}
        s_lshl_b32 s{sT1}, s{sT3}, 5
        s_add_u32 s{sT0}, s{sT0}, s{sT1}
        v_lshrrev_b32 v{t0}, 1, v{vL}
        v_mul_u32_u24 v{t0}, 3584, v{t0}
        v_and_b32 v{t1}, 1, v{vL}
        v_lshl_add_u32 v{t0}, v{t1}, 4, v{t0}
        v_add_u32 v{t0}, s{sT0}, v{t0}
        s_lshl_b32 s{sT2}, s{sW}, 12""")
        for i in range(4):
            for base, ptr in ((L_G, GA), (L_U, UP)):
                a(f"s_add_u32 m0, s{sT2}, {base + 1024 * i}\nglobal_load_lds_dwordx4 v{t0}, {sp(ptr)}{self.nt}")
            if i < 3:
                a(f"v_add_u32 v{t0}, {32 * 3584}, v{t0}")
        a(f"""s_lshl_b32 s{sT0}, s{sT3}, 14
        s_lshl_b32 s{sT1}, s{sW}, 8
        s_add_u32 s{sT0}, s{sT0}, s{sT1}
        v_lshlrev_b32 v{t0}, 12, v{vGp}
        v_lshl_add_u32 v{t0}, v{vN}, 4, v{t0}
        v_add_u32 v{t0}, s{sT0}, v{t0}""")
        for jj in range(4):
            a(f"global_load_dwordx4 {vr(DW + 4 * jj, 4)}, v{t0}, {sp(DN)} offset:{1024 * jj}{self.nt}")
        a(f"""v_lshlrev_b32 v{vA}, 9, v{vGp}
        v_lshl_add_u32 v{vA}, v{vN}, 3, v{vA}
        v_add_u32 v{vA}, s{sT2}, v{vA}
        v_and_b32 v{t0}, 31, v{vL}
        v_lshlrev_b32 v{vB}, 4, v{t0}
        v_and_b32 v{t1}, 1, v{vGp}
        v_lshlrev_b32 v{t1}, 4, v{t1}
        v_add_u32 v{t1}, {L_ST - L_GU}, v{t1}
        v_cmp_gt_u32 vcc, 32, v{vL}
        v_cndmask_b32 v{vB}, v{t1}, v{vB}, vcc
        s_lshl_b32 s{sT0}, s{sW}, 2
        v_add_u32 v{vB}, s{sT0}, v{vB}
        v_and_b32 v{t0}, 3, v{vL}
        v_lshl_add_u32 v{t1}, v{vGp}, 2, v{t0}
        v_lshlrev_b32 v{vC}, 4, v{t1}
        s_lshl_b32 s{sT0}, s{sG}, 16
        s_lshl_b32 s{sT1}, s{sW}, 9
        s_add_u32 s{sT0}, s{sT0}, s{sT1}
        s_add_u32 s{sT0}, s{sT0}, {WS_A1 + 16 * 2048}
        v_add_u32 v{vK}, s{sT0}, v{vC}
        v_lshlrev_b32 v{vV}, 9, v{t0}
        v_lshrrev_b32 v{t1}, 2, v{vN}
        v_lshl_add_u32 v{vV}, v{t1}, 5, v{vV}
        v_and_b32 v{t1}, 1, v{vGp}
        v_lshl_add_u32 v{vV}, v{t1}, 4, v{vV}
        s_lshl_b32 s{sT0}, s{sT3}, 11
        s_lshl_b32 s{sT1}, s{sW}, 7
        s_add_u32 s{sT0}, s{sT0}, s{sT1}
        s_add_u32 s{sT0}, s{sT0}, {WS_C}
        v_add_u32 v{vV}, s{sT0}, v{vV}
        v_mov_b32 v{vD}, 0
        v_mov_b32 v{ONES}, 0x3f803f80
        v_mov_b32 v{RX}, 0x3f803f80
        v_mov_b32 v{RX + 1}, 0x3f803f80
        v_mov_b32 v{RX + 2}, 0x3f803f80
        v_mov_b32 v{RX + 3}, 0x3f803f80
        s_waitcnt vmcnt(4)""")
        for base, B in ((L_G, BG), (L_U, BU)):
            for s in range(4):
                for hf in range(2):
                    a(f"ds_read_b64_tr_b16 {vr(B + 4 * s + 2 * hf, 2)}, v{vA} offset:{base + 2048 * hf + 128 * s}")
        a("s_waitcnt lgkmcnt(0)")
        for s in range(4):
            for B, D in ((BG, DR), (BU, DR + 4)):
                a(f"v_mfma_f32_16x16x32_bf16 {vr(D, 4)}, {vr(RX, 4)}, {vr(B + 4 * s, 4)}, {'0' if s == 0 else vr(D, 4)}")
        a(f"""v_cndmask_b32 v{t0}, v{DR}, v{DR + 4}, {sp(sG1)}
        s_mov_b32 exec_hi, 0
        ds_write_b32 v{vB}, v{t0} offset:{L_CS}
        s_mov_b64 exec, -1
        s_waitcnt vmcnt(0)""")
        self.stamp(8)
        for p in range(2):
            self.perm_pair(DW + 8 * p, DW + 8 * p + 4, BD, 2, p)
        a(f"""s_waitcnt lgkmcnt(0)
        s_barrier
        ds_read_b128 {vr(DR, 4)}, v{vC} offset:{L_CS}
        ds_read_b128 {vr(DR + 4, 4)}, v{vC} offset:{L_CS + 256}
        s_waitcnt lgkmcnt(0)
        v_add_f32 v{CSG}, v{DR}, v{DR + 1}
        v_add_f32 v{CSU}, v{DR + 4}, v{DR + 5}
        v_add_f32 v{CSG}, v{CSG}, v{DR + 2}
        v_add_f32 v{CSU}, v{CSU}, v{DR + 6}
        v_add_f32 v{CSG}, v{CSG}, v{DR + 3}
        v_add_f32 v{CSU}, v{CSU}, v{DR + 7}""")
        H0, H1, HA = DW, DW + 4, RX
        a(f"""L_hpoll:
        global_load_dwordx4 {vr(H0, 4)}, v{vK}, {sp(WS)} sc1
        global_load_dwordx4 {vr(H1, 4)}, v{vK}, {sp(WS)} offset:256 sc1""")
        self.spin()
        a("s_waitcnt vmcnt(1)")
        self.check4(H0, sTH4, sp(sT2))
        a(f"""v_perm_b32 v{HA}, v{H0 + 1}, v{H0}, s{sPHI}
        v_perm_b32 v{HA + 1}, v{H0 + 3}, v{H0 + 2}, s{sPHI}
        s_waitcnt vmcnt(0)
        v_perm_b32 v{HA + 2}, v{H1 + 1}, v{H1}, s{sPHI}
        v_perm_b32 v{HA + 3}, v{H1 + 3}, v{H1 + 2}, s{sPHI}""")
        self.check4(H1, sTH4)
        a(f"s_or_b64 vcc, vcc, {sp(sT2)}\ns_cbranch_vccnz L_hpoll")
        self.stamp(9)
        SA, SB = RX + 4, RX + 5
        fill = [f"v_mov_b32 v{SA}, 0\nv_mov_b32 v{SB}, 0"]
        fill += [f"v_dot2c_f32_bf16 v{SA}, v{HA + i}, v{ONES}\nv_dot2c_f32_bf16 v{SB}, v{HA + i}, v{HA + i}" for i in range(4)]
        fill += ["", f"v_add_f32_dpp v{SA}, v{SA}, v{SA} quad_perm:[1,0,3,2] {DPP}\nv_add_f32_dpp v{SB}, v{SB}, v{SB} quad_perm:[1,0,3,2] {DPP}",
                 f"v_add_f32_dpp v{SA}, v{SA}, v{SA} quad_perm:[2,3,0,1] {DPP}\nv_add_f32_dpp v{SB}, v{SB}, v{SB} quad_perm:[2,3,0,1] {DPP}"]
        k = 0
        for s in range(4):
            for B, D in ((BG, DR), (BU, DR + 16)):
                a(f"v_mfma_f32_16x16x32_bf16 {vr(D + 4 * s, 4)}, {vr(HA, 4)}, {vr(B + 4 * s, 4)}, 0")
                a(fill[k]); k += 1
        a(f"""v_permlane16_swap_b32 v{SA}, v{SB}
        v_add_f32 v{t0}, v{DR}, v{DR + 5}
        v_add_f32 v{SA}, v{SA}, v{SB}
        v_add_f32 v{t1}, v{DR + 16}, v{DR + 21}
        v_mov_b32 v{SB}, v{SA}
        v_add_f32 v{t0}, v{t0}, v{DR + 10}
        v_add_f32 v{t1}, v{t1}, v{DR + 26}
        v_permlane32_swap_b32 v{SA}, v{SB}
        v_add_f32 v{t0}, v{t0}, v{DR + 15}
        v_add_f32 v{t1}, v{t1}, v{DR + 31}
        v_add_f32 v{SA}, v{SA}, v{SB}
        v_cndmask_b32 v{t0}, v{t0}, v{t1}, {sp(sG1)}
        s_mov_b32 exec_lo, 0
        v_mov_b32 v{t0}, v{SA}
        s_mov_b32 exec_lo, -1
        ds_write_b32 v{vB}, v{t0} offset:{L_GU}
        s_waitcnt lgkmcnt(0)
        s_barrier
        ds_read_b128 {vr(DR, 4)}, v{vD} offset:{L_ST}
        ds_read_b128 {vr(DR + 4, 4)}, v{vD} offset:{L_ST + 16}
        ds_read_b128 {vr(DR + 8, 4)}, v{vC} offset:{L_GU}
        ds_read_b128 {vr(DR + 12, 4)}, v{vC} offset:{L_GU + 256}
        s_waitcnt lgkmcnt(2)
        v_pk_add_f32 {vr(DR, 2)}, {vr(DR, 2)}, {vr(DR + 2, 2)}
        v_pk_add_f32 {vr(DR + 4, 2)}, {vr(DR + 4, 2)}, {vr(DR + 6, 2)}
        v_add_f32 v{t0}, v{DR}, v{DR + 1}
        v_add_f32 v{t1}, v{DR + 4}, v{DR + 5}
        v_mul_f32 v{t0}, 0x3b000000, v{t0}
        v_mul_f32 v{t1}, 0x3b000000, v{t1}
        v_fma_f32 v{t1}, -v{t0}, v{t0}, v{t1}
        v_max_f32 v{t1}, 0, v{t1}""")
        self.ln_scale(t0, t1, t2)
        a(f"""v_rcp_f32 v{t1}, v{t1}
        s_waitcnt lgkmcnt(0)
        v_pk_add_f32 {vr(DR + 8, 2)}, {vr(DR + 8, 2)}, {vr(DR + 10, 2)}
        v_pk_add_f32 {vr(DR + 12, 2)}, {vr(DR + 12, 2)}, {vr(DR + 14, 2)}
        v_add_f32 v{t2}, v{DR + 8}, v{DR + 9}
        v_add_f32 v{t3}, v{DR + 12}, v{DR + 13}
        v_fma_f32 v{t2}, -v{t0}, v{CSG}, v{t2}
        v_fma_f32 v{t3}, -v{t0}, v{CSU}, v{t3}
        v_mul_f32 v{t2}, v{t2}, v{t1}
        v_mul_f32 v{t3}, v{t3}, v{t1}
        v_cvt_pk_bf16_f32 v{t3}, v{t2}, v{t3}
        v_lshlrev_b32 v{t2}, 16, v{t3}
        v_and_b32 v{t3}, 0xffff0000, v{t3}
        v_mul_f32 v{t0}, 0xbfb8aa3b, v{t2}
        v_exp_f32 v{t0}, v{t0}
        v_add_f32 v{t0}, 1.0, v{t0}
        v_rcp_f32 v{t0}, v{t0}
        v_mul_f32 v{t2}, v{t2}, v{t0}""")
        self.bf16r(t2, t2)
        a(f"""v_mul_f32 v{t2}, v{t2}, v{t3}
        v_cvt_pk_bf16_f32 v{t2}, v{t2}, v{t2}
        v_mov_b32_dpp v{t3}, v{t2} quad_perm:[1,0,3,2] {DPP}
        v_perm_b32 v{t2}, v{t3}, v{t2}, s{sPHI}
        v_mov_b32_dpp v{HA}, v{t2} quad_perm:[0,0,0,0] {DPP}
        v_mov_b32_dpp v{HA + 1}, v{t2} quad_perm:[2,2,2,2] {DPP}""")
        for t in range(8):
            a(f"v_mfma_f32_16x16x16_bf16 {vr(DR + 4 * t, 4)}, {vr(HA, 2)}, {vr(BD + 2 * t, 2)}, 0")
        a("s_mov_b32 exec_hi, 0")
        for i in range(4):
            a(f"v_cndmask_b32 v{H0 + i}, v{DR + 4 * i}, v{DR + 16 + 4 * i}, {sp(sG1)}")
        for i in range(4):
            self.tag(H0 + i, H0 + i, sTA4)
        a(f"global_store_dwordx4 v{vV}, {vr(H0, 4)}, {sp(WS)} sc1\ns_mov_b64 exec, -1")
        self.stamp(10)
        a("s_branch L_exit")

    def helper(self):
        a = self.a
        per_wg = self.code_bytes // 32
        a(f"""L_helper:
        s_getpc_b64 {sp(sCODE)}
        L_pc:
        s_sub_u32 s{sCODE}, s{sCODE}, L_pc-{NAME}_kernel
        s_subb_u32 s{sCODE + 1}, s{sCODE + 1}, 0
        s_mul_i32 s{sT0}, s{sJ}, {per_wg}
        v_lshl_add_u32 v{t2}, v{vL}, {(per_wg // 64).bit_length() - 1}, s{sT0}
        v_min_u32 v{t2}, L_code_end-{NAME}_kernel-4, v{t2}
        global_load_dword v{RK}, v{t2}, {sp(sCODE)}
        s_waitcnt lgkmcnt(0)
        s_cmp_ge_u32 s{sJ}, 16
        s_cbranch_scc1 L_helper_q
        s_load_dword s{sE}, {sp(WS)}, 0
        s_getreg_b32 s{sXCC}, hwreg(HW_REG_XCC_ID, 0, 4)
        s_lshl_b32 s{sT0}, s{sG}, 7
        s_add_u32 s{sT0}, s{sT0}, {WS_HI}
        v_and_b32 v{t0}, 31, v{vL}
        v_lshl_add_u32 v{vB}, v{t0}, 2, s{sT0}
        s_lshl_b32 s{sT1}, s{sJ}, 2
        s_add_u32 s{sT0}, s{sT0}, s{sT1}
        v_mov_b32 v{vC}, s{sT0}
        s_lshl_b32 s{sT0}, s{sG}, 11
        s_lshl_b32 s{sT1}, s{sJ}, 7
        s_add_u32 s{sT0}, s{sT0}, s{sT1}
        s_add_u32 s{sT0}, s{sT0}, {WS_QA}
        v_and_b32 v{t0}, 31, v{vL}
        v_lshl_add_u32 v{t0}, v{t0}, 2, s{sT0}
        s_lshl_b32 s{sT0}, s{sG}, 16
        s_add_u32 s{sT0}, s{sT0}, s{sT1}
        s_add_u32 s{sT0}, s{sT0}, {WS_A1}
        v_lshrrev_b32 v{t1}, 3, v{vL}
        v_lshlrev_b32 v{t1}, 11, v{t1}
        v_and_b32 v{t2}, 7, v{vL}
        v_lshl_add_u32 v{t1}, v{t2}, 4, v{t1}
        v_add_u32 v{t1}, s{sT0}, v{t1}
        s_lshl_b32 s{sT0}, s{sG}, 10
        s_lshl_b32 s{sT1}, s{sJ}, 6
        s_add_u32 s{sT0}, s{sT0}, s{sT1}
        s_add_u32 s{sT0}, s{sT0}, {WS_ML}
        v_lshl_add_u32 v{t2}, v{vN}, 2, s{sT0}
        s_lshl_b32 s{sT0}, s{sG}, 19
        s_lshl_b32 s{sT1}, s{sJ}, 15
        s_add_u32 s{sT0}, s{sT0}, s{sT1}
        v_mov_b32 v{t3}, s{sT0}
        v_mov_b32 v{vA}, 0
        s_barrier
        global_load_dword v{RK + 21}, v{vB}, {sp(WS)} sc1
        global_load_dword v{RK + 1}, v{t0}, {sp(WS)} sc1""")
        for i in range(4):
            a(f"global_load_dwordx4 {vr(RK + 4 + 4 * i, 4)}, v{t1}, {sp(WS)} sc1")
            if i < 3:
                a(f"v_add_u32 v{t1}, 0x4000, v{t1}")
        a(f"""global_load_dword v{RK + 2}, v{t2}, {sp(WS)} sc1
        global_load_dword v{RK + 3}, v{t3}, {sp(WO)}{self.nt}
        global_load_dword v{RK + 20}, v{vA}, {sp(OUT)}
        s_waitcnt lgkmcnt(0)
        s_add_u32 s{sE}, s{sE}, 1
        s_lshl_b32 s{sE}, s{sE}, 4
        s_or_b32 s{sE}, s{sE}, s{sXCC}
        v_mov_b32 v{vD}, s{sE}
        s_mov_b64 exec, 1
        global_store_dword v{vC}, v{vD}, {sp(WS)}
        s_endpgm
        L_helper_q:
        v_mov_b32 v{t0}, {WS_QB}
        v_mov_b32 v{t1}, 0
        v_mov_b32 v{t2}, {512 * 3584 - 4}
        s_barrier
        global_load_dword v{RK + 1}, v{t0}, {sp(WS)} sc1
        global_load_dword v{RK + 2}, v{t1}, {sp(GA)}{self.nt}
        global_load_dword v{RK + 3}, v{t2}, {sp(GA)}{self.nt}
        global_load_dword v{RK + 4}, v{t1}, {sp(UP)}{self.nt}
        global_load_dword v{RK + 5}, v{t2}, {sp(UP)}{self.nt}
        global_load_dword v{RK + 6}, v{t1}, {sp(DN)}{self.nt}
        global_load_dword v{RK + 7}, v{t2}, {sp(DN)}{self.nt}
        s_endpgm""")

    def exit(self):
        a = self.a
        a("L_exit:")
        if self.prof:
            self.stamp(14)
            a(f"""s_memrealtime {sp(ST0 + 32)}
            s_mov_b64 exec, 1
            s_lshl_b32 s{sT0}, s2, 2
            s_add_u32 s{sT0}, s{sT0}, s{sW}
            s_lshl_b32 s{sT0}, s{sT0}, 7
            s_add_u32 s{sT0}, s{sT0}, {WS_ST}
            v_mov_b32 v{t0}, s{sT0}
            s_waitcnt lgkmcnt(0)""")
            for k in range(17):
                a(f"v_mov_b32 v{t1}, s{ST0 + 2 * k}\nglobal_store_dword v{t0}, v{t1}, {sp(WS)} offset:{4 * k}")
            a(f"v_mov_b32 v{t1}, s{sFAST}\nglobal_store_dword v{t0}, v{t1}, {sp(WS)} offset:68")
            a(f"v_mov_b32 v{t1}, s{sQN}\nglobal_store_dword v{t0}, v{t1}, {sp(WS)} offset:72")
            a(f"v_mov_b32 v{t1}, s{sSPIN}\nglobal_store_dword v{t0}, v{t1}, {sp(WS)} offset:76")
            if self.dbgwg >= 0:
                a(f"s_lshl_b32 s{sT0}, s2, 2\ns_add_u32 s{sT0}, s{sT0}, s{sW}\ns_cmp_lg_u32 s{sT0}, {self.dbgwg * 4}\ns_cbranch_scc1 L_end")
                a(f"v_mov_b32 v{t0}, 0")
                for k in range(1, 15):
                    a(f"s_sub_u32 s{sT0}, s{ST0 + 2 * k}, s{ST0}\nv_mov_b32 v{t1}, s{sT0}\nglobal_store_dword v{t0}, v{t1}, {sp(DBG)} offset:{4 * k}")
                a(f"s_sub_u32 s{sT0}, s{ST0 + 32}, s{ST0 + 30}\nv_mov_b32 v{t1}, s{sT0}\nglobal_store_dword v{t0}, v{t1}, {sp(DBG)} offset:0")
                a(f"v_mov_b32 v{t1}, s{sFAST}\nglobal_store_dword v{t0}, v{t1}, {sp(DBG)} offset:60")
        a("L_end:\ns_endpgm")

    def build(self):
        head = open("cdna_kernels/" + NAME + ".s.ref").read().split("; Override launch")[0]
        if self.prof:
            for k in range(17):
                self.a(f"s_mov_b32 s{ST0 + 2 * k}, 0")
        self.prologue()
        self.w_start()
        self.q_start()
        self.attention()
        self.w_tail()
        self.f_tail()
        self.exit()
        self.helper()
        for c in self.cold:
            self.a(c)
        self.a("L_code_end:")
        body = "\n".join(pad(self.L))
        return f"""{head}; @launch grid=(256,1,1) block=(320,1,1) lds={LDS_BYTES}
.amdgcn_target "amdgcn-amd-amdhsa--gfx950"
.text
.globl {NAME}_kernel
.p2align 8
.type {NAME}_kernel,@function
{NAME}_kernel:
{body}
.section .rodata,"a"
.p2align 6
.amdhsa_kernel {NAME}_kernel
  .amdhsa_next_free_vgpr 128
  .amdhsa_next_free_sgpr 102
  .amdhsa_accum_offset 128
  .amdhsa_group_segment_fixed_size 0
  .amdhsa_kernarg_size 96
  .amdhsa_user_sgpr_count 2
  .amdhsa_user_sgpr_kernarg_segment_ptr 1
  .amdhsa_system_sgpr_workgroup_id_x 1
.end_amdhsa_kernel
"""


if __name__ == "__main__":
    out = sys.argv[1]
    kw = {}
    for arg in sys.argv[2:]:
        k, v = arg.split("=")
        kw[k] = int(v)
    open(out, "w").write(Gen(**kw).build())
```

```python
import sys
from asmlib import pad

NAME = "sequential_preLN__sliding_block_cached__swiglu_ffn__decode"

WS_HI, WS_ML, WS_B2A, WS_A1, WS_C, WS_QA, WS_QB, WS_E, WS_ST = 0x1000, 0xA000, 0xC000, 0x10000, 0x90000, 0xD0000, 0xE0000, 0xF0000, 0x100000
L_QS, L_MX, L_LS, L_OV, L_HV, L_CS, L_GU, L_ST, L_QP = 0, 1024, 1088, 1664, 1792, 2048, 2560, 3072, 4096
L_OR, OR_STRIDE, OR_D1 = 4096, 2304, 1024 + 128
L_G, L_U, L_K = 16384, 32768, 16384
LDS_BYTES = 49152

sW, sG, sJ, sE, sXCC, sHX, sFAST = 3, 28, 29, 30, 31, 32, 33
sTA4, sTA2, sTB4, sTH4 = 34, 35, 36, 37
sSLO, sSHI, sPLO, sPHI = 38, 39, 40, 41
sM = [42, 44, 46, 48]
sG1 = 50
sQP = 52
sT0, sT1, sT2, sT3 = 54, 55, 56, 57
sQN, sSPIN = 59, 60
sKB = 14
sA1G, sF, sKQ, sKM = 58, 58, 61, 98
sCODE = 62
ST0 = 64
X, KP, VP, WQ, WO, GA, UP, DN, OUT, DBG, WS = 4, 6, 8, 10, 12, 16, 18, 20, 22, 24, 26

vL, vK, vV, vN, vGp, vSEL, vQ = 0, 1, 2, 3, 4, 5, 6
vA, vB, vC, vD = 7, 8, 9, 10
vHI, vHA = 124, 125
vKD = 120
vF = 126
(aKR, aQW, aQR, aMW, aOW, aOR, aA1, aML, aWO, aMG, aAG, aVW, aVR, aB1, aBG, aB2, aHG, aHB, aHW, aC0, aC1, aHR,
 aOut) = range(132, 155)
aFG, aFD, aTR, aHP, aES, aEG, aCS = aWO, aMG, aAG, aVW, aVR, aB1, aBG
RW, RB = 160, 192
NVGPR = 224
t0, t1, t2, t3 = 12, 13, 14, 15
RK, RV, RA, RD, RP, RX = 16, 48, 80, 96, 104, 112
LOG2E = "0x3fb8aa3b"
DPP = "row_mask:0xf bank_mask:0xf"


def sp(r):
    return f"s[{r}:{r + 1}]"


def vr(r, n):
    return f"v[{r}:{r + n - 1}]"


class Gen:
    def __init__(self, prof=False, nt=True, wv0=0, qa_tries=24, d_a1=0, d_b1=0, d_b2a=0, d_c=36, force_slow=False,
                 code_bytes=16384, prew_sc1=False, dbgwg=-1, wk0=8, qk_wait=7, d_e=0, wo_early=4, early_stamps=0, touch=0, qtouch=1, codepf=1, pc=1, pb2=1, pb1=1, pa1=1, pe=1, gap=0, ctrig=1):
        self.L = []
        self.prof, self.nt, self.wv0, self.qa_tries = prof, " nt" if nt else "", wv0, qa_tries
        self.d_a1, self.d_b1, self.d_b2a, self.d_c = d_a1, d_b1, d_b2a, d_c
        self.force_slow = force_slow
        self.code_bytes = code_bytes
        self.prew_sc1 = prew_sc1
        self.cold = []
        self.ctrig = ctrig
        self.pc, self.pb2, self.pb1, self.pa1, self.pe, self.gap = pc, pb2, pb1, pa1, pe, gap
        self.dbgwg = dbgwg
        self.wk0, self.qk_wait, self.d_e = wk0, qk_wait, d_e
        self.wo_early, self.early_stamps = wo_early, early_stamps
        self.touch, self.qtouch, self.codepf = touch, qtouch, codepf

    def a(self, s):
        for ln in s.strip("\n").split("\n"):
            ln = ln.strip()
            if ln:
                self.L.append(ln if ln.endswith(":") or ln.startswith(".") or ln.startswith(";") else "  " + ln)

    def stamp(self, k, early=False):
        if self.early_stamps and k in (11, 12, 13) and not early:
            return
        if self.prof == 1:
            self.a(f"s_memtime {sp(ST0 + 2 * k)}")

    def sleep(self, n):
        if n:
            self.a(f"s_sleep {n}")

    def spin(self):
        self.a(f"s_sub_u32 s{sSPIN}, s{sSPIN}, 1\ns_cbranch_scc1 L_exit")

    def check4(self, r, tag, dst="vcc"):
        self.a(f"""v_perm_b32 v{t0}, v{r + 1}, v{r}, s{sSLO}
        v_perm_b32 v{t1}, v{r + 3}, v{r + 2}, s{sSHI}
        v_or_b32 v{t0}, v{t0}, v{t1}
        v_cmp_ne_u32 {dst}, s{tag}, v{t0}""")

    def check2(self, r):
        self.a(f"v_perm_b32 v{t0}, v{r + 1}, v{r}, s{sSLO}\nv_cmp_ne_u32 vcc, s{sTA2}, v{t0}")

    def untag(self, r, n):
        for i in range(n):
            self.a(f"v_and_b32 v{r + i}, 0xffffff00, v{r + i}")

    def tag(self, dst, src, tag):
        self.a(f"v_perm_b32 v{dst}, v{src}, s{tag}, v{vSEL}")

    def pub(self, name, store):
        self.a(f"s_cmp_eq_u32 s{sFAST}, 0\ns_cbranch_scc1 L_slow_{name}\n{store}\nL_back_{name}:")
        self.cold.append(f"L_slow_{name}:\n{store} sc1\ns_branch L_back_{name}")

    def poll(self, name, loads, tag, dst, depth, slots, primed=False):
        a, n = self.a, len(loads)

        def issue(k):
            for i, ld in enumerate(loads):
                a(ld.format(vr(slots[k] + 4 * i, 4)))

        def test(k, younger):
            for i in range(n):
                a(f"s_waitcnt vmcnt({younger + n - 1 - i})")
                self.check4(slots[k] + 4 * i, tag, "vcc" if i == n - 1 else sp(sT2))
                for e in range(4):
                    a(f"v_and_b32 v{dst + 4 * i + e}, 0xffffff00, v{slots[k] + 4 * i + e}")
            if n > 1:
                a(f"s_or_b64 vcc, vcc, {sp(sT2)}")
        if depth == 1:
            if primed:
                a(f"s_branch L_{name}_w")
            a(f"L_{name}:")
            issue(0)
            self.spin()
            if primed:
                a(f"L_{name}_w:")
            test(0, 0)
            a(f"s_cbranch_vccnz L_{name}")
            return
        for k in range(1 if primed else 0, depth - 1):
            issue(k)
            self.sleep(self.gap)
        a(f"L_{name}:")
        for k in range(depth):
            issue((k + depth - 1) % depth)
            if k == 0:
                self.spin()
            test(k, (depth - 1) * n)
            a(f"s_cbranch_vccz L_{name}_ok" if k < depth - 1 else f"s_cbranch_vccnz L_{name}")
        a(f"L_{name}_ok:")

    def bf16r(self, dst, src):
        self.a(f"v_cvt_pk_bf16_f32 v{dst}, v{src}, v{src}\nv_and_b32 v{dst}, 0xffff0000, v{dst}")

    def allred(self, r, op, rors=(8, 4, 2, 1), tmp=t3):
        for k in rors:
            self.a(f"{op}_dpp v{r}, v{r}, v{r} row_ror:{k} {DPP}")
        for sw in ("v_permlane16_swap_b32", "v_permlane32_swap_b32"):
            self.a(f"v_mov_b32 v{tmp}, v{r}\n{sw} v{r}, v{tmp}\n{op} v{r}, v{r}, v{tmp}")

    def rs4(self, r):
        self.a(f"""v_permlane32_swap_b32 v{r}, v{r + 2}
        v_permlane32_swap_b32 v{r + 1}, v{r + 3}
        v_add_f32 v{r}, v{r}, v{r + 2}
        v_add_f32 v{r + 1}, v{r + 1}, v{r + 3}
        v_permlane16_swap_b32 v{r}, v{r + 1}
        v_add_f32 v{r}, v{r}, v{r + 1}""")

    def ln_scale(self, mean, var, tmp):
        self.a(f"v_cvt_pk_bf16_f32 v{tmp}, v{mean}, v{var}")
        self.a(f"v_lshlrev_b32 v{mean}, 16, v{tmp}\nv_and_b32 v{var}, 0xffff0000, v{tmp}")
        self.a(f"v_add_f32 v{var}, 0x3727c5ac, v{var}")
        self.bf16r(var, var)
        self.a(f"v_sqrt_f32 v{var}, v{var}")
        self.bf16r(var, var)

    def perm_pair(self, src0, src1, dst, stride, slot):
        for dd in range(4):
            self.a(f"v_perm_b32 v{dst + stride * (2 * dd) + slot}, v{src1 + dd}, v{src0 + dd}, s{sPLO}")
            self.a(f"v_perm_b32 v{dst + stride * (2 * dd + 1) + slot}, v{src1 + dd}, v{src0 + dd}, s{sPHI}")

    def consts(self):
        self.a(f"""s_mov_b32 s{sSLO}, 0x0c0c0400
        s_mov_b32 s{sSHI}, 0x04000c0c
        s_mov_b32 s{sPLO}, 0x05040100
        s_mov_b32 s{sPHI}, 0x07060302
        s_mov_b32 s{sM[0]}, 0x11111111
        s_mov_b32 s{sM[0] + 1}, 0x11111111
        s_lshl_b64 {sp(sM[1])}, {sp(sM[0])}, 1
        s_lshl_b64 {sp(sM[2])}, {sp(sM[0])}, 2
        s_lshl_b64 {sp(sM[3])}, {sp(sM[0])}, 3
        s_mov_b32 s{sG1}, 0xffff0000
        s_mov_b32 s{sG1 + 1}, 0xffff0000
        s_mov_b32 s{sSPIN}, 0x20000
        s_mov_b32 s{sQN}, 0
        v_mov_b32 v{vSEL}, 0x07060500
        s_getreg_b32 s{sXCC}, hwreg(HW_REG_XCC_ID, 0, 4)
        s_lshl_b32 s{sT0}, s{sG}, 7
        s_add_u32 s{sT0}, s{sT0}, {WS_HI}
        v_lshl_add_u32 v{vHA}, v{vN}, 2, s{sT0}
        s_lshl_b32 s{sT0}, s{sG}, 13
        s_lshl_b32 s{sT1}, s{sW}, 10
        s_add_u32 s{sT0}, s{sT0}, s{sT1}
        s_add_u32 s{sT0}, s{sT0}, {WS_QA + 2048}
        v_lshl_add_u32 v{vQ}, v{vL}, 4, s{sT0}
        s_mov_b64 {sp(sQP)}, {sp(WS)}""")

    def addr_att(self):
        self.a(f"""v_xor_b32 v{t0}, v{vN}, v{vGp}
        v_lshlrev_b32 v{t0}, 4, v{t0}
        v_lshl_add_u32 v{t0}, v{vN}, 8, v{t0}
        s_lshl_b32 s{sT0}, s{sW}, 13
        v_add_u32 v{aKR}, s{sT0}, v{t0}
        s_lshl_b32 s{sT0}, s{sW}, 8
        v_lshl_add_u32 v{aQW}, v{vL}, 2, s{sT0}
        v_lshrrev_b32 v{t0}, 2, v{vN}
        v_lshlrev_b32 v{t1}, 8, v{t0}
        v_lshl_add_u32 v{aQR}, v{vGp}, 4, v{t1}
        s_lshl_b32 s{sT1}, s{sW}, 3
        v_lshl_add_u32 v{aMW}, v{t0}, 5, s{sT1}
        s_mul_i32 s{sT1}, s{sW}, {OR_STRIDE}
        v_lshl_add_u32 v{aOW}, v{vL}, 4, s{sT1}
        v_lshrrev_b32 v{t0}, 2, v{vL}
        v_lshl_add_u32 v{aOR}, v{t0}, 4, s{sT0}
        v_bfe_u32 v{t0}, v{vL}, 1, 1
        v_mul_u32_u24 v{t0}, {OR_D1}, v{t0}
        v_add_u32 v{aOR}, v{t0}, v{aOR}
        v_and_b32 v{t0}, 1, v{vL}
        v_lshl_add_u32 v{aOR}, v{t0}, 3, v{aOR}
        s_lshl_b32 s{sT0}, s{sG}, 16
        s_lshl_b32 s{sT1}, s{sJ}, 11
        s_add_u32 s{sT0}, s{sT0}, s{sT1}
        s_lshl_b32 s{sT1}, s{sW}, 9
        s_add_u32 s{sT0}, s{sT0}, s{sT1}
        s_add_u32 s{sT0}, s{sT0}, {WS_A1}
        v_lshl_add_u32 v{aA1}, v{vL}, 3, s{sT0}
        s_lshl_b32 s{sT0}, s{sG}, 10
        s_lshl_b32 s{sT1}, s{sJ}, 5
        s_add_u32 s{sT0}, s{sT0}, s{sT1}
        s_lshl_b32 s{sT1}, s{sW}, 3
        s_add_u32 s{sT0}, s{sT0}, s{sT1}
        s_add_u32 s{sT0}, s{sT0}, {WS_ML}
        v_mov_b32 v{aML}, s{sT0}""")

    def addr_w(self):
        self.a(f"""s_lshl_b32 s{sT0}, s{sG}, 19
        s_lshl_b32 s{sT1}, s{sJ}, 15
        s_add_u32 s{sT0}, s{sT0}, s{sT1}
        s_lshl_b32 s{sT1}, s{sW}, 8
        s_add_u32 s{sT0}, s{sT0}, s{sT1}
        s_add_u32 s{sT0}, s{sT0}, 4096
        v_lshlrev_b32 v{t0}, 13, v{vGp}
        v_lshl_add_u32 v{t0}, v{vN}, 4, v{t0}
        v_add_u32 v{aWO}, s{sT0}, v{t0}
        v_lshrrev_b32 v{t0}, 1, v{vL}
        s_lshl_b32 s{sT0}, s{sG}, 10
        s_lshr_b32 s{sT1}, s{sJ}, 2
        s_lshl_b32 s{sT1}, s{sT1}, 3
        s_add_u32 s{sT0}, s{sT0}, s{sT1}
        s_add_u32 s{sT0}, s{sT0}, {WS_ML}
        v_lshl_add_u32 v{aMG}, v{t0}, 5, s{sT0}
        s_lshl_b32 s{sA1G}, s{sG}, 16
        s_add_u32 s{sA1G}, s{sA1G}, {WS_A1}
        s_lshl_b32 s{sT1}, s{sJ}, 7
        s_add_u32 s{sT2}, s{sA1G}, s{sT1}
        s_lshl_b32 s{sT1}, s{sW}, 5
        s_add_u32 s{sT0}, s{sT2}, s{sT1}
        v_lshlrev_b32 v{aAG}, 11, v{t0}
        v_and_b32 v{t1}, 1, v{vL}
        v_lshl_add_u32 v{aAG}, v{t1}, 4, v{aAG}
        v_add_u32 v{aAG}, s{sT0}, v{aAG}
        v_lshlrev_b32 v{aVW}, 3, v{t1}
        v_lshl_add_u32 v{aVW}, v{vGp}, 1, v{aVW}
        s_lshl_b32 s{sT1}, s{sW}, 4
        v_add_u32 v{aVW}, s{sT1}, v{aVW}
        v_lshlrev_b32 v{aVR}, 4, v{vGp}
        v_lshrrev_b32 v{t0}, 2, v{vN}
        v_lshlrev_b32 v{aB1}, 11, v{t0}
        v_and_b32 v{t0}, 3, v{vN}
        v_lshl_add_u32 v{aB1}, v{t0}, 5, v{aB1}
        v_and_b32 v{t0}, 1, v{vGp}
        v_lshl_add_u32 v{aB1}, v{t0}, 4, v{aB1}
        s_lshl_b32 s{sT1}, s{sW}, 13
        s_add_u32 s{sT0}, s{sT2}, s{sT1}
        v_add_u32 v{aB1}, s{sT0}, v{aB1}
        s_add_u32 s{sT2}, s{sT2}, {16 * 2048}
        v_lshl_add_u32 v{aHB}, v{vD}, 2, s{sT2}
        v_lshlrev_b32 v{aHW}, 2, v{vD}
        s_lshl_b32 s{sT1}, s{sJ}, 11
        s_add_u32 s{sT0}, s{sA1G}, s{sT1}
        v_lshl_add_u32 v{aBG}, v{vL}, 4, s{sT0}
        v_and_b32 v{t0}, 7, v{vL}
        v_lshlrev_b32 v{aB2}, 2, v{t0}
        v_lshl_add_u32 v{aB2}, v{vGp}, 5, v{aB2}
        s_lshl_b32 s{sT0}, s{sG}, 11
        s_lshl_b32 s{sT1}, s{sJ}, 7
        s_add_u32 s{sT1}, s{sT1}, {WS_B2A}
        s_add_u32 s{sT0}, s{sT0}, s{sT1}
        v_add_u32 v{aB2}, s{sT0}, v{aB2}
        v_lshrrev_b32 v{aHG}, 3, v{vL}
        v_lshlrev_b32 v{aHG}, 11, v{aHG}
        v_lshl_add_u32 v{aHG}, v{t0}, 4, v{aHG}
        v_add_u32 v{aHG}, s{sT1}, v{aHG}
        s_lshl_b32 s{sT0}, s{sG}, 9
        s_lshl_b32 s{sT1}, s{sJ}, 5
        s_add_u32 s{sT0}, s{sT0}, s{sT1}
        s_lshl_b32 s{sT1}, s{sW}, 4
        s_add_u32 s{sT0}, s{sT0}, s{sT1}
        s_add_u32 s{sT0}, s{sT0}, {WS_C}
        v_lshlrev_b32 v{aC0}, 11, v{vL}
        v_add_u32 v{aC0}, s{sT0}, v{aC0}
        v_min_u32 v{aC1}, 47, v{vL}
        v_lshlrev_b32 v{aC1}, 11, v{aC1}
        s_add_u32 s{sT0}, s{sT0}, {64 * 2048}
        v_add_u32 v{aC1}, s{sT0}, v{aC1}
        s_lshl_b32 s{sT0}, s{sG}, 3
        s_lshl_b32 s{sT1}, s{sW}, 2
        s_add_u32 s{sT0}, s{sT0}, s{sT1}
        v_add_u32 v{t2}, s{sT0}, v{vGp}
        v_lshlrev_b32 v{aHR}, 2, v{t2}
        s_lshl_b32 s{sT1}, s{sJ}, 6
        v_lshl_add_u32 v{aOut}, v{t2}, 1, s{sT1}""")

    def addr_f(self):
        self.a(f"""s_lshl_b32 s{sF}, s{sG}, 4
        s_add_u32 s{sF}, s{sF}, s{sJ}
        s_sub_u32 s{sF}, s{sF}, 16
        s_and_b32 s{sKQ}, s{sF}, 3
        s_lshl_b32 s{sT0}, s{sKQ}, 2
        s_add_u32 s{sT0}, s{sT0}, s{sW}
        s_mul_i32 s{sT0}, s{sT0}, {32 * 3584}
        s_lshr_b32 s{sT1}, s{sF}, 2
        s_lshl_b32 s{sT1}, s{sT1}, 7
        s_add_u32 s{sT0}, s{sT0}, s{sT1}
        v_lshrrev_b32 v{t0}, 3, v{vL}
        v_mul_u32_u24 v{t0}, 3584, v{t0}
        v_and_b32 v{t1}, 7, v{vL}
        v_lshl_add_u32 v{t0}, v{t1}, 4, v{t0}
        v_add_u32 v{aFG}, s{sT0}, v{t0}
        s_lshl_b32 s{sT0}, s{sF}, 14
        s_lshl_b32 s{sT1}, s{sW}, 8
        s_add_u32 s{sT0}, s{sT0}, s{sT1}
        v_lshlrev_b32 v{t0}, 12, v{vGp}
        v_lshl_add_u32 v{t0}, v{vN}, 4, v{t0}
        v_add_u32 v{aFD}, s{sT0}, v{t0}
        v_lshrrev_b32 v{t0}, 2, v{vN}
        v_and_b32 v{t1}, 3, v{vL}
        v_lshlrev_b32 v{aTR}, 11, v{vGp}
        v_lshl_add_u32 v{aTR}, v{t0}, 7, v{aTR}
        v_lshl_add_u32 v{aTR}, v{t1}, 3, v{aTR}
        s_lshl_b32 s{sT0}, s{sW}, 5
        v_add_u32 v{aTR}, s{sT0}, v{aTR}
        v_lshlrev_b32 v{aHP}, 9, v{t0}
        v_lshl_add_u32 v{aHP}, v{vGp}, 6, v{aHP}
        v_lshl_add_u32 v{aHP}, v{t1}, 4, v{aHP}
        s_lshl_b32 s{sT0}, s{sG}, 16
        s_add_u32 s{sT0}, s{sT0}, {WS_A1 + 16 * 2048}
        v_add_u32 v{aHP}, s{sT0}, v{aHP}
        s_and_b32 s{sT0}, s{sF}, 0xfc
        s_add_u32 s{sT0}, s{sT0}, s{sW}
        s_lshl_b32 s{sT0}, s{sT0}, 9
        s_lshl_b32 s{sT1}, s{sKQ}, 3
        s_add_u32 s{sT0}, s{sT0}, s{sT1}
        s_add_u32 s{sT0}, s{sT0}, {WS_E}
        v_lshl_add_u32 v{aES}, v{vN}, 5, s{sT0}
        s_lshl_b32 s{sT0}, s{sF}, 9
        s_add_u32 s{sT0}, s{sT0}, {WS_E}
        v_lshrrev_b32 v{t2}, 2, v{vL}
        v_lshl_add_u32 v{aEG}, v{t2}, 5, s{sT0}
        v_and_b32 v{t2}, 1, v{vL}
        v_lshl_add_u32 v{aEG}, v{t2}, 4, v{aEG}
        v_lshlrev_b32 v{aCS}, 9, v{t1}
        v_lshl_add_u32 v{aCS}, v{t0}, 5, v{aCS}
        v_and_b32 v{t1}, 1, v{vGp}
        v_lshl_add_u32 v{aCS}, v{t1}, 4, v{aCS}
        s_lshl_b32 s{sT0}, s{sF}, 11
        s_lshl_b32 s{sT1}, s{sW}, 7
        s_add_u32 s{sT0}, s{sT0}, s{sT1}
        s_add_u32 s{sT0}, s{sT0}, {WS_C}
        v_add_u32 v{aCS}, s{sT0}, v{aCS}
        s_lshl_b32 s{sT0}, s{sKQ}, 4
        s_mov_b64 {sp(sKM)}, 0xffff
        s_lshl_b64 {sp(sKM)}, {sp(sKM)}, s{sT0}""")
        for r in range(aB2, aOut + 1):
            self.a(f"v_mov_b32 v{r}, 0")

    def tags(self):
        self.a(f"""s_add_u32 s{sE}, s{sE}, 1
        s_and_b32 s{sT0}, s{sE}, 0xff
        s_mul_i32 s{sTA4}, s{sT0}, 0x01010101
        s_and_b32 s{sTA2}, s{sTA4}, 0xffff
        s_xor_b32 s{sTB4}, s{sTA4}, 0x40404040
        s_xor_b32 s{sTH4}, s{sTA4}, 0x80808080
        s_lshl_b32 s{sHX}, s{sE}, 4
        s_or_b32 s{sHX}, s{sHX}, s{sXCC}""")

    def census_load(self, off):
        self.a(f"global_load_dword v{vHI}, v{vHA}, {sp(WS)} offset:{off} sc1")

    def census_eval(self):
        if self.force_slow:
            self.a(f"s_mov_b32 s{sFAST}, 0")
        else:
            self.a(f"v_cmp_ne_u32 vcc, s{sHX}, v{vHI}\ns_cmp_eq_u64 vcc, 0\ns_cselect_b32 s{sFAST}, 1, 0")

    def kload(self, i):
        if i % 4 == 0:
            self.a(f"s_add_u32 m0, s{sT3}, {L_K + 1024 * i}")
        self.a(f"global_load_lds_dwordx4 v{vKD + i % 4}, {sp(KP if i < 4 else sKB)} offset:{1024 * (i % 4)}{self.nt}")

    def kloads(self, lo=0, hi=8):
        if lo == 0:
            self.a(f"s_lshl_b32 s{sT3}, s{sW}, 13\ns_add_u32 s{sKB}, s{KP}, 4096\ns_addc_u32 s{sKB + 1}, s{KP + 1}, 0")
        for i in range(lo, hi):
            self.kload(i)

    def kreads(self):
        for s in range(4):
            if s:
                self.a(f"v_xor_b32 v{t1}, {64 * s}, v{aKR}")
            for tau in range(2):
                self.a(f"ds_read_b128 {vr(RK + 16 * tau + 4 * s, 4)}, v{t1 if s else aKR} offset:{L_K + 4096 * tau}")

    def qloads(self, base):
        self.a(f"global_load_dwordx4 {vr(RX, 4)}, v{vQ}, {sp(base)} offset:-2048 sc1")
        self.a(f"global_load_dwordx4 {vr(RX + 4, 4)}, v{vQ}, {sp(base)} offset:2048 sc1")

    def qcheck(self):
        self.a(f"""v_xor_b32 v{t0}, s{sE}, v{RX + 1}
        v_xor_b32 v{t1}, s{sE}, v{RX + 3}
        v_xor_b32 v{t2}, s{sE}, v{RX + 5}
        v_xor_b32 v{t3}, s{sE}, v{RX + 7}
        v_or3_b32 v{t0}, v{t0}, v{t1}, v{t2}
        v_or_b32 v{t0}, v{t0}, v{t3}
        v_cmp_ne_u32 vcc, 0, v{t0}""")

    def vload(self, jj):
        off = (jj * 256 if jj < 4 else 4096 + (jj - 4) * 256) - 2048
        self.a(f"global_load_dwordx4 {vr(RV + 4 * jj, 4)}, v{vV}, {sp(VP)} offset:{off}{self.nt}")

    def prologue(self):
        a = self.a
        if self.prof:
            a(f"s_memrealtime {sp(ST0 + 30)}")
        self.stamp(0)
        a(f"""s_cmpk_ge_u32 s2, 0x100
        s_cbranch_scc1 L_end
        s_load_dwordx16 s[4:19], s[0:1], 0
        s_load_dwordx8 s[20:27], s[0:1], 64
        v_lshrrev_b32 v{t0}, 6, v0
        v_and_b32 v{vL}, 63, v0
        v_readfirstlane_b32 s{sW}, v{t0}
        s_and_b32 s{sG}, s2, 7
        s_lshr_b32 s{sJ}, s2, 3
        v_and_b32 v{vN}, 15, v{vL}
        v_lshrrev_b32 v{vGp}, 4, v{vL}
        s_lshl_b32 s{sT0}, s{sG}, 24
        s_lshl_b32 s{sT1}, s{sJ}, 15
        s_add_u32 s{sT0}, s{sT0}, s{sT1}
        s_lshl_b32 s{sT1}, s{sW}, 13
        s_add_u32 s{sT0}, s{sT0}, s{sT1}
        s_add_u32 s{sT0}, s{sT0}, {0xF00000 + 2048}
        v_xor_b32 v{t0}, v{vN}, v{vGp}
        v_lshlrev_b32 v{t0}, 4, v{t0}
        v_lshl_add_u32 v{t0}, v{vGp}, 8, v{t0}
        s_sub_u32 s{sT1}, s{sT0}, 2048
        v_add_u32 v{vKD}, s{sT1}, v{t0}
        v_xor_b32 v{vKD + 1}, 64, v{vKD}
        v_xor_b32 v{vKD + 2}, 128, v{vKD}
        v_xor_b32 v{vKD + 3}, 192, v{vKD}
        v_lshlrev_b32 v{vV}, 10, v{vGp}
        v_lshl_add_u32 v{vV}, v{vN}, 4, v{vV}
        v_add_u32 v{vV}, s{sT0}, v{vV}
        s_cmp_eq_u32 s{sW}, 4
        s_cbranch_scc1 L_helper
        s_cmp_ge_u32 s{sJ}, 16
        s_cbranch_scc1 L_q_start""")

    def w_start(self, part):
        a = self.a
        if part == 0:
            a("s_waitcnt lgkmcnt(0)")
            if self.early_stamps:
                self.stamp(11, True)
            self.kloads(0, self.wk0)
            if self.early_stamps:
                self.stamp(12, True)
            a(f"s_load_dword s{sE}, {sp(WS)}, 0\ns_branch L_w_rest")
            return
        a("L_w_rest:\ns_barrier")
        self.stamp(1)
        a(f"""v_and_b32 v{t0}, 1, v{vL}
        v_lshlrev_b32 v{vD}, 4, v{t0}
        v_lshl_add_u32 v{vD}, v{vGp}, 2, v{vD}
        v_bfe_u32 v{t0}, v{vL}, 2, 1
        v_lshl_add_u32 v{vD}, v{t0}, 1, v{vD}
        v_bfe_u32 v{t0}, v{vL}, 1, 1
        v_add_u32 v{vD}, v{t0}, v{vD}
        s_lshl_b32 s{sT0}, s{sJ}, 6
        v_lshl_add_u32 v{t0}, v{vD}, 1, s{sT0}
        global_load_ushort v11, v{t0}, {sp(X)}""")
        for i in range(self.wv0):
            self.vload(i)
        self.consts()
        self.addr_att()
        self.addr_w()
        for i in range(self.wk0, 8):
            a(f"s_waitcnt vmcnt({self.wk0})")
            self.kload(i)
        for i in range(self.wv0, 8):
            a(f"s_waitcnt vmcnt({self.wk0 + self.wv0})")
            self.vload(i)
        self.stamp(2)
        a("s_waitcnt lgkmcnt(0)")
        self.tags()
        a("s_waitcnt vmcnt(0)")
        self.stamp(3)
        self.kreads()
        for p in range(4):
            self.perm_pair(RV + 8 * p, RV + 8 * p + 4, RB, 4, p)

    def q_start(self, part):
        a = self.a
        XA, XB, XF, ACC, XN = RA, RA + 4, RA + 8, RK, RD
        if part == 0:
            self.q_issue(XA, XB)
            return
        self.q_rest(XA, XB, XF, ACC, XN)

    def q_issue(self, XA, XB):
        a = self.a
        a("L_q_start:")
        a(f"""v_lshlrev_b32 v{t0}, 4, v{vL}
        v_lshrrev_b32 v{t2}, 3, v{vL}
        s_and_b32 s{sT2}, s{sJ}, 1
        s_lshl_b32 s{sT2}, s{sT2}, 2
        s_add_u32 s{sT2}, s{sT2}, s{sW}
        s_lshl_b32 s{sT0}, s{sT2}, 7
        v_lshl_add_u32 v{t1}, v{t2}, 4, s{sT0}
        s_lshl_b32 s{sT0}, s{sT2}, 19
        s_lshl_b32 s{sT1}, s{sG}, 10
        s_add_u32 s{sT0}, s{sT0}, s{sT1}
        s_bfe_u32 s{sT1}, s{sJ}, 0x30001
        s_lshl_b32 s{sT1}, s{sT1}, 7
        s_add_u32 s{sT0}, s{sT0}, s{sT1}
        v_lshlrev_b32 v{t2}, 16, v{t2}
        v_and_b32 v{t3}, 7, v{vL}
        v_lshl_add_u32 v{t2}, v{t3}, 4, v{t2}
        v_add_u32 v{t2}, s{sT0}, v{t2}
        s_waitcnt lgkmcnt(0)""")
        if self.early_stamps:
            self.stamp(11, True)
        a(f"""global_load_dwordx4 {vr(XA, 4)}, v{t0}, {sp(X)}
        global_load_dwordx4 {vr(XB, 4)}, v{t1}, {sp(X)}""")
        for i in range(8):
            a(f"global_load_dwordx4 {vr(RV + 4 * i, 4)}, v{t2}, {sp(WQ)}{self.nt}")
            if i < 7:
                a(f"v_add_u32 v{t2}, 0x2000, v{t2}")
        if self.early_stamps:
            self.stamp(12, True)
        a(f"s_load_dword s{sE}, {sp(WS)}, 0\ns_branch L_q_rest")

    def q_rest(self, XA, XB, XF, ACC, XN):
        a = self.a
        a("L_q_rest:\ns_barrier")
        self.stamp(1)
        self.consts()
        self.addr_att()
        self.addr_f()
        a("s_waitcnt vmcnt(8)")
        for i in range(4):
            a(f"v_lshlrev_b32 v{XF + 2 * i}, 16, v{XA + i}\nv_and_b32 v{XF + 2 * i + 1}, 0xffff0000, v{XA + i}")
        a(f"v_add_f32 v{t0}, v{XF}, v{XF + 1}")
        for i in range(2, 8):
            a(f"v_add_f32 v{t0}, v{t0}, v{XF + i}")
        self.allred(t0, "v_add_f32")
        a(f"v_mul_f32 v{t0}, 0x3b000000, v{t0}")
        for i in range(8):
            a(f"v_sub_f32 v{XF + i}, v{XF + i}, v{t0}")
        a(f"v_mul_f32 v{t1}, v{XF}, v{XF}")
        for i in range(1, 8):
            a(f"v_fmac_f32 v{t1}, v{XF + i}, v{XF + i}")
        self.allred(t1, "v_add_f32")
        a(f"v_mul_f32 v{t1}, 0x3b000000, v{t1}")
        self.ln_scale(t0, t1, t2)
        a(f"""v_rcp_f32 v{t2}, v{t1}
        v_fma_f32 v{t3}, -v{t1}, v{t2}, 1.0
        v_fmac_f32 v{t2}, v{t3}, v{t2}""")
        for i in range(4):
            a(f"v_lshlrev_b32 v{XF + 2 * i}, 16, v{XB + i}\nv_and_b32 v{XF + 2 * i + 1}, 0xffff0000, v{XB + i}")
        for i in range(8):
            a(f"v_sub_f32 v{XF + i}, v{XF + i}, v{t0}")
        for i in range(4):
            a(f"v_cvt_pk_bf16_f32 v{XB + i}, v{XF + 2 * i}, v{XF + 2 * i + 1}")
        for i in range(4):
            a(f"v_lshlrev_b32 v{XF + 2 * i}, 16, v{XB + i}\nv_and_b32 v{XF + 2 * i + 1}, 0xffff0000, v{XB + i}")
        for i in range(8):
            a(f"""v_mul_f32 v{ACC + i}, v{XF + i}, v{t2}
            v_fma_f32 v{XF + i}, -v{ACC + i}, v{t1}, v{XF + i}
            v_fmac_f32 v{ACC + i}, v{XF + i}, v{t2}""")
        for i in range(4):
            a(f"v_cvt_pk_bf16_f32 v{XN + i}, v{ACC + 2 * i}, v{ACC + 2 * i + 1}")
        for i in range(8):
            a(f"v_mov_b32 v{ACC + i}, 0")
        a(f"""v_and_b32 v{t0}, 7, v{vL}
        v_lshlrev_b32 v{t0}, 7, v{t0}
        v_lshl_add_u32 v{t0}, v{vGp}, 5, v{t0}
        s_lshl_b32 s{sT0}, s{sW}, 2
        s_add_u32 s{sT0}, s{sT0}, {L_QP}
        v_add_u32 v{vA}, s{sT0}, v{t0}
        v_lshlrev_b32 v{vB}, 4, v{vL}
        s_lshl_b32 s{sT0}, s{sG}, 13
        s_and_b32 s{sT1}, s{sJ}, 1
        s_lshl_b32 s{sT1}, s{sT1}, 12
        s_add_u32 s{sT0}, s{sT0}, s{sT1}
        s_bfe_u32 s{sT1}, s{sJ}, 0x30001
        s_lshl_b32 s{sT1}, s{sT1}, 9
        s_add_u32 s{sT0}, s{sT0}, s{sT1}
        s_add_u32 s{sT0}, s{sT0}, {WS_QA}
        v_lshl_add_u32 v{vC}, v{vL}, 3, s{sT0}""")
        a("s_waitcnt lgkmcnt(0)")
        self.tags()
        PR = RK + 8
        for p in range(4):
            a(f"s_waitcnt vmcnt({6 - 2 * p})")
            if p == 3:
                self.stamp(2)
            self.perm_pair(RV + 8 * p, RV + 8 * p + 4, PR, 1, 0)
            for t in range(8):
                a(f"v_dot2c_f32_bf16 v{ACC + t}, v{PR + t}, v{XN + p}")
        for t in range(4):
            a(f"v_permlane32_swap_b32 v{ACC + t}, v{ACC + t + 4}")
        for t in range(4):
            a(f"v_add_f32 v{ACC + t}, v{ACC + t}, v{ACC + t + 4}")
        for t in range(2):
            a(f"v_permlane16_swap_b32 v{ACC + t}, v{ACC + t + 2}")
        for t in range(2):
            a(f"v_add_f32 v{ACC + t}, v{ACC + t}, v{ACC + t + 2}")
        for t in range(2):
            a(f"v_add_f32_dpp v{ACC + t}, v{ACC + t}, v{ACC + t} row_ror:8 {DPP}")
        a(f"""s_mov_b32 exec_lo, 0x00ff00ff
        s_mov_b32 exec_hi, 0x00ff00ff
        ds_write2_b32 v{vA}, v{ACC}, v{ACC + 1} offset0:0 offset1:4
        s_mov_b64 exec, -1
        s_waitcnt lgkmcnt(0)
        s_barrier
        s_cmp_lg_u32 s{sW}, 0
        s_cbranch_scc1 L_q_pubdone
        ds_read_b128 {vr(ACC, 4)}, v{vB} offset:{L_QP}
        s_waitcnt lgkmcnt(0)
        v_add_f32 v{ACC}, v{ACC}, v{ACC + 1}
        v_add_f32 v{ACC + 2}, v{ACC + 2}, v{ACC + 3}
        v_mov_b32 v{ACC + 1}, s{sE}
        v_add_f32 v{ACC}, v{ACC}, v{ACC + 2}
        s_lshl_b32 s{sT0}, s{sG}, 7
        s_lshl_b32 s{sT1}, s{sJ}, 2
        s_add_u32 s{sT0}, s{sT0}, s{sT1}
        s_add_u32 s{sT0}, s{sT0}, {WS_HI}
        global_store_dwordx2 v{vC}, {vr(ACC, 2)}, {sp(WS)}
        v_add_u32 v{vC}, {WS_QB - WS_QA}, v{vC}
        v_mov_b32 v{t0}, s{sT0}
        v_mov_b32 v{t1}, s{sHX}
        global_store_dwordx2 v{vC}, {vr(ACC, 2)}, {sp(WS)} sc1
        s_mov_b64 exec, 1
        global_store_dword v{t0}, v{t1}, {sp(WS)}
        s_mov_b64 exec, -1
        L_q_pubdone:
        s_barrier""")
        self.stamp(3)
        self.kloads()
        a(f"s_cmp_lg_u32 s{sW}, 0\ns_cbranch_scc1 L_q_k0\ns_waitcnt vmcnt({self.qk_wait})\nL_q_k0:\ns_barrier")
        self.qloads(WS)
        self.census_load(0)
        a("s_barrier")
        for jj in range(8):
            self.vload(jj)
        a("s_waitcnt vmcnt(11)")
        self.kreads()
        a("s_waitcnt vmcnt(8)")
        self.qcheck()
        a("s_cbranch_vccz L_qok_q")

    def wo_load(self, jj):
        self.a(f"global_load_dwordx4 {vr(RW + 4 * jj, 4)}, v{aWO}, {sp(WO)} offset:{1024 * jj - 4096}{self.nt}")

    def attention(self, role):
        a = self.a
        q = role == "q"
        B = RK if q else RB
        a(f"L_qpoll_{role}:")
        self.qloads(sQP)
        self.census_load(0)
        self.spin()
        a(f"""s_add_u32 s{sQN}, s{sQN}, 1
        s_cmp_eq_u32 s{sQN}, {self.qa_tries}
        s_cselect_b32 s{sT0}, {WS_QB - WS_QA}, 0
        s_add_u32 s{sQP}, s{sQP}, s{sT0}
        s_addc_u32 s{sQP + 1}, s{sQP + 1}, 0
        s_waitcnt vmcnt(0)""")
        self.qcheck()
        a(f"s_cbranch_vccnz L_qpoll_{role}\nL_qok_{role}:")
        self.stamp(4)
        a(f"""v_add_f32 v{t0}, v{RX}, v{RX + 4}
        v_add_f32 v{t1}, v{RX + 2}, v{RX + 6}
        v_cvt_pk_bf16_f32 v{t0}, v{t0}, v{t1}
        ds_write_b32 v{aQW}, v{t0} offset:{L_QS}
        s_waitcnt lgkmcnt(0)
        s_barrier""")
        for s in range(4):
            a(f"ds_read_b128 {vr(RA + 4 * s, 4)}, v{aQR} offset:{L_QS + 64 * s}")
        if not q:
            for jj in range(self.wo_early):
                self.wo_load(jj)
        self.census_eval()
        for s in range(4):
            a(f"s_waitcnt lgkmcnt({3 - s})")
            for tau in range(2):
                c = "0" if s == 0 else vr(RD + 4 * tau, 4)
                a(f"v_mfma_f32_16x16x32_bf16 {vr(RD + 4 * tau, 4)}, {vr(RK + 16 * tau + 4 * s, 4)}, {vr(RA + 4 * s, 4)}, {c}")
        for rnd in range(2):
            for i in range(4):
                a(f"v_cvt_pk_bf16_f32 v{RP + i}, v{RD + 2 * i}, v{RD + 2 * i + 1}")
            for i in range(4):
                a(f"v_lshlrev_b32 v{RD + 2 * i}, 16, v{RP + i}\nv_and_b32 v{RD + 2 * i + 1}, 0xffff0000, v{RP + i}")
            if rnd == 0:
                for i in range(8):
                    a(f"v_mul_f32 v{RD + i}, 0x3db504f3, v{RD + i}")
        a(f"""v_max3_f32 v{t0}, v{RD}, v{RD + 1}, v{RD + 2}
        v_max3_f32 v{t1}, v{RD + 3}, v{RD + 4}, v{RD + 5}
        v_max3_f32 v{t0}, v{t0}, v{RD + 6}, v{RD + 7}
        v_max_f32 v{t0}, v{t0}, v{t1}""")
        self.allred(t0, "v_max_f32", rors=())
        a(f"v_mul_f32 v{t2}, 0xbfb8aa3b, v{t0}\ns_mov_b32 s{sT0}, {LOG2E}")
        for i in range(8):
            a(f"v_fma_f32 v{RD + i}, v{RD + i}, s{sT0}, v{t2}")
        for i in range(8):
            a(f"v_exp_f32 v{RD + i}, v{RD + i}")
        a(f"""v_pk_add_f32 {vr(RA, 2)}, {vr(RD, 2)}, {vr(RD + 2, 2)}
        v_pk_add_f32 {vr(RA + 2, 2)}, {vr(RD + 4, 2)}, {vr(RD + 6, 2)}
        v_cvt_pk_bf16_f32 v{RP}, v{RD}, v{RD + 1}
        v_pk_add_f32 {vr(RA, 2)}, {vr(RA, 2)}, {vr(RA + 2, 2)}
        v_cvt_pk_bf16_f32 v{RP + 1}, v{RD + 2}, v{RD + 3}
        v_add_f32 v{t1}, v{RA}, v{RA + 1}
        v_cvt_pk_bf16_f32 v{RP + 2}, v{RD + 4}, v{RD + 5}
        v_mov_b32 v{t3}, v{t1}
        v_cvt_pk_bf16_f32 v{RP + 3}, v{RD + 6}, v{RD + 7}""")
        mask = [f"v_cndmask_b32 v{RA + 4 * r + i}, 0, v{RP + i}, {sp(sM[r])}" for r in range(4) for i in range(4)]
        a(mask[0])
        a(f"v_permlane16_swap_b32 v{t1}, v{t3}\nv_add_f32 v{t1}, v{t1}, v{t3}\nv_mov_b32 v{t3}, v{t1}")
        a(mask[1]); a(mask[2])
        a(f"v_permlane32_swap_b32 v{t1}, v{t3}\nv_add_f32 v{t1}, v{t1}, v{t3}")
        a(f"ds_write_b64 v{aMW}, {vr(t0, 2)} offset:{L_MX}")
        for m in mask[3:]:
            a(m)
        a(f"""s_lshl_b32 s{sT0}, s{sW}, 5
        v_mov_b32 v{t0}, s{sT0}
        s_waitcnt lgkmcnt(0)
        s_barrier
        ds_read_b128 {vr(RD, 4)}, v{t0} offset:{L_MX}
        ds_read_b128 {vr(RD + 4, 4)}, v{t0} offset:{L_MX + 16}""")
        self.stamp(5)
        for p in range(2 if q else 0):
            a(f"s_waitcnt vmcnt({6 - 2 * p})")
            self.perm_pair(RV + 8 * p, RV + 8 * p + 4, RK, 4, p)
        a(f"""s_waitcnt lgkmcnt(0)
        v_max3_f32 v{t2}, v{RD}, v{RD + 2}, v{RD + 4}
        v_max_f32 v{t2}, v{t2}, v{RD + 6}""")
        for i in range(4):
            a(f"v_sub_f32 v{vF + i}, v{RD + 2 * i}, v{t2}")
        for i in range(4):
            a(f"v_mul_f32 v{vF + i}, {LOG2E}, v{vF + i}")
        for i in range(4):
            a(f"v_exp_f32 v{vF + i}, v{vF + i}")
        a(f"v_mul_f32 v{t3}, v{vF}, v{RD + 1}")
        for i in range(1, 4):
            a(f"v_fmac_f32 v{t3}, v{vF + i}, v{RD + 2 * i + 1}")
        self.tag(t2, t2, sTA4)
        self.tag(t3, t3, sTA4)
        a("s_mov_b64 exec, 1")
        self.pub("ml" + role, f"global_store_dwordx2 v{aML}, {vr(t2, 2)}, {sp(WS)}")
        a("s_mov_b64 exec, -1")
        if q:
            a("s_waitcnt vmcnt(3)")
            self.perm_pair(RV + 16, RV + 20, RK, 4, 2)
            a("s_waitcnt vmcnt(1)")
        self.stamp(6)
        s0, s1 = RV + 24, RV + 28

        def pm(t):
            if q:
                a(f"v_perm_b32 v{RK + 4 * t + 3}, v{s1 + t // 2}, v{s0 + t // 2}, s{sPHI if t % 2 else sPLO}")

        def mf(t):
            d = vr(RD + 4 * (t // 4), 4)
            a(f"v_mfma_f32_16x16x32_bf16 {d}, {vr(RA + 4 * (t % 4), 4)}, {vr(B + 4 * t, 4)}, {'0' if t % 4 == 0 else d}")
        order = [0, 4, 1, 5, 2, 6, 3, 7]
        pm(order[0]); pm(order[1]); pm(order[2])
        for i, t in enumerate(order):
            mf(t)
            if i + 3 < 8:
                pm(order[i + 3])
        a(f"""ds_write_b128 v{aOW}, {vr(RD, 4)} offset:{L_OR}
        ds_write_b128 v{aOW}, {vr(RD + 4, 4)} offset:{L_OR + OR_D1}
        s_waitcnt lgkmcnt(0)
        s_barrier""")
        for w in range(4):
            a(f"ds_read_b64 {vr(RD + 2 * w, 2)}, v{aOR} offset:{L_OR + OR_STRIDE * w}")
        a(f"""s_waitcnt lgkmcnt(2)
        v_pk_mul_f32 {vr(RD, 2)}, {vr(RD, 2)}, {vr(vF, 2)} op_sel_hi:[1,0]
        v_pk_fma_f32 {vr(RD, 2)}, {vr(RD + 2, 2)}, {vr(vF, 2)}, {vr(RD, 2)} op_sel:[0,1,0] op_sel_hi:[1,1,1]
        s_waitcnt lgkmcnt(0)
        v_pk_fma_f32 {vr(RD, 2)}, {vr(RD + 4, 2)}, {vr(vF + 2, 2)}, {vr(RD, 2)} op_sel_hi:[1,0,1]
        v_pk_fma_f32 {vr(RD, 2)}, {vr(RD + 6, 2)}, {vr(vF + 2, 2)}, {vr(RD, 2)} op_sel:[0,1,0] op_sel_hi:[1,1,1]""")
        self.tag(RD, RD, sTA4)
        self.tag(RD + 1, RD + 1, sTA4)
        self.pub("a1" + role, f"global_store_dwordx2 v{aA1}, {vr(RD, 2)}, {sp(WS)}")
        if q or self.wo_early < 8:
            a("s_barrier")
        self.stamp(7)

    def w_tail(self):
        a = self.a
        for jj in range(self.wo_early, 8):
            self.wo_load(jj)
        a(f"v_lshlrev_b32 v11, 16, v11\nv_cmp_gt_u32 {sp(sM[0])}, 48, v{vL}")
        for p in range(4):
            last = 2 * p + 1
            a(f"s_waitcnt vmcnt({7 - last + (2 if last < self.wo_early else 0)})")
            self.perm_pair(RW + 8 * p, RW + 8 * p + 4, RK, 4, p)
        self.stamp(8)
        WT = RX + 4
        self.census_load(64)
        a(f"L_mlpoll:\nglobal_load_dwordx2 {vr(RX, 2)}, v{aMG}, {sp(WS)} sc1")
        self.spin()
        a("s_waitcnt vmcnt(0)")
        self.check2(RX)
        a("s_cbranch_vccnz L_mlpoll")
        a(f"""global_load_dwordx4 {vr(RA, 4)}, v{aAG}, {sp(WS)} sc1
        v_and_b32 v{RX}, 0xffff0000, v{RX}
        v_and_b32 v{RX + 1}, 0xffffff00, v{RX + 1}
        v_mov_b32 v{t2}, v{RX}""")
        self.allred(t2, "v_max_f32", rors=(8, 4, 2))
        a(f"""v_sub_f32 v{WT}, v{RX}, v{t2}
        v_mul_f32 v{WT}, {LOG2E}, v{WT}
        v_exp_f32 v{WT}, v{WT}
        v_mul_f32 v{t2}, v{WT}, v{RX + 1}""")
        self.allred(t2, "v_add_f32", rors=(8, 4, 2))
        a(f"v_rcp_f32 v{t2}, v{t2}\nv_mul_f32 v{WT}, v{WT}, v{t2}")
        self.poll("a1poll", [f"global_load_dwordx4 {{}}, v{aAG}, {sp(WS)} sc1"], sTA4, RD, self.pa1, [RA, RA + 4, RA + 8, RA + 12], primed=True)
        self.stamp(9)
        for i in range(4):
            a(f"v_mul_f32 v{RD + i}, v{RD + i}, v{WT}")
        self.rs4(RD)
        for k in (8, 4, 2):
            a(f"v_add_f32_dpp v{RD}, v{RD}, v{RD} row_ror:{k} {DPP}")
        a(f"""s_mov_b32 exec_lo, 0x00030003
        s_mov_b32 exec_hi, 0x00030003
        v_cvt_pk_bf16_f32 v{RD}, v{RD}, v{RD}
        ds_write_b16 v{aVW}, v{RD} offset:{L_OV}
        s_mov_b64 exec, -1
        s_waitcnt lgkmcnt(0)
        s_barrier
        ds_read_b128 {vr(RX, 4)}, v{aVR} offset:{L_OV}
        s_waitcnt lgkmcnt(0)""")
        for t in range(8):
            a(f"v_mfma_f32_16x16x32_bf16 {vr(RV + 4 * t, 4)}, {vr(RX, 4)}, {vr(RK + 4 * t, 4)}, 0")
        a("s_mov_b32 exec_hi, 0")
        for i in range(4):
            a(f"v_cndmask_b32 v{RD + i}, v{RV + 4 * i}, v{RV + 16 + 4 * i}, {sp(sG1)}")
        for i in range(4):
            self.tag(RD + i, RD + i, sTB4)
        self.pub("b1", f"global_store_dwordx4 v{aB1}, {vr(RD, 4)}, {sp(WS)}")
        a("s_mov_b64 exec, -1")
        self.stamp(10)
        a(f"""s_cmp_ge_u32 s{sW}, 2
        s_cbranch_scc1 L_exit
        s_cmp_eq_u32 s{sW}, 1
        s_cbranch_scc1 L_final""")
        self.sleep(self.d_b1)
        self.poll("b1poll", [f"global_load_dwordx4 {{}}, v{aBG}, {sp(WS)} sc1", f"global_load_dwordx4 {{}}, v{aBG}, {sp(WS)} offset:1024 sc1"],
                  sTB4, RV, self.pb1, [RA, RA + 8, RA + 16, RA + 24])
        self.stamp(11)
        a(f"""v_pk_add_f32 {vr(RV, 2)}, {vr(RV, 2)}, {vr(RV + 4, 2)}
        v_pk_add_f32 {vr(RV + 2, 2)}, {vr(RV + 2, 2)}, {vr(RV + 6, 2)}""")
        self.rs4(RV)
        a(f"""v_add_f32_dpp v{RV}, v{RV}, v{RV} row_ror:8 {DPP}
        s_mov_b32 exec_lo, 0x00ff00ff
        s_mov_b32 exec_hi, 0x00ff00ff""")
        self.tag(RV, RV, sTA4)
        a(f"global_store_dword v{aB2}, v{RV}, {sp(WS)} sc1\ns_mov_b64 exec, -1")
        self.census_eval()
        self.sleep(self.d_b2a)
        self.poll("b2poll", [f"global_load_dwordx4 {{}}, v{aHG}, {sp(WS)} sc1"], sTA4, RV, self.pb2, [RW, RW + 4, RW + 8, RW + 12])
        self.stamp(12)
        self.rs4(RV)
        a(f"v_add_f32_dpp v{RV}, v{RV}, v{RV} row_ror:8 {DPP}")
        self.bf16r(RV, RV)
        a(f"""v_add_f32 v{RV}, v{RV}, v11
        v_cvt_pk_bf16_f32 v{RV}, 0, v{RV}
        s_mov_b32 exec_lo, 0x00ff00ff
        s_mov_b32 exec_hi, 0x00ff00ff""")
        self.tag(RV + 1, RV, sTH4)
        self.pub("b2b", f"global_store_dword v{aHB}, v{RV + 1}, {sp(WS)}")
        a(f"""ds_write_b32 v{aHW}, v{RV} offset:{L_HV}
        s_mov_b64 exec, -1
        L_final:
        s_cmp_ge_u32 s{sG}, 4
        s_cbranch_scc1 L_exit
        s_waitcnt lgkmcnt(0)
        s_barrier
        ds_read_b32 v11, v{aHR} offset:{L_HV}""")
        if self.ctrig:
            a(f"""s_add_u32 s{sT0}, s{sA1G}, {16 * 2048}
            v_lshl_add_u32 v{aBG}, v{vL}, 4, s{sT0}""")
            self.poll("hseen", [f"global_load_dwordx4 {{}}, v{aBG}, {sp(WS)} sc1", f"global_load_dwordx4 {{}}, v{aBG}, {sp(WS)} offset:1024 sc1"],
                      sTH4, RV, 1, [RA])
        self.sleep(self.d_c)
        self.poll("cpoll", [f"global_load_dwordx4 {{}}, v{aC0}, {sp(WS)} sc1", f"global_load_dwordx4 {{}}, v{aC1}, {sp(WS)} sc1"],
                  sTA4, RV, self.pc, [RB, RB + 8, RB + 16, RB + 24])
        self.stamp(13)
        a(f"""s_mov_b64 exec, {sp(sM[0])}
        v_pk_add_f32 {vr(RV, 2)}, {vr(RV, 2)}, {vr(RV + 4, 2)}
        v_pk_add_f32 {vr(RV + 2, 2)}, {vr(RV + 2, 2)}, {vr(RV + 6, 2)}
        s_mov_b64 exec, -1""")
        self.rs4(RV)
        for k in (8, 4, 2, 1):
            a(f"v_add_f32_dpp v{RV}, v{RV}, v{RV} row_ror:{k} {DPP}")
        self.bf16r(RV, RV)
        a(f"""s_waitcnt lgkmcnt(0)
        v_add_f32 v{RV}, v{RV}, v11
        v_cvt_pk_bf16_f32 v{RV}, v{RV}, v{RV}
        s_mov_b32 exec_lo, 0x00010001
        s_mov_b32 exec_hi, 0x00010001
        global_store_short v{aOut}, v{RV}, {sp(OUT)}
        s_or_b32 s{sT0}, s2, s{sW}
        s_cmp_lg_u32 s{sT0}, 0
        s_cbranch_scc1 L_exit
        s_mov_b64 exec, 1
        v_mov_b32 v{t0}, 0
        v_mov_b32 v{t1}, s{sE}
        global_store_dword v{t0}, v{t1}, {sp(WS)}
        s_branch L_exit""")

    def f_tail(self):
        a = self.a
        BG, BU, DW, BD, DR = RK, RK + 16, RV, RV + 16, RA
        ONES, CSG, CSU = RX + 8, RX + 9, RX + 10
        H0, H1, HA = DW, DW + 4, RX
        a(f"""s_cmp_eq_u32 s{sG}, 7
        s_cbranch_scc1 L_exit
        s_lshl_b32 s{sT2}, s{sW}, 12""")
        for i in range(4):
            for base, ptr in ((L_G, GA), (L_U, UP)):
                a(f"s_add_u32 m0, s{sT2}, {base + 1024 * i}\nglobal_load_lds_dwordx4 v{aFG}, {sp(ptr)}{self.nt}")
            if i < 3:
                a(f"v_add_u32 v{aFG}, {8 * 3584}, v{aFG}")
        for jj in range(4):
            a(f"global_load_dwordx4 {vr(DW + 4 * jj, 4)}, v{aFD}, {sp(DN)} offset:{1024 * jj}{self.nt}")
        a(f"global_load_dwordx4 {vr(DR + 8, 4)}, v{aEG}, {sp(WS)} sc1")
        self.census_load(64)
        a(f"""v_mov_b32 v{ONES}, 0x3f803f80
        v_mov_b32 v{RX}, 0x3f803f80
        v_mov_b32 v{RX + 1}, 0x3f803f80
        v_mov_b32 v{RX + 2}, 0x3f803f80
        v_mov_b32 v{RX + 3}, 0x3f803f80
        s_waitcnt vmcnt(6)
        s_barrier""")
        for base, B in ((L_G, BG), (L_U, BU)):
            for s in range(4):
                for hf in range(2):
                    a(f"ds_read_b64_tr_b16 {vr(B + 4 * s + 2 * hf, 2)}, v{aTR} offset:{base + 8192 * hf + 512 * s}")
        a("s_waitcnt lgkmcnt(0)")
        for s in range(4):
            for B, D in ((BG, DR), (BU, DR + 4)):
                a(f"v_mfma_f32_16x16x32_bf16 {vr(D, 4)}, {vr(RX, 4)}, {vr(B + 4 * s, 4)}, {'0' if s == 0 else vr(D, 4)}")
        a("s_waitcnt vmcnt(0)")
        self.stamp(8)
        for dd in range(4):
            rows = ((0, 1), (2, 3)) if dd < 2 else ((1, 2), (3, 0))
            for p, (lo, hi) in enumerate(rows):
                a(f"v_perm_b32 v{BD + 2 * (2 * dd) + p}, v{DW + 4 * hi + dd}, v{DW + 4 * lo + dd}, s{sPLO}")
                a(f"v_perm_b32 v{BD + 2 * (2 * dd + 1) + p}, v{DW + 4 * hi + dd}, v{DW + 4 * lo + dd}, s{sPHI}")
        a(f"v_mov_b32 v{CSG}, v{DR}\nv_mov_b32 v{CSU}, v{DR + 4}")
        self.census_eval()
        a(f"""L_hpoll:
        global_load_dwordx4 {vr(H0, 4)}, v{aHP}, {sp(WS)} sc1
        global_load_dwordx4 {vr(H1, 4)}, v{aHP}, {sp(WS)} offset:256 sc1""")
        self.spin()
        a("s_waitcnt vmcnt(1)")
        self.check4(H0, sTH4, sp(sT2))
        a(f"""v_perm_b32 v{HA}, v{H0 + 1}, v{H0}, s{sPHI}
        v_perm_b32 v{HA + 1}, v{H0 + 3}, v{H0 + 2}, s{sPHI}
        s_waitcnt vmcnt(0)
        v_perm_b32 v{HA + 2}, v{H1 + 1}, v{H1}, s{sPHI}
        v_perm_b32 v{HA + 3}, v{H1 + 3}, v{H1 + 2}, s{sPHI}""")
        self.check4(H1, sTH4)
        a(f"s_or_b64 vcc, vcc, {sp(sT2)}\ns_cbranch_vccnz L_hpoll")
        self.stamp(9)
        SA, SB = RX + 4, RX + 5
        mf = [f"v_mfma_f32_16x16x32_bf16 {vr(D + 4 * s, 4)}, {vr(HA, 4)}, {vr(B + 4 * s, 4)}, 0" for s in range(4) for B, D in ((BG, DR), (BU, DR + 16))]
        a(f"v_dot2_f32_bf16 v{SA}, v{HA}, v{ONES}, 0\nv_dot2_f32_bf16 v{SB}, v{HA}, v{HA}, 0")
        for i in range(1, 4):
            a(f"v_dot2_f32_bf16 v{SA}, v{HA + i}, v{ONES}, v{SA}\nv_dot2_f32_bf16 v{SB}, v{HA + i}, v{HA + i}, v{SB}")
        a(mf[0]); a(mf[1])
        a(f"v_permlane16_swap_b32 v{SA}, v{SB}\nv_add_f32 v{SA}, v{SA}, v{SB}")
        for k, m in zip((8, 4, 2, 1), mf[2:6]):
            a(m)
            a(f"v_add_f32_dpp v{SA}, v{SA}, v{SA} row_ror:{k} {DPP}")
        a(f"v_mov_b32 v{SB}, v{SA}")
        a(mf[6])
        a(f"v_permlane32_swap_b32 v{SA}, v{SB}\nv_add_f32 v{SA}, v{SA}, v{SB}\nv_mul_f32 v{t0}, 0x3b000000, v{SA}\nv_mul_f32 v{t1}, 0x3b000000, v{SA}")
        a(mf[7])
        a(f"""v_permlane16_swap_b32 v{t0}, v{t1}
        v_fma_f32 v{t1}, -v{t0}, v{t0}, v{t1}
        v_add_f32 v{SA}, v{DR}, v{DR + 5}
        v_max_f32 v{t1}, 0, v{t1}
        v_add_f32 v{SB}, v{DR + 16}, v{DR + 21}""")
        self.ln_scale(t0, t1, t2)
        a(f"""v_add_f32 v{SA}, v{SA}, v{DR + 10}
        v_rcp_f32 v{t1}, v{t1}
        v_add_f32 v{SB}, v{SB}, v{DR + 26}
        v_add_f32 v{SA}, v{SA}, v{DR + 15}
        v_add_f32 v{SB}, v{SB}, v{DR + 31}
        v_fma_f32 v{SA}, -v{t0}, v{CSG}, v{SA}
        v_fma_f32 v{SB}, -v{t0}, v{CSU}, v{SB}
        s_mov_b64 exec, {sp(sKM)}
        v_mul_f32 v{SA}, v{SA}, v{t1}
        v_mul_f32 v{SB}, v{SB}, v{t1}""")
        self.tag(SA, SA, sTA4)
        self.tag(SB, SB, sTA4)
        self.pub("e", f"global_store_dwordx2 v{aES}, {vr(SA, 2)}, {sp(WS)}")
        a("s_mov_b64 exec, -1")
        self.stamp(11)
        self.sleep(self.d_e)
        self.poll("epoll", [f"global_load_dwordx4 {{}}, v{aEG}, {sp(WS)} sc1"], sTA4, H0, self.pe, [RW, RW + 4, RW + 8, RW + 12])
        self.stamp(12)
        a(f"""v_pk_add_f32 {vr(t2, 2)}, {vr(H0, 2)}, {vr(H0 + 2, 2)}
        v_add_f32_dpp v{t2}, v{t2}, v{t2} quad_perm:[1,0,3,2] {DPP}
        v_add_f32_dpp v{t3}, v{t3}, v{t3} quad_perm:[1,0,3,2] {DPP}
        v_cvt_pk_bf16_f32 v{t3}, v{t2}, v{t3}
        v_lshlrev_b32 v{t2}, 16, v{t3}
        v_and_b32 v{t3}, 0xffff0000, v{t3}
        v_mul_f32 v{t0}, 0xbfb8aa3b, v{t2}
        v_exp_f32 v{t0}, v{t0}
        v_add_f32 v{t0}, 1.0, v{t0}
        v_rcp_f32 v{t0}, v{t0}
        v_mul_f32 v{t2}, v{t2}, v{t0}""")
        self.bf16r(t2, t2)
        a(f"""v_mul_f32 v{t2}, v{t2}, v{t3}
        v_cvt_pk_bf16_f32 v{t2}, v{t2}, v{t2}
        v_mov_b32_dpp v{t3}, v{t2} row_ror:12 {DPP}
        v_perm_b32 v{HA}, v{t3}, v{t2}, s{sPHI}
        v_mov_b32_dpp v{HA + 1}, v{HA} row_ror:8 {DPP}""")
        for t in range(8):
            a(f"v_mfma_f32_16x16x16_bf16 {vr(DR + 4 * t, 4)}, {vr(HA, 2)}, {vr(BD + 2 * t, 2)}, 0")
        a("s_mov_b32 exec_hi, 0")
        for i in range(4):
            a(f"v_cndmask_b32 v{H0 + i}, v{DR + 4 * i}, v{DR + 16 + 4 * i}, {sp(sG1)}")
        for i in range(4):
            self.tag(H0 + i, H0 + i, sTA4)
        a(f"global_store_dwordx4 v{aCS}, {vr(H0, 4)}, {sp(WS)} sc1\ns_mov_b64 exec, -1")
        self.stamp(10)
        a("s_branch L_exit")

    def helper(self):
        a = self.a
        per_wg = self.code_bytes // 32
        a(f"""L_helper:
        s_getpc_b64 {sp(sCODE)}
        L_pc:
        s_sub_u32 s{sCODE}, s{sCODE}, L_pc-{NAME}_kernel
        s_subb_u32 s{sCODE + 1}, s{sCODE + 1}, 0
        s_mul_i32 s{sT0}, s{sJ}, {per_wg}
        v_lshl_add_u32 v{t2}, v{vL}, {(per_wg // 64).bit_length() - 1}, s{sT0}
        v_min_u32 v{t2}, L_code_end-{NAME}_kernel-4, v{t2}""")
        if self.codepf == 1:
            a(f"global_load_dword v{RK}, v{t2}, {sp(sCODE)}")
        a(f"""v_mov_b32 v{vQ}, v{t2}
        s_lshl_b32 s{sT0}, s{sG}, 24
        s_add_u32 s{sT0}, s{sT0}, 0xF00000
        v_mov_b32 v{t3}, s{sT0}
        s_waitcnt lgkmcnt(0)
        s_cmp_ge_u32 s{sJ}, 16
        s_cbranch_scc1 L_helper_q
        s_load_dword s{sE}, {sp(WS)}, 0""")
        if self.touch == 2:
            a(f"""s_cmp_lg_u32 s{sJ}, 0
            s_cbranch_scc1 L_notouch
            s_load_dword s70, {sp(VP)}, s{sT0}
            s_lshl_b32 s{sT1}, s{sG}, 19
            s_load_dword s71, {sp(WO)}, s{sT1}
            s_load_dword s72, {sp(GA)}, 0
            s_load_dword s73, {sp(UP)}, 0
            s_load_dword s74, {sp(DN)}, 0
            s_load_dword s75, {sp(OUT)}, 0
            s_mov_b32 s{sT1}, {512 * 3584 - 4}
            s_load_dword s76, {sp(GA)}, s{sT1}
            s_load_dword s77, {sp(UP)}, s{sT1}
            s_load_dword s78, {sp(DN)}, s{sT1}
            L_notouch:""")
        a(f"""v_mov_b32 v{vK}, v{t3}
        s_getreg_b32 s{sXCC}, hwreg(HW_REG_XCC_ID, 0, 4)
        s_lshl_b32 s{sT0}, s{sG}, 7
        s_add_u32 s{sT0}, s{sT0}, {WS_HI}
        v_and_b32 v{t0}, 31, v{vL}
        v_lshl_add_u32 v{vB}, v{t0}, 2, s{sT0}
        s_lshl_b32 s{sT1}, s{sJ}, 2
        s_add_u32 s{sT0}, s{sT0}, s{sT1}
        v_mov_b32 v{vC}, s{sT0}
        s_lshl_b32 s{sT0}, s{sG}, 13
        s_lshl_b32 s{sT1}, s{sJ}, 9
        s_add_u32 s{sT0}, s{sT0}, s{sT1}
        s_add_u32 s{sT0}, s{sT0}, {WS_QA}
        v_lshl_add_u32 v{t0}, v{vL}, 3, s{sT0}
        s_lshl_b32 s{sT1}, s{sJ}, 7
        s_lshl_b32 s{sT0}, s{sG}, 16
        s_add_u32 s{sT0}, s{sT0}, s{sT1}
        s_add_u32 s{sT0}, s{sT0}, {WS_A1}
        v_lshrrev_b32 v{t1}, 3, v{vL}
        v_lshlrev_b32 v{t1}, 11, v{t1}
        v_and_b32 v{t2}, 7, v{vL}
        v_lshl_add_u32 v{t1}, v{t2}, 4, v{t1}
        v_add_u32 v{t1}, s{sT0}, v{t1}
        s_lshl_b32 s{sT0}, s{sG}, 10
        s_lshl_b32 s{sT1}, s{sJ}, 6
        s_add_u32 s{sT0}, s{sT0}, s{sT1}
        s_add_u32 s{sT0}, s{sT0}, {WS_ML}
        v_lshl_add_u32 v{t2}, v{vN}, 2, s{sT0}
        s_lshl_b32 s{sT0}, s{sG}, 19
        s_lshl_b32 s{sT1}, s{sJ}, 15
        s_add_u32 s{sT0}, s{sT0}, s{sT1}
        v_mov_b32 v{t3}, s{sT0}
        v_mov_b32 v{vA}, 0
        v_mov_b32 v{vV}, {512 * 3584 - 4}
        s_barrier""")
        if self.codepf == 2:
            a(f"global_load_dword v{RK}, v{vQ}, {sp(sCODE)}")
        if self.touch == 1:
            pages = [(VP, vK), (WO, t3), (GA, vA), (UP, vA), (DN, vA), (OUT, vA), (GA, vV), (UP, vV), (DN, vV)]
            for i, (ptr, off) in enumerate(pages):
                a(f"s_cmp_lg_u32 s{sJ}, {i}\ns_cbranch_scc1 L_touch{i}\nglobal_load_dword v{RK + 22}, v{off}, {sp(ptr)}{self.nt}\nL_touch{i}:")
        a(f"""global_load_dword v{RK + 21}, v{vB}, {sp(WS)} sc1
        global_load_dword v{RK + 1}, v{t0}, {sp(WS)} sc1""")
        for i in range(4):
            a(f"global_load_dwordx4 {vr(RK + 4 + 4 * i, 4)}, v{t1}, {sp(WS)} sc1")
            if i < 3:
                a(f"v_add_u32 v{t1}, 0x4000, v{t1}")
        a(f"""global_load_dword v{RK + 2}, v{t2}, {sp(WS)} sc1
        s_waitcnt lgkmcnt(0)
        s_add_u32 s{sE}, s{sE}, 1
        s_lshl_b32 s{sE}, s{sE}, 4
        s_or_b32 s{sE}, s{sE}, s{sXCC}
        v_mov_b32 v{vD}, s{sE}
        s_mov_b64 exec, 1
        global_store_dword v{vC}, v{vD}, {sp(WS)}
        s_endpgm
        L_helper_q:
        v_mov_b32 v{t0}, {WS_QB}
        s_barrier""")
        if self.codepf == 2:
            a(f"global_load_dword v{RK}, v{vQ}, {sp(sCODE)}")
        if self.qtouch:
            a(f"""global_load_dword v{RK + 8}, v{t3}, {sp(KP)}{self.nt}
            global_load_dword v{RK + 1}, v{t0}, {sp(WS)} sc1
            global_load_dword v{RK + 9}, v{t3}, {sp(VP)}{self.nt}""")
        a("s_endpgm")

    def exit(self):
        a = self.a
        a("L_exit:")
        if self.prof:
            self.stamp(14)
            a(f"""s_memrealtime {sp(ST0 + 32)}
            s_mov_b64 exec, 1
            s_lshl_b32 s{sT0}, s2, 2
            s_add_u32 s{sT0}, s{sT0}, s{sW}
            s_lshl_b32 s{sT0}, s{sT0}, 7
            s_add_u32 s{sT0}, s{sT0}, {WS_ST}
            v_mov_b32 v{t0}, s{sT0}
            s_waitcnt lgkmcnt(0)""")
            for k in (range(17) if self.prof == 1 else (15, 16)):
                a(f"v_mov_b32 v{t1}, s{ST0 + 2 * k}\nglobal_store_dword v{t0}, v{t1}, {sp(WS)} offset:{4 * k}")
            a(f"v_mov_b32 v{t1}, s{sFAST}\nglobal_store_dword v{t0}, v{t1}, {sp(WS)} offset:68")
            a(f"v_mov_b32 v{t1}, s{sQN}\nglobal_store_dword v{t0}, v{t1}, {sp(WS)} offset:72")
            a(f"v_mov_b32 v{t1}, s{sSPIN}\nglobal_store_dword v{t0}, v{t1}, {sp(WS)} offset:76")
            if self.dbgwg >= 0:
                a(f"s_lshl_b32 s{sT0}, s2, 2\ns_add_u32 s{sT0}, s{sT0}, s{sW}\ns_cmp_lg_u32 s{sT0}, {self.dbgwg * 4}\ns_cbranch_scc1 L_end")
                a(f"v_mov_b32 v{t0}, 0")
                for k in range(1, 15):
                    a(f"s_sub_u32 s{sT0}, s{ST0 + 2 * k}, s{ST0}\nv_mov_b32 v{t1}, s{sT0}\nglobal_store_dword v{t0}, v{t1}, {sp(DBG)} offset:{4 * k}")
                a(f"s_sub_u32 s{sT0}, s{ST0 + 32}, s{ST0 + 30}\nv_mov_b32 v{t1}, s{sT0}\nglobal_store_dword v{t0}, v{t1}, {sp(DBG)} offset:0")
                a(f"v_mov_b32 v{t1}, s{sFAST}\nglobal_store_dword v{t0}, v{t1}, {sp(DBG)} offset:60")
        a("L_end:\ns_endpgm")

    def build(self):
        head = open("cdna_kernels/" + NAME + ".s.ref").read().split("; Override launch")[0]
        if self.prof == 1:
            for k in range(17):
                self.a(f"s_mov_b32 s{ST0 + 2 * k}, 0")
        self.prologue()
        self.w_start(0)
        self.q_start(0)
        self.w_start(1)
        self.attention("w")
        self.w_tail()
        self.q_start(1)
        self.attention("q")
        self.f_tail()
        self.exit()
        self.helper()
        for c in self.cold:
            self.a(c)
        self.a("L_code_end:")
        body = "\n".join(pad(self.L))
        return f"""{head}; @launch grid=(256,1,1) block=(320,1,1) lds={LDS_BYTES}
.amdgcn_target "amdgcn-amd-amdhsa--gfx950"
.text
.globl {NAME}_kernel
.p2align 8
.type {NAME}_kernel,@function
{NAME}_kernel:
{body}
.section .rodata,"a"
.p2align 6
.amdhsa_kernel {NAME}_kernel
  .amdhsa_next_free_vgpr {NVGPR}
  .amdhsa_next_free_sgpr 102
  .amdhsa_accum_offset {NVGPR}
  .amdhsa_group_segment_fixed_size 0
  .amdhsa_kernarg_size 96
  .amdhsa_user_sgpr_count 2
  .amdhsa_user_sgpr_kernarg_segment_ptr 1
  .amdhsa_system_sgpr_workgroup_id_x 1
.end_amdhsa_kernel
"""


if __name__ == "__main__":
    out = sys.argv[1]
    kw = {}
    for arg in sys.argv[2:]:
        k, v = arg.split("=")
        kw[k] = int(v)
    open(out, "w").write(Gen(**kw).build())
```

```python
import sys
from asmlib import pad

NAME = "sequential_preLN__sliding_block_cached__swiglu_ffn__decode"

WS_HI, WS_ML, WS_B2A, WS_A1, WS_C, WS_QA, WS_QB, WS_E, WS_ST = 0x1000, 0xA000, 0xC000, 0x10000, 0x90000, 0xD0000, 0xE0000, 0xF0000, 0x100000
L_QS, L_MX, L_LS, L_OV, L_HV, L_CS, L_GU, L_ST, L_QP = 0, 1024, 1088, 1664, 1792, 2048, 2560, 3072, 4096
L_OR, OR_STRIDE, OR_D1 = 4096, 2304, 1024 + 128
L_G, L_U, L_K = 16384, 32768, 16384
LDS_BYTES = 49152

sW, sG, sJ, sE, sXCC, sHX, sFAST = 3, 28, 29, 30, 31, 32, 33
sTA4, sTA2, sTB4, sTH4 = 34, 35, 36, 37
sSLO, sSHI, sPLO, sPHI = 38, 39, 40, 41
sM = [42, 44, 46, 48]
sG1 = 50
sQP = 52
sT0, sT1, sT2, sT3 = 54, 55, 56, 57
sQN, sSPIN = 59, 60
sKB = 14
sA1G, sF, sKQ, sKM = 58, 58, 61, 98
sCODE = 62
ST0 = 64
X, KP, VP, WQ, WO, GA, UP, DN, OUT, DBG, WS = 4, 6, 8, 10, 12, 16, 18, 20, 22, 24, 26

vL, vK, vV, vN, vGp, vSEL, vQ = 0, 1, 2, 3, 4, 5, 6
vA, vB, vC, vD = 7, 8, 9, 10
vHI, vHA = 124, 125
vKD = 120
vF = 126
(aKR, aQW, aQR, aMW, aOW, aOR, aA1, aML, aWO, aMG, aAG, aVW, aVR, aB1, aBG, aB2, aHG, aHB, aHW, aC0, aC1, aHR,
 aOut) = range(132, 155)
aFG, aFD, aTR, aHP, aES, aEG, aCS = aWO, aMG, aAG, aVW, aVR, aB1, aBG
RW, RB = 160, 192
vKS, vV2 = 224, 232
NVGPR = 240
t0, t1, t2, t3 = 12, 13, 14, 15
RK, RV, RA, RD, RP, RX = 16, 48, 80, 96, 104, 112
LOG2E = "0x3fb8aa3b"
DPP = "row_mask:0xf bank_mask:0xf"


def sp(r):
    return f"s[{r}:{r + 1}]"


def vr(r, n):
    return f"v[{r}:{r + n - 1}]"


class Gen:
    def __init__(self, prof=False, nt=True, wv0=0, qa_tries=24, d_a1=0, d_b1=0, d_b2a=0, d_c=36, force_slow=False,
                 code_bytes=16384, prew_sc1=False, dbgwg=-1, wk0=8, qk_wait=7, d_e=0, wo_early=2, early_stamps=0, touch=0, qtouch=1, codepf=1, pc=1, pb2=1, pb1=1, pa1=1, pe=1, gap=0, ctrig=1, ntmask=-1, leak_wg=-1, leak_a=0, leak_b=14, leak_clk=0, spread=2, cbx=0, pf3=0):
        self.L = []
        self.prof, self.nt, self.wv0, self.qa_tries = prof, " nt" if nt else "", wv0, qa_tries
        self.d_a1, self.d_b1, self.d_b2a, self.d_c = d_a1, d_b1, d_b2a, d_c
        self.force_slow = force_slow
        self.code_bytes = code_bytes
        self.prew_sc1 = prew_sc1
        self.cold = []
        self.pf3 = pf3
        self.cbx = cbx
        self.spread = spread
        self.leak = (leak_wg, leak_a, leak_b, leak_clk)
        m = ntmask if ntmask >= 0 else (31 if nt else 0)
        self.ntq, self.ntk, self.ntv, self.nto, self.ntf = (' nt' if m >> i & 1 else '' for i in range(5))
        self.ctrig = ctrig
        self.pc, self.pb2, self.pb1, self.pa1, self.pe, self.gap = pc, pb2, pb1, pa1, pe, gap
        self.dbgwg = dbgwg
        self.wk0, self.qk_wait, self.d_e = wk0, qk_wait, d_e
        self.wo_early, self.early_stamps = wo_early, early_stamps
        self.touch, self.qtouch, self.codepf = touch, qtouch, codepf

    def a(self, s):
        for ln in s.strip("\n").split("\n"):
            ln = ln.strip()
            if ln:
                self.L.append(ln if ln.endswith(":") or ln.startswith(".") or ln.startswith(";") else "  " + ln)

    def stamp(self, k, early=False):
        if self.early_stamps and k in (11, 12, 13) and not early:
            return
        if self.prof == 1:
            self.a(f"s_memtime {sp(ST0 + 2 * k)}")
        if self.leak[0] >= 0 and k in self.leak[1:3]:
            self.a(f"{'s_memtime' if self.leak[3] == 1 else 's_memrealtime'} {sp(ST0 + (0 if k == self.leak[1] else 2))}")

    def sleep(self, n):
        if n:
            self.a(f"s_sleep {n}")

    def spin(self):
        self.a(f"s_sub_u32 s{sSPIN}, s{sSPIN}, 1\ns_cbranch_scc1 L_exit")

    def check4(self, r, tag, dst="vcc"):
        self.a(f"""v_perm_b32 v{t0}, v{r + 1}, v{r}, s{sSLO}
        v_perm_b32 v{t1}, v{r + 3}, v{r + 2}, s{sSHI}
        v_or_b32 v{t0}, v{t0}, v{t1}
        v_cmp_ne_u32 {dst}, s{tag}, v{t0}""")

    def check2(self, r):
        self.a(f"v_perm_b32 v{t0}, v{r + 1}, v{r}, s{sSLO}\nv_cmp_ne_u32 vcc, s{sTA2}, v{t0}")

    def untag(self, r, n):
        for i in range(n):
            self.a(f"v_and_b32 v{r + i}, 0xffffff00, v{r + i}")

    def tag(self, dst, src, tag):
        self.a(f"v_perm_b32 v{dst}, v{src}, s{tag}, v{vSEL}")

    def pub_cmp(self):
        self.a(f"s_cmp_eq_u32 s{sFAST}, 0")

    def pub(self, name, store, cmp=True):
        if cmp:
            self.pub_cmp()
        self.a(f"s_cbranch_scc1 L_slow_{name}\n{store}\nL_back_{name}:")
        self.cold.append(f"L_slow_{name}:\n{store} sc1\ns_branch L_back_{name}")

    def poll(self, name, loads, tag, dst, depth, slots, primed=False):
        a, n = self.a, len(loads)

        def issue(k):
            for i, ld in enumerate(loads):
                a(ld.format(vr(slots[k] + 4 * i, 4)))

        def test(k, younger):
            for i in range(n):
                a(f"s_waitcnt vmcnt({younger + n - 1 - i})")
                self.check4(slots[k] + 4 * i, tag, "vcc" if i == n - 1 else sp(sT2))
                for e in range(4):
                    a(f"v_and_b32 v{dst + 4 * i + e}, 0xffffff00, v{slots[k] + 4 * i + e}")
            if n > 1:
                a(f"s_or_b64 vcc, vcc, {sp(sT2)}")
        if depth == 1:
            if primed:
                a(f"s_branch L_{name}_w")
            a(f"L_{name}:")
            issue(0)
            self.spin()
            if primed:
                a(f"L_{name}_w:")
            test(0, 0)
            a(f"s_cbranch_vccnz L_{name}")
            return
        for k in range(1 if primed else 0, depth - 1):
            issue(k)
            self.sleep(self.gap)
        a(f"L_{name}:")
        for k in range(depth):
            issue((k + depth - 1) % depth)
            if k == 0:
                self.spin()
            test(k, (depth - 1) * n)
            a(f"s_cbranch_vccz L_{name}_ok" if k < depth - 1 else f"s_cbranch_vccnz L_{name}")
        a(f"L_{name}_ok:")

    def bf16r(self, dst, src):
        self.a(f"v_cvt_pk_bf16_f32 v{dst}, v{src}, v{src}\nv_and_b32 v{dst}, 0xffff0000, v{dst}")

    def allred(self, r, op, rors=(8, 4, 2, 1), tmp=t3):
        for k in rors:
            self.a(f"{op}_dpp v{r}, v{r}, v{r} row_ror:{k} {DPP}")
        for sw in ("v_permlane16_swap_b32", "v_permlane32_swap_b32"):
            self.a(f"v_mov_b32 v{tmp}, v{r}\n{sw} v{r}, v{tmp}\n{op} v{r}, v{r}, v{tmp}")

    def rs4(self, r):
        self.a(f"""v_permlane32_swap_b32 v{r}, v{r + 2}
        v_permlane32_swap_b32 v{r + 1}, v{r + 3}
        v_add_f32 v{r}, v{r}, v{r + 2}
        v_add_f32 v{r + 1}, v{r + 1}, v{r + 3}
        v_permlane16_swap_b32 v{r}, v{r + 1}
        v_add_f32 v{r}, v{r}, v{r + 1}""")

    def matvec8(self, mf, D, out, tag, after=None):
        order = [0, 4, 1, 5, 2, 6, 3, 7]
        sel = [f"v_cndmask_b32 v{out + i}, v{D + 4 * i}, v{D + 16 + 4 * i}, {sp(sG1)}" for i in range(4)]
        for t in order:
            self.a(mf(t))
        if after:
            self.a(after)
        for i in range(4):
            self.a(sel[i])
            if i:
                self.tag(out + i - 1, out + i - 1, tag)
        self.tag(out + 3, out + 3, tag)

    def ln_scale(self, mean, var, tmp):
        self.a(f"v_cvt_pk_bf16_f32 v{tmp}, v{mean}, v{var}")
        self.a(f"v_lshlrev_b32 v{mean}, 16, v{tmp}\nv_and_b32 v{var}, 0xffff0000, v{tmp}")
        self.a(f"v_add_f32 v{var}, 0x3727c5ac, v{var}")
        self.bf16r(var, var)
        self.a(f"v_sqrt_f32 v{var}, v{var}")
        self.bf16r(var, var)

    def perm_pair(self, src0, src1, dst, stride, slot):
        for dd in range(4):
            self.a(f"v_perm_b32 v{dst + stride * (2 * dd) + slot}, v{src1 + dd}, v{src0 + dd}, s{sPLO}")
            self.a(f"v_perm_b32 v{dst + stride * (2 * dd + 1) + slot}, v{src1 + dd}, v{src0 + dd}, s{sPHI}")

    def consts(self):
        self.a(f"""s_mov_b32 s{sSLO}, 0x0c0c0400
        s_mov_b32 s{sSHI}, 0x04000c0c
        s_mov_b32 s{sPLO}, 0x05040100
        s_mov_b32 s{sPHI}, 0x07060302
        s_mov_b32 s{sM[0]}, 0x11111111
        s_mov_b32 s{sM[0] + 1}, 0x11111111
        s_lshl_b64 {sp(sM[1])}, {sp(sM[0])}, 1
        s_lshl_b64 {sp(sM[2])}, {sp(sM[0])}, 2
        s_lshl_b64 {sp(sM[3])}, {sp(sM[0])}, 3
        s_mov_b32 s{sG1}, 0xffff0000
        s_mov_b32 s{sG1 + 1}, 0xffff0000
        s_mov_b32 s{sSPIN}, 0x20000
        s_mov_b32 s{sQN}, 0
        v_mov_b32 v{vSEL}, 0x07060500
        s_getreg_b32 s{sXCC}, hwreg(HW_REG_XCC_ID, 0, 4)
        s_lshl_b32 s{sT0}, s{sG}, 7
        s_add_u32 s{sT0}, s{sT0}, {WS_HI}
        v_lshl_add_u32 v{vHA}, v{vN}, 2, s{sT0}
        s_lshl_b32 s{sT0}, s{sG}, 13
        s_lshl_b32 s{sT1}, s{sW}, 10
        s_add_u32 s{sT0}, s{sT0}, s{sT1}
        s_add_u32 s{sT0}, s{sT0}, {WS_QA + 2048}
        v_lshl_add_u32 v{vQ}, v{vL}, 4, s{sT0}
        s_mov_b64 {sp(sQP)}, {sp(WS)}""")

    def addr_att(self):
        self.a(f"""v_xor_b32 v{t0}, v{vN}, v{vGp}
        v_lshlrev_b32 v{t0}, 4, v{t0}
        v_lshl_add_u32 v{t0}, v{vN}, 8, v{t0}
        s_lshl_b32 s{sT0}, s{sW}, 13
        v_add_u32 v{aKR}, s{sT0}, v{t0}
        s_lshl_b32 s{sT0}, s{sW}, 8
        v_lshl_add_u32 v{aQW}, v{vL}, 2, s{sT0}
        v_lshrrev_b32 v{t0}, 2, v{vN}
        v_lshlrev_b32 v{t1}, 8, v{t0}
        v_lshl_add_u32 v{aQR}, v{vGp}, 4, v{t1}
        s_lshl_b32 s{sT1}, s{sW}, 3
        v_lshl_add_u32 v{aMW}, v{t0}, 5, s{sT1}
        s_mul_i32 s{sT1}, s{sW}, {OR_STRIDE}
        v_lshl_add_u32 v{aOW}, v{vL}, 4, s{sT1}
        v_lshrrev_b32 v{t0}, 2, v{vL}
        v_lshl_add_u32 v{aOR}, v{t0}, 4, s{sT0}
        v_bfe_u32 v{t0}, v{vL}, 1, 1
        v_mul_u32_u24 v{t0}, {OR_D1}, v{t0}
        v_add_u32 v{aOR}, v{t0}, v{aOR}
        v_and_b32 v{t0}, 1, v{vL}
        v_lshl_add_u32 v{aOR}, v{t0}, 3, v{aOR}
        s_lshl_b32 s{sT0}, s{sG}, 16
        s_lshl_b32 s{sT1}, s{sJ}, 11
        s_add_u32 s{sT0}, s{sT0}, s{sT1}
        s_lshl_b32 s{sT1}, s{sW}, 9
        s_add_u32 s{sT0}, s{sT0}, s{sT1}
        s_add_u32 s{sT0}, s{sT0}, {WS_A1}
        v_lshl_add_u32 v{aA1}, v{vL}, 3, s{sT0}
        s_lshl_b32 s{sT0}, s{sG}, 10
        s_lshl_b32 s{sT1}, s{sJ}, 5
        s_add_u32 s{sT0}, s{sT0}, s{sT1}
        s_lshl_b32 s{sT1}, s{sW}, 3
        s_add_u32 s{sT0}, s{sT0}, s{sT1}
        s_add_u32 s{sT0}, s{sT0}, {WS_ML}
        v_mov_b32 v{aML}, s{sT0}""")

    def addr_w(self):
        self.a(f"""s_lshl_b32 s{sT0}, s{sG}, 19
        s_lshl_b32 s{sT1}, s{sJ}, 15
        s_add_u32 s{sT0}, s{sT0}, s{sT1}
        s_lshl_b32 s{sT1}, s{sW}, 8
        s_add_u32 s{sT0}, s{sT0}, s{sT1}
        s_add_u32 s{sT0}, s{sT0}, 4096
        v_lshlrev_b32 v{t0}, 13, v{vGp}
        v_lshl_add_u32 v{t0}, v{vN}, 4, v{t0}
        v_add_u32 v{aWO}, s{sT0}, v{t0}
        v_lshrrev_b32 v{t0}, 1, v{vL}
        s_lshl_b32 s{sT0}, s{sG}, 10
        s_lshr_b32 s{sT1}, s{sJ}, 2
        s_lshl_b32 s{sT1}, s{sT1}, 3
        s_add_u32 s{sT0}, s{sT0}, s{sT1}
        s_add_u32 s{sT0}, s{sT0}, {WS_ML}
        v_lshl_add_u32 v{aMG}, v{t0}, 5, s{sT0}
        s_lshl_b32 s{sA1G}, s{sG}, 16
        s_add_u32 s{sA1G}, s{sA1G}, {WS_A1}
        s_lshl_b32 s{sT1}, s{sJ}, 7
        s_add_u32 s{sT2}, s{sA1G}, s{sT1}
        s_lshl_b32 s{sT1}, s{sW}, 5
        s_add_u32 s{sT0}, s{sT2}, s{sT1}
        v_lshlrev_b32 v{aAG}, 11, v{t0}
        v_and_b32 v{t1}, 1, v{vL}
        v_lshl_add_u32 v{aAG}, v{t1}, 4, v{aAG}
        v_add_u32 v{aAG}, s{sT0}, v{aAG}
        v_lshlrev_b32 v{aVW}, 3, v{t1}
        v_lshl_add_u32 v{aVW}, v{vGp}, 1, v{aVW}
        s_lshl_b32 s{sT1}, s{sW}, 4
        v_add_u32 v{aVW}, s{sT1}, v{aVW}
        v_lshlrev_b32 v{aVR}, 4, v{vGp}
        v_lshrrev_b32 v{t0}, 2, v{vN}
        v_lshlrev_b32 v{aB1}, 11, v{t0}
        v_and_b32 v{t0}, 3, v{vN}
        v_lshl_add_u32 v{aB1}, v{t0}, 5, v{aB1}
        v_and_b32 v{t0}, 1, v{vGp}
        v_lshl_add_u32 v{aB1}, v{t0}, 4, v{aB1}
        s_lshl_b32 s{sT1}, s{sW}, 13
        s_add_u32 s{sT0}, s{sT2}, s{sT1}
        v_add_u32 v{aB1}, s{sT0}, v{aB1}
        s_add_u32 s{sT2}, s{sT2}, {16 * 2048}
        v_lshl_add_u32 v{aHB}, v{vD}, 2, s{sT2}
        v_lshlrev_b32 v{aHW}, 2, v{vD}
        s_lshl_b32 s{sT1}, s{sJ}, 11
        s_add_u32 s{sT0}, s{sA1G}, s{sT1}
        v_lshl_add_u32 v{aBG}, v{vL}, 4, s{sT0}
        v_and_b32 v{t0}, 7, v{vL}
        v_lshlrev_b32 v{aB2}, 2, v{t0}
        v_lshl_add_u32 v{aB2}, v{vGp}, 5, v{aB2}
        s_lshl_b32 s{sT0}, s{sG}, 11
        s_lshl_b32 s{sT1}, s{sJ}, 7
        s_add_u32 s{sT1}, s{sT1}, {WS_B2A}
        s_add_u32 s{sT0}, s{sT0}, s{sT1}
        v_add_u32 v{aB2}, s{sT0}, v{aB2}
        v_lshrrev_b32 v{aHG}, 3, v{vL}
        v_lshlrev_b32 v{aHG}, 11, v{aHG}
        v_lshl_add_u32 v{aHG}, v{t0}, 4, v{aHG}
        v_add_u32 v{aHG}, s{sT1}, v{aHG}
        s_lshl_b32 s{sT0}, s{sG}, 9
        s_lshl_b32 s{sT1}, s{sJ}, 5
        s_add_u32 s{sT0}, s{sT0}, s{sT1}
        s_lshl_b32 s{sT1}, s{sW}, 4
        s_add_u32 s{sT0}, s{sT0}, s{sT1}
        s_add_u32 s{sT0}, s{sT0}, {WS_C}
        v_lshlrev_b32 v{aC0}, 11, v{vL}
        v_add_u32 v{aC0}, s{sT0}, v{aC0}
        v_min_u32 v{aC1}, 47, v{vL}
        v_lshlrev_b32 v{aC1}, 11, v{aC1}
        s_add_u32 s{sT0}, s{sT0}, {64 * 2048}
        v_add_u32 v{aC1}, s{sT0}, v{aC1}
        s_lshl_b32 s{sT0}, s{sG}, 3
        s_lshl_b32 s{sT1}, s{sW}, 2
        s_add_u32 s{sT0}, s{sT0}, s{sT1}
        v_add_u32 v{t2}, s{sT0}, v{vGp}
        v_lshlrev_b32 v{aHR}, 2, v{t2}
        s_lshl_b32 s{sT1}, s{sJ}, 6
        v_lshl_add_u32 v{aOut}, v{t2}, 1, s{sT1}""")

    def addr_f(self):
        self.a(f"""s_lshl_b32 s{sF}, s{sG}, 4
        s_add_u32 s{sF}, s{sF}, s{sJ}
        s_sub_u32 s{sF}, s{sF}, 16
        s_and_b32 s{sKQ}, s{sF}, 3
        s_lshl_b32 s{sT0}, s{sKQ}, 2
        s_add_u32 s{sT0}, s{sT0}, s{sW}
        s_mul_i32 s{sT0}, s{sT0}, {32 * 3584}
        s_lshr_b32 s{sT1}, s{sF}, 2
        s_lshl_b32 s{sT1}, s{sT1}, 7
        s_add_u32 s{sT0}, s{sT0}, s{sT1}
        v_lshrrev_b32 v{t0}, 3, v{vL}
        v_mul_u32_u24 v{t0}, 3584, v{t0}
        v_and_b32 v{t1}, 7, v{vL}
        v_lshl_add_u32 v{t0}, v{t1}, 4, v{t0}
        v_add_u32 v{aFG}, s{sT0}, v{t0}
        s_lshl_b32 s{sT0}, s{sF}, 14
        s_lshl_b32 s{sT1}, s{sW}, 8
        s_add_u32 s{sT0}, s{sT0}, s{sT1}
        v_lshlrev_b32 v{t0}, 12, v{vGp}
        v_lshl_add_u32 v{t0}, v{vN}, 4, v{t0}
        v_add_u32 v{aFD}, s{sT0}, v{t0}
        v_lshrrev_b32 v{t0}, 2, v{vN}
        v_and_b32 v{t1}, 3, v{vL}
        v_lshlrev_b32 v{aTR}, 11, v{vGp}
        v_lshl_add_u32 v{aTR}, v{t0}, 7, v{aTR}
        v_lshl_add_u32 v{aTR}, v{t1}, 3, v{aTR}
        s_lshl_b32 s{sT0}, s{sW}, 5
        v_add_u32 v{aTR}, s{sT0}, v{aTR}
        v_lshlrev_b32 v{aHP}, 9, v{t0}
        v_lshl_add_u32 v{aHP}, v{vGp}, 6, v{aHP}
        v_lshl_add_u32 v{aHP}, v{t1}, 4, v{aHP}
        s_lshl_b32 s{sT0}, s{sG}, 16
        s_add_u32 s{sT0}, s{sT0}, {WS_A1 + 16 * 2048}
        v_add_u32 v{aHP}, s{sT0}, v{aHP}
        s_and_b32 s{sT0}, s{sF}, 0xfc
        s_add_u32 s{sT0}, s{sT0}, s{sW}
        s_lshl_b32 s{sT0}, s{sT0}, 9
        s_lshl_b32 s{sT1}, s{sKQ}, 3
        s_add_u32 s{sT0}, s{sT0}, s{sT1}
        s_add_u32 s{sT0}, s{sT0}, {WS_E}
        v_lshl_add_u32 v{aES}, v{vN}, 5, s{sT0}
        s_lshl_b32 s{sT0}, s{sF}, 9
        s_add_u32 s{sT0}, s{sT0}, {WS_E}
        v_lshrrev_b32 v{t2}, 2, v{vL}
        v_lshl_add_u32 v{aEG}, v{t2}, 5, s{sT0}
        v_and_b32 v{t2}, 1, v{vL}
        v_lshl_add_u32 v{aEG}, v{t2}, 4, v{aEG}
        v_lshlrev_b32 v{aCS}, 9, v{t1}
        v_lshl_add_u32 v{aCS}, v{t0}, 5, v{aCS}
        v_and_b32 v{t1}, 1, v{vGp}
        v_lshl_add_u32 v{aCS}, v{t1}, 4, v{aCS}
        s_lshl_b32 s{sT0}, s{sF}, 11
        s_lshl_b32 s{sT1}, s{sW}, 7
        s_add_u32 s{sT0}, s{sT0}, s{sT1}
        s_add_u32 s{sT0}, s{sT0}, {WS_C}
        v_add_u32 v{aCS}, s{sT0}, v{aCS}
        s_lshl_b32 s{sT0}, s{sKQ}, 4
        s_mov_b64 {sp(sKM)}, 0xffff
        s_lshl_b64 {sp(sKM)}, {sp(sKM)}, s{sT0}""")
        for r in range(aB2, aOut + 1):
            self.a(f"v_mov_b32 v{r}, 0")

    def tags(self):
        self.a(f"""s_add_u32 s{sE}, s{sE}, 1
        s_and_b32 s{sT0}, s{sE}, 0xff
        s_mul_i32 s{sTA4}, s{sT0}, 0x01010101
        s_and_b32 s{sTA2}, s{sTA4}, 0xffff
        s_xor_b32 s{sTB4}, s{sTA4}, 0x40404040
        s_xor_b32 s{sTH4}, s{sTA4}, 0x80808080
        s_lshl_b32 s{sHX}, s{sE}, 4
        s_or_b32 s{sHX}, s{sHX}, s{sXCC}""")

    def census_load(self, off):
        self.a(f"global_load_dword v{vHI}, v{vHA}, {sp(WS)} offset:{off} sc1")

    def census_eval(self):
        if self.force_slow:
            self.a(f"s_mov_b32 s{sFAST}, 0")
        else:
            self.a(f"v_cmp_ne_u32 vcc, s{sHX}, v{vHI}\ns_cmp_eq_u64 vcc, 0\ns_cselect_b32 s{sFAST}, 1, 0")

    def kload(self, i):
        if self.spread:
            self.a(f"s_add_u32 m0, s{sT3}, {L_K + 1024 * i}\nglobal_load_lds_dwordx4 v{vKS + i}, {sp(KP)}{self.ntk}")
            return
        if i % 4 == 0:
            self.a(f"s_add_u32 m0, s{sT3}, {L_K + 1024 * i}")
        self.a(f"global_load_lds_dwordx4 v{vKD + i % 4}, {sp(KP if i < 4 else sKB)} offset:{1024 * (i % 4)}{self.ntk}")

    def kloads(self, lo=0, hi=8):
        if lo == 0:
            self.a(f"s_lshl_b32 s{sT3}, s{sW}, 13")
            if not self.spread:
                self.a(f"s_add_u32 s{sKB}, s{KP}, 4096\ns_addc_u32 s{sKB + 1}, s{KP + 1}, 0")
        for i in range(lo, hi):
            self.kload(i)

    def kreads(self):
        for s in range(4):
            if s:
                self.a(f"v_xor_b32 v{t1}, {64 * s}, v{aKR}")
            for tau in range(2):
                self.a(f"ds_read_b128 {vr(RK + 16 * tau + 4 * s, 4)}, v{t1 if s else aKR} offset:{L_K + 4096 * tau}")

    def qloads(self, base):
        self.a(f"global_load_dwordx4 {vr(RX, 4)}, v{vQ}, {sp(base)} offset:-2048 sc1")
        self.a(f"global_load_dwordx4 {vr(RX + 4, 4)}, v{vQ}, {sp(base)} offset:2048 sc1")

    def qcheck(self):
        self.a(f"""v_xor_b32 v{t0}, s{sE}, v{RX + 1}
        v_xor_b32 v{t1}, s{sE}, v{RX + 3}
        v_xor_b32 v{t2}, s{sE}, v{RX + 5}
        v_xor_b32 v{t3}, s{sE}, v{RX + 7}
        v_or3_b32 v{t0}, v{t0}, v{t1}, v{t2}
        v_or_b32 v{t0}, v{t0}, v{t3}
        v_cmp_ne_u32 vcc, 0, v{t0}""")

    def vload(self, jj):
        if self.spread:
            self.a(f"global_load_dwordx4 {vr(RV + 4 * jj, 4)}, v{vV if jj < 4 else vV2}, {sp(VP)} offset:{256 * (jj % 4)}{self.ntv}")
            return
        off = (jj * 256 if jj < 4 else 4096 + (jj - 4) * 256) - 2048
        self.a(f"global_load_dwordx4 {vr(RV + 4 * jj, 4)}, v{vV}, {sp(VP)} offset:{off}{self.ntv}")

    def prologue(self):
        a = self.a
        if self.prof:
            a(f"s_memrealtime {sp(ST0 + 30)}")
        self.stamp(0)
        a(f"""s_cmpk_ge_u32 s2, 0x100
        s_cbranch_scc1 L_end
        s_load_dwordx16 s[4:19], s[0:1], 0
        s_load_dwordx8 s[20:27], s[0:1], 64
        v_lshrrev_b32 v{t0}, 6, v0
        v_and_b32 v{vL}, 63, v0
        v_readfirstlane_b32 s{sW}, v{t0}
        s_and_b32 s{sG}, s2, 7
        s_lshr_b32 s{sJ}, s2, 3
        v_and_b32 v{vN}, 15, v{vL}
        v_lshrrev_b32 v{vGp}, 4, v{vL}
        """)
        if self.spread:
            S = 1 << 17
            flip = 0x2000 if self.spread == 2 else 0
            a(f"""s_lshl_b32 s{sT0}, s{sG}, 24
            s_lshl_b32 s{sT1}, s{sJ}, 12
            s_add_u32 s{sT0}, s{sT0}, s{sT1}
            s_lshl_b32 s{sT1}, s{sW}, 10
            s_add_u32 s{sT0}, s{sT0}, s{sT1}
            s_add_u32 s{sT0}, s{sT0}, 0xF00000
            v_xor_b32 v{t0}, v{vN}, v{vGp}
            v_lshlrev_b32 v{t0}, 4, v{t0}
            v_lshl_add_u32 v{t0}, v{vGp}, 8, v{t0}
            v_add_u32 v{vKS}, s{sT0}, v{t0}""")
            for i in range(1, 4):
                a(f"v_xor_b32 v{vKS + i}, {64 * i + S * i + flip * (i & 1)}, v{vKS}")
            for i in range(4, 8):
                a(f"v_add_u32 v{vKS + i}, {4 * S}, v{vKS + i - 4}")
            a(f"""v_lshlrev_b32 v{vV}, 17, v{vGp}
            v_lshl_add_u32 v{vV}, v{vN}, 4, v{vV}
            v_add_u32 v{vV}, s{sT0}, v{vV}""")
            if flip:
                a(f"v_lshlrev_b32 v{t0}, 9, v{vL}\nv_and_b32 v{t0}, 0x2000, v{t0}\nv_xor_b32 v{vV}, v{t0}, v{vV}")
            a(f"v_add_u32 v{vV2}, {4 * S}, v{vV}")
        else:
            a(f"""s_lshl_b32 s{sT0}, s{sG}, 24
        s_lshl_b32 s{sT1}, s{sJ}, 15
        s_add_u32 s{sT0}, s{sT0}, s{sT1}
        s_lshl_b32 s{sT1}, s{sW}, 13
        s_add_u32 s{sT0}, s{sT0}, s{sT1}
        s_add_u32 s{sT0}, s{sT0}, {0xF00000 + 2048}
        v_xor_b32 v{t0}, v{vN}, v{vGp}
        v_lshlrev_b32 v{t0}, 4, v{t0}
        v_lshl_add_u32 v{t0}, v{vGp}, 8, v{t0}
        s_sub_u32 s{sT1}, s{sT0}, 2048
        v_add_u32 v{vKD}, s{sT1}, v{t0}
        v_xor_b32 v{vKD + 1}, 64, v{vKD}
        v_xor_b32 v{vKD + 2}, 128, v{vKD}
        v_xor_b32 v{vKD + 3}, 192, v{vKD}
        v_lshlrev_b32 v{vV}, 10, v{vGp}
        v_lshl_add_u32 v{vV}, v{vN}, 4, v{vV}
        v_add_u32 v{vV}, s{sT0}, v{vV}""")
        a(f"""        s_cmp_eq_u32 s{sW}, 4
        s_cbranch_scc1 L_helper
        s_cmp_ge_u32 s{sJ}, 16
        s_cbranch_scc1 L_q_start""")

    def w_start(self, part):
        a = self.a
        if part == 0:
            a("s_waitcnt lgkmcnt(0)")
            if self.early_stamps:
                self.stamp(11, True)
            self.kloads(0, self.wk0)
            if self.early_stamps:
                self.stamp(12, True)
            a(f"s_load_dword s{sE}, {sp(WS)}, 0\ns_branch L_w_rest")
            return
        a("L_w_rest:\ns_barrier")
        if self.leak[3] >= 2:
            a(f"""s_waitcnt lgkmcnt(0)
            s_lshl_b32 s{sT0}, s2, 7
            s_add_u32 s{sT0}, s{sT0}, {WS_ST}
            v_mov_b32 v{t0}, s{sT0}
            v_mov_b32 v{t1}, s{ST0}
            s_cmp_lg_u32 s{sJ}, 0
            s_cbranch_scc1 L_nots
            global_store_dword v{t0}, v{t1}, {sp(WS)} sc1
            s_waitcnt vmcnt(0)
            L_nots:""")
        self.stamp(1)
        a(f"""v_and_b32 v{t0}, 1, v{vL}
        v_lshlrev_b32 v{vD}, 4, v{t0}
        v_lshl_add_u32 v{vD}, v{vGp}, 2, v{vD}
        v_bfe_u32 v{t0}, v{vL}, 2, 1
        v_lshl_add_u32 v{vD}, v{t0}, 1, v{vD}
        v_bfe_u32 v{t0}, v{vL}, 1, 1
        v_add_u32 v{vD}, v{t0}, v{vD}
        s_lshl_b32 s{sT0}, s{sJ}, 6
        v_lshl_add_u32 v{t0}, v{vD}, 1, s{sT0}
        global_load_ushort v11, v{t0}, {sp(X)}""")
        for i in range(self.wv0):
            self.vload(i)
        self.consts()
        self.addr_att()
        self.addr_w()
        for i in range(self.wk0, 8):
            a(f"s_waitcnt vmcnt({self.wk0})")
            self.kload(i)
        for i in range(self.wv0, 8):
            a(f"s_waitcnt vmcnt({self.wk0 + self.wv0})")
            self.vload(i)
        self.stamp(2)
        a("s_waitcnt lgkmcnt(0)")
        self.tags()
        a("s_waitcnt vmcnt(8)")
        self.kreads()
        for p in range(3):
            a(f"s_waitcnt vmcnt({6 - 2 * p})")
            self.perm_pair(RV + 8 * p, RV + 8 * p + 4, RB, 4, p)
        self.qloads(WS)
        self.census_load(0)
        a("s_waitcnt vmcnt(3)")
        self.stamp(3)
        self.perm_pair(RV + 24, RV + 28, RB, 4, 3)
        a("s_waitcnt vmcnt(0)")
        self.qcheck()
        a("s_cbranch_vccz L_qok_w")

    def q_start(self, part):
        a = self.a
        XA, XB, XF, ACC, XN = RA, RA + 4, RA + 8, RK, RD
        if part == 0:
            self.q_issue(XA, XB)
            return
        self.q_rest(XA, XB, XF, ACC, XN)

    def q_issue(self, XA, XB):
        a = self.a
        a("L_q_start:")
        a(f"""v_lshlrev_b32 v{t0}, 4, v{vL}
        v_lshrrev_b32 v{t2}, 3, v{vL}
        s_and_b32 s{sT2}, s{sJ}, 1
        s_lshl_b32 s{sT2}, s{sT2}, 2
        s_add_u32 s{sT2}, s{sT2}, s{sW}
        s_lshl_b32 s{sT0}, s{sT2}, 7
        v_lshl_add_u32 v{t1}, v{t2}, 4, s{sT0}
        s_lshl_b32 s{sT0}, s{sT2}, 19
        s_lshl_b32 s{sT1}, s{sG}, 10
        s_add_u32 s{sT0}, s{sT0}, s{sT1}
        s_bfe_u32 s{sT1}, s{sJ}, 0x30001
        s_xor_b32 s{sT1}, s{sT1}, {self.cbx}
        s_lshl_b32 s{sT1}, s{sT1}, 7
        s_add_u32 s{sT0}, s{sT0}, s{sT1}
        v_lshlrev_b32 v{t2}, 16, v{t2}
        v_and_b32 v{t3}, 7, v{vL}
        v_lshl_add_u32 v{t2}, v{t3}, 4, v{t2}
        v_add_u32 v{t2}, s{sT0}, v{t2}
        s_waitcnt lgkmcnt(0)""")
        if self.early_stamps:
            self.stamp(11, True)
        a(f"""global_load_dwordx4 {vr(XA, 4)}, v{t0}, {sp(X)}
        global_load_dwordx4 {vr(XB, 4)}, v{t1}, {sp(X)}""")
        for i in range(8):
            a(f"global_load_dwordx4 {vr(RV + 4 * i, 4)}, v{t2}, {sp(WQ)}{self.ntq}")
            if i < 7:
                a(f"v_add_u32 v{t2}, 0x2000, v{t2}")
        if self.early_stamps:
            self.stamp(12, True)
        a(f"s_load_dword s{sE}, {sp(WS)}, 0\ns_branch L_q_rest")

    def q_rest(self, XA, XB, XF, ACC, XN):
        a = self.a
        a("L_q_rest:\ns_barrier")
        self.stamp(1)
        self.consts()
        self.addr_att()
        self.addr_f()
        a("s_waitcnt vmcnt(8)")
        for i in range(4):
            a(f"v_lshlrev_b32 v{XF + 2 * i}, 16, v{XA + i}\nv_and_b32 v{XF + 2 * i + 1}, 0xffff0000, v{XA + i}")
        a(f"v_add_f32 v{t0}, v{XF}, v{XF + 1}")
        for i in range(2, 8):
            a(f"v_add_f32 v{t0}, v{t0}, v{XF + i}")
        self.allred(t0, "v_add_f32")
        a(f"v_mul_f32 v{t0}, 0x3b000000, v{t0}")
        for i in range(8):
            a(f"v_sub_f32 v{XF + i}, v{XF + i}, v{t0}")
        a(f"v_mul_f32 v{t1}, v{XF}, v{XF}")
        for i in range(1, 8):
            a(f"v_fmac_f32 v{t1}, v{XF + i}, v{XF + i}")
        self.allred(t1, "v_add_f32")
        a(f"v_mul_f32 v{t1}, 0x3b000000, v{t1}")
        self.ln_scale(t0, t1, t2)
        a(f"""v_rcp_f32 v{t2}, v{t1}
        v_fma_f32 v{t3}, -v{t1}, v{t2}, 1.0
        v_fmac_f32 v{t2}, v{t3}, v{t2}""")
        for i in range(4):
            a(f"v_lshlrev_b32 v{XF + 2 * i}, 16, v{XB + i}\nv_and_b32 v{XF + 2 * i + 1}, 0xffff0000, v{XB + i}")
        for i in range(8):
            a(f"v_sub_f32 v{XF + i}, v{XF + i}, v{t0}")
        for i in range(4):
            a(f"v_cvt_pk_bf16_f32 v{XB + i}, v{XF + 2 * i}, v{XF + 2 * i + 1}")
        for i in range(4):
            a(f"v_lshlrev_b32 v{XF + 2 * i}, 16, v{XB + i}\nv_and_b32 v{XF + 2 * i + 1}, 0xffff0000, v{XB + i}")
        for i in range(8):
            a(f"""v_mul_f32 v{ACC + i}, v{XF + i}, v{t2}
            v_fma_f32 v{XF + i}, -v{ACC + i}, v{t1}, v{XF + i}
            v_fmac_f32 v{ACC + i}, v{XF + i}, v{t2}""")
        for i in range(4):
            a(f"v_cvt_pk_bf16_f32 v{XN + i}, v{ACC + 2 * i}, v{ACC + 2 * i + 1}")
        for i in range(8):
            a(f"v_mov_b32 v{ACC + i}, 0")
        a(f"""v_and_b32 v{t0}, 7, v{vL}
        v_lshlrev_b32 v{t0}, 7, v{t0}
        v_lshl_add_u32 v{t0}, v{vGp}, 5, v{t0}
        s_lshl_b32 s{sT0}, s{sW}, 2
        s_add_u32 s{sT0}, s{sT0}, {L_QP}
        v_add_u32 v{vA}, s{sT0}, v{t0}
        v_lshlrev_b32 v{vB}, 4, v{vL}
        s_lshl_b32 s{sT0}, s{sG}, 13
        s_and_b32 s{sT1}, s{sJ}, 1
        s_lshl_b32 s{sT1}, s{sT1}, 12
        s_add_u32 s{sT0}, s{sT0}, s{sT1}
        s_bfe_u32 s{sT1}, s{sJ}, 0x30001
        s_xor_b32 s{sT1}, s{sT1}, {self.cbx}
        s_lshl_b32 s{sT1}, s{sT1}, 9
        s_add_u32 s{sT0}, s{sT0}, s{sT1}
        s_add_u32 s{sT0}, s{sT0}, {WS_QA}
        v_lshl_add_u32 v{vC}, v{vL}, 3, s{sT0}""")
        a("s_waitcnt lgkmcnt(0)")
        self.tags()
        PR = RK + 8
        for p in range(4):
            a(f"s_waitcnt vmcnt({6 - 2 * p})")
            if p == 3:
                self.stamp(2)
            self.perm_pair(RV + 8 * p, RV + 8 * p + 4, PR, 1, 0)
            for t in range(8):
                a(f"v_dot2c_f32_bf16 v{ACC + t}, v{PR + t}, v{XN + p}")
        for t in range(4):
            a(f"v_permlane32_swap_b32 v{ACC + t}, v{ACC + t + 4}")
        for t in range(4):
            a(f"v_add_f32 v{ACC + t}, v{ACC + t}, v{ACC + t + 4}")
        for t in range(2):
            a(f"v_permlane16_swap_b32 v{ACC + t}, v{ACC + t + 2}")
        for t in range(2):
            a(f"v_add_f32 v{ACC + t}, v{ACC + t}, v{ACC + t + 2}")
        for t in range(2):
            a(f"v_add_f32_dpp v{ACC + t}, v{ACC + t}, v{ACC + t} row_ror:8 {DPP}")
        a(f"""s_mov_b32 exec_lo, 0x00ff00ff
        s_mov_b32 exec_hi, 0x00ff00ff
        ds_write2_b32 v{vA}, v{ACC}, v{ACC + 1} offset0:0 offset1:4
        s_mov_b64 exec, -1
        s_waitcnt lgkmcnt(0)
        s_barrier
        s_cmp_lg_u32 s{sW}, 0
        s_cbranch_scc1 L_q_pubdone
        ds_read_b128 {vr(ACC, 4)}, v{vB} offset:{L_QP}
        s_waitcnt lgkmcnt(0)
        v_add_f32 v{ACC}, v{ACC}, v{ACC + 1}
        v_add_f32 v{ACC + 2}, v{ACC + 2}, v{ACC + 3}
        v_mov_b32 v{ACC + 1}, s{sE}
        v_add_f32 v{ACC}, v{ACC}, v{ACC + 2}
        s_lshl_b32 s{sT0}, s{sG}, 7
        s_lshl_b32 s{sT1}, s{sJ}, 2
        s_add_u32 s{sT0}, s{sT0}, s{sT1}
        s_add_u32 s{sT0}, s{sT0}, {WS_HI}
        global_store_dwordx2 v{vC}, {vr(ACC, 2)}, {sp(WS)}
        v_add_u32 v{vC}, {WS_QB - WS_QA}, v{vC}
        v_mov_b32 v{t0}, s{sT0}
        v_mov_b32 v{t1}, s{sHX}
        global_store_dwordx2 v{vC}, {vr(ACC, 2)}, {sp(WS)} sc1
        s_mov_b64 exec, 1
        global_store_dword v{t0}, v{t1}, {sp(WS)}
        s_mov_b64 exec, -1
        L_q_pubdone:
        s_barrier""")
        self.stamp(3)
        self.kloads()
        a(f"s_cmp_lg_u32 s{sW}, 0\ns_cbranch_scc1 L_q_k0\ns_waitcnt vmcnt({self.qk_wait})\nL_q_k0:\ns_barrier")
        self.qloads(WS)
        self.census_load(0)
        a("s_barrier")
        for jj in range(8):
            self.vload(jj)
        a("s_waitcnt vmcnt(11)")
        self.kreads()
        a("s_waitcnt vmcnt(8)")
        self.qcheck()
        a("s_cbranch_vccz L_qok_q")

    def wo_load(self, jj):
        self.a(f"global_load_dwordx4 {vr(RW + 4 * jj, 4)}, v{aWO}, {sp(WO)} offset:{1024 * jj - 4096}{self.nto}")

    def attention(self, role):
        a = self.a
        q = role == "q"
        B = RK if q else RB
        a(f"L_qpoll_{role}:")
        self.qloads(sQP)
        self.census_load(0)
        self.spin()
        a(f"""s_add_u32 s{sQN}, s{sQN}, 1
        s_cmp_eq_u32 s{sQN}, {self.qa_tries}
        s_cselect_b32 s{sT0}, {WS_QB - WS_QA}, 0
        s_add_u32 s{sQP}, s{sQP}, s{sT0}
        s_addc_u32 s{sQP + 1}, s{sQP + 1}, 0
        s_waitcnt vmcnt(0)""")
        self.qcheck()
        a(f"s_cbranch_vccnz L_qpoll_{role}\nL_qok_{role}:")
        self.stamp(4)
        a(f"""v_add_f32 v{t0}, v{RX}, v{RX + 4}
        v_add_f32 v{t1}, v{RX + 2}, v{RX + 6}
        v_cvt_pk_bf16_f32 v{t0}, v{t0}, v{t1}
        ds_write_b32 v{aQW}, v{t0} offset:{L_QS}
        s_waitcnt lgkmcnt(0)
        s_barrier""")
        for s in range(4):
            a(f"ds_read_b128 {vr(RA + 4 * s, 4)}, v{aQR} offset:{L_QS + 64 * s}")
        if not q:
            for jj in range(self.wo_early):
                self.wo_load(jj)
        self.census_eval()
        for s in range(4):
            a(f"s_waitcnt lgkmcnt({3 - s})")
            for tau in range(2):
                c = "0" if s == 0 else vr(RD + 4 * tau, 4)
                a(f"v_mfma_f32_16x16x32_bf16 {vr(RD + 4 * tau, 4)}, {vr(RK + 16 * tau + 4 * s, 4)}, {vr(RA + 4 * s, 4)}, {c}")
        for rnd in range(2):
            for i in range(4):
                a(f"v_cvt_pk_bf16_f32 v{RP + i}, v{RD + 2 * i}, v{RD + 2 * i + 1}")
            for i in range(4):
                a(f"v_lshlrev_b32 v{RD + 2 * i}, 16, v{RP + i}\nv_and_b32 v{RD + 2 * i + 1}, 0xffff0000, v{RP + i}")
            if rnd == 0:
                for i in range(8):
                    a(f"v_mul_f32 v{RD + i}, 0x3db504f3, v{RD + i}")
        a(f"""v_max3_f32 v{t0}, v{RD}, v{RD + 1}, v{RD + 2}
        v_max3_f32 v{t1}, v{RD + 3}, v{RD + 4}, v{RD + 5}
        v_max3_f32 v{t0}, v{t0}, v{RD + 6}, v{RD + 7}
        v_max_f32 v{t0}, v{t0}, v{t1}""")
        self.allred(t0, "v_max_f32", rors=())
        a(f"v_mul_f32 v{t2}, 0xbfb8aa3b, v{t0}\ns_mov_b32 s{sT0}, {LOG2E}")
        for i in range(8):
            a(f"v_fma_f32 v{RD + i}, v{RD + i}, s{sT0}, v{t2}")
        for i in range(8):
            a(f"v_exp_f32 v{RD + i}, v{RD + i}")
        a(f"""v_pk_add_f32 {vr(RA, 2)}, {vr(RD, 2)}, {vr(RD + 2, 2)}
        v_pk_add_f32 {vr(RA + 2, 2)}, {vr(RD + 4, 2)}, {vr(RD + 6, 2)}
        v_cvt_pk_bf16_f32 v{RP}, v{RD}, v{RD + 1}
        v_pk_add_f32 {vr(RA, 2)}, {vr(RA, 2)}, {vr(RA + 2, 2)}
        v_cvt_pk_bf16_f32 v{RP + 1}, v{RD + 2}, v{RD + 3}
        v_add_f32 v{t1}, v{RA}, v{RA + 1}
        v_cvt_pk_bf16_f32 v{RP + 2}, v{RD + 4}, v{RD + 5}
        v_mov_b32 v{t3}, v{t1}
        v_cvt_pk_bf16_f32 v{RP + 3}, v{RD + 6}, v{RD + 7}""")
        mask = [f"v_cndmask_b32 v{RA + 4 * r + i}, 0, v{RP + i}, {sp(sM[r])}" for r in range(4) for i in range(4)]
        a(mask[0])
        a(f"v_permlane16_swap_b32 v{t1}, v{t3}\nv_add_f32 v{t1}, v{t1}, v{t3}\nv_mov_b32 v{t3}, v{t1}")
        a(mask[1]); a(mask[2])
        a(f"v_permlane32_swap_b32 v{t1}, v{t3}\nv_add_f32 v{t1}, v{t1}, v{t3}")
        a(f"ds_write_b64 v{aMW}, {vr(t0, 2)} offset:{L_MX}")
        for m in mask[3:]:
            a(m)
        a(f"""s_lshl_b32 s{sT0}, s{sW}, 5
        v_mov_b32 v{t0}, s{sT0}
        s_waitcnt lgkmcnt(0)
        s_barrier
        ds_read_b128 {vr(RD, 4)}, v{t0} offset:{L_MX}
        ds_read_b128 {vr(RD + 4, 4)}, v{t0} offset:{L_MX + 16}""")
        self.stamp(5)
        for p in range(2 if q else 0):
            a(f"s_waitcnt vmcnt({6 - 2 * p})")
            self.perm_pair(RV + 8 * p, RV + 8 * p + 4, RK, 4, p)
        a(f"""s_waitcnt lgkmcnt(0)
        v_max3_f32 v{t2}, v{RD}, v{RD + 2}, v{RD + 4}
        v_max_f32 v{t2}, v{t2}, v{RD + 6}""")
        for i in range(4):
            a(f"v_sub_f32 v{vF + i}, v{RD + 2 * i}, v{t2}")
        for i in range(4):
            a(f"v_mul_f32 v{vF + i}, {LOG2E}, v{vF + i}")
        for i in range(4):
            a(f"v_exp_f32 v{vF + i}, v{vF + i}")
        a(f"v_mul_f32 v{t3}, v{vF}, v{RD + 1}")
        for i in range(1, 4):
            a(f"v_fmac_f32 v{t3}, v{vF + i}, v{RD + 2 * i + 1}")
        self.tag(t2, t2, sTA4)
        self.tag(t3, t3, sTA4)
        a("s_mov_b64 exec, 1")
        self.pub("ml" + role, f"global_store_dwordx2 v{aML}, {vr(t2, 2)}, {sp(WS)}")
        a("s_mov_b64 exec, -1")
        if q:
            a("s_waitcnt vmcnt(3)")
            self.perm_pair(RV + 16, RV + 20, RK, 4, 2)
            a("s_waitcnt vmcnt(1)")
        self.stamp(6)
        s0, s1 = RV + 24, RV + 28

        def pm(t):
            if q:
                a(f"v_perm_b32 v{RK + 4 * t + 3}, v{s1 + t // 2}, v{s0 + t // 2}, s{sPHI if t % 2 else sPLO}")

        def mf(t):
            d = vr(RD + 4 * (t // 4), 4)
            a(f"v_mfma_f32_16x16x32_bf16 {d}, {vr(RA + 4 * (t % 4), 4)}, {vr(B + 4 * t, 4)}, {'0' if t % 4 == 0 else d}")
        order = [0, 4, 1, 5, 2, 6, 3, 7]
        pm(order[0]); pm(order[1]); pm(order[2])
        for i, t in enumerate(order):
            mf(t)
            if i + 3 < 8:
                pm(order[i + 3])
        a(f"""ds_write_b128 v{aOW}, {vr(RD, 4)} offset:{L_OR}
        ds_write_b128 v{aOW}, {vr(RD + 4, 4)} offset:{L_OR + OR_D1}
        s_waitcnt lgkmcnt(0)
        s_barrier""")
        for w in range(4):
            a(f"ds_read_b64 {vr(RD + 2 * w, 2)}, v{aOR} offset:{L_OR + OR_STRIDE * w}")
        self.pub_cmp()
        a(f"""s_waitcnt lgkmcnt(2)
        v_pk_mul_f32 {vr(RD, 2)}, {vr(RD, 2)}, {vr(vF, 2)} op_sel_hi:[1,0]
        v_pk_fma_f32 {vr(RD, 2)}, {vr(RD + 2, 2)}, {vr(vF, 2)}, {vr(RD, 2)} op_sel:[0,1,0] op_sel_hi:[1,1,1]
        s_waitcnt lgkmcnt(0)
        v_pk_fma_f32 {vr(RD, 2)}, {vr(RD + 4, 2)}, {vr(vF + 2, 2)}, {vr(RD, 2)} op_sel_hi:[1,0,1]
        v_pk_fma_f32 {vr(RD, 2)}, {vr(RD + 6, 2)}, {vr(vF + 2, 2)}, {vr(RD, 2)} op_sel:[0,1,0] op_sel_hi:[1,1,1]""")
        self.tag(RD, RD, sTA4)
        self.tag(RD + 1, RD + 1, sTA4)
        self.pub("a1" + role, f"global_store_dwordx2 v{aA1}, {vr(RD, 2)}, {sp(WS)}", cmp=False)
        if q or self.wo_early < 8:
            a("s_barrier")
        self.stamp(7)

    def w_tail(self):
        a = self.a
        for jj in range(self.wo_early, 8):
            self.wo_load(jj)
        a(f"v_lshlrev_b32 v11, 16, v11\nv_cmp_gt_u32 {sp(sM[0])}, 48, v{vL}")
        WT = RX + 4
        for p in range(4):
            last = 2 * p + 1
            extra = 2 if p == 3 else 0
            a(f"s_waitcnt vmcnt({7 - last + (2 if last < self.wo_early else 0) + extra})")
            self.perm_pair(RW + 8 * p, RW + 8 * p + 4, RK, 4, p)
            if p == 2:
                self.census_load(64)
                a(f"global_load_dwordx2 {vr(RX, 2)}, v{aMG}, {sp(WS)} sc1")
        self.stamp(8)
        a(f"s_branch L_mlwait\nL_mlpoll:\nglobal_load_dwordx2 {vr(RX, 2)}, v{aMG}, {sp(WS)} sc1")
        self.spin()
        a("L_mlwait:\ns_waitcnt vmcnt(0)")
        self.check2(RX)
        a("s_cbranch_vccnz L_mlpoll")
        a(f"""global_load_dwordx4 {vr(RA, 4)}, v{aAG}, {sp(WS)} sc1
        v_and_b32 v{RX}, 0xffff0000, v{RX}
        v_and_b32 v{RX + 1}, 0xffffff00, v{RX + 1}
        v_mov_b32 v{t2}, v{RX}""")
        self.allred(t2, "v_max_f32", rors=(8, 4, 2))
        a(f"""v_sub_f32 v{WT}, v{RX}, v{t2}
        v_mul_f32 v{WT}, {LOG2E}, v{WT}
        v_exp_f32 v{WT}, v{WT}
        v_mul_f32 v{t2}, v{WT}, v{RX + 1}""")
        self.allred(t2, "v_add_f32", rors=(8, 4, 2))
        a(f"v_rcp_f32 v{t2}, v{t2}\nv_mul_f32 v{WT}, v{WT}, v{t2}")
        self.poll("a1poll", [f"global_load_dwordx4 {{}}, v{aAG}, {sp(WS)} sc1"], sTA4, RD, self.pa1, [RA, RA + 4, RA + 8, RA + 12], primed=True)
        self.stamp(9)
        for i in range(4):
            a(f"v_mul_f32 v{RD + i}, v{RD + i}, v{WT}")
        self.rs4(RD)
        for k in (8, 4, 2):
            a(f"v_add_f32_dpp v{RD}, v{RD}, v{RD} row_ror:{k} {DPP}")
        a(f"""v_cvt_pk_bf16_f32 v{RD}, v{RD}, v{RD}
        ds_write_b16 v{aVW}, v{RD} offset:{L_OV}
        s_waitcnt lgkmcnt(0)
        s_barrier
        ds_read_b128 {vr(RX, 4)}, v{aVR} offset:{L_OV}""")
        self.pub_cmp()
        a("s_waitcnt lgkmcnt(0)")
        self.matvec8(lambda t: f"v_mfma_f32_16x16x32_bf16 {vr(RV + 4 * t, 4)}, {vr(RX, 4)}, {vr(RK + 4 * t, 4)}, 0", RV, RD, sTB4)
        self.pub("b1", f"global_store_dwordx4 v{aB1}, {vr(RD, 4)}, {sp(WS)}", cmp=False)
        self.stamp(10)
        a(f"""s_cmp_ge_u32 s{sW}, 2
        s_cbranch_scc1 L_exit
        s_cmp_eq_u32 s{sW}, 1
        s_cbranch_scc1 L_final""")
        self.sleep(self.d_b1)
        self.poll("b1poll", [f"global_load_dwordx4 {{}}, v{aBG}, {sp(WS)} sc1", f"global_load_dwordx4 {{}}, v{aBG}, {sp(WS)} offset:1024 sc1"],
                  sTB4, RV, self.pb1, [RA, RA + 8, RA + 16, RA + 24])
        self.stamp(11)
        a(f"""v_pk_add_f32 {vr(RV, 2)}, {vr(RV, 2)}, {vr(RV + 4, 2)}
        v_pk_add_f32 {vr(RV + 2, 2)}, {vr(RV + 2, 2)}, {vr(RV + 6, 2)}""")
        self.rs4(RV)
        a(f"v_add_f32_dpp v{RV}, v{RV}, v{RV} row_ror:8 {DPP}")
        self.tag(RV, RV, sTA4)
        a(f"global_store_dword v{aB2}, v{RV}, {sp(WS)} sc1")
        self.census_eval()
        self.sleep(self.d_b2a)
        self.poll("b2poll", [f"global_load_dwordx4 {{}}, v{aHG}, {sp(WS)} sc1"], sTA4, RV, self.pb2, [RW, RW + 4, RW + 8, RW + 12])
        self.stamp(12)
        self.rs4(RV)
        self.pub_cmp()
        a(f"v_add_f32_dpp v{RV}, v{RV}, v{RV} row_ror:8 {DPP}")
        self.bf16r(RV, RV)
        a(f"""v_add_f32 v{RV}, v{RV}, v11
        v_cvt_pk_bf16_f32 v{RV}, 0, v{RV}""")
        self.tag(RV + 1, RV, sTH4)
        self.pub("b2b", f"global_store_dword v{aHB}, v{RV + 1}, {sp(WS)}", cmp=False)
        a(f"""ds_write_b32 v{aHW}, v{RV} offset:{L_HV}
        L_final:
        s_cmp_ge_u32 s{sG}, 4
        s_cbranch_scc1 L_exit
        s_waitcnt lgkmcnt(0)
        s_barrier
        ds_read_b32 v11, v{aHR} offset:{L_HV}""")
        if self.ctrig:
            a(f"""s_add_u32 s{sT0}, s{sA1G}, {16 * 2048}
            v_lshl_add_u32 v{aBG}, v{vL}, 4, s{sT0}""")
            self.poll("hseen", [f"global_load_dwordx4 {{}}, v{aBG}, {sp(WS)} sc1", f"global_load_dwordx4 {{}}, v{aBG}, {sp(WS)} offset:1024 sc1"],
                      sTH4, RV, 1, [RA])
        a("s_waitcnt lgkmcnt(0)")
        self.sleep(self.d_c)
        self.poll("cpoll", [f"global_load_dwordx4 {{}}, v{aC0}, {sp(WS)} sc1", f"global_load_dwordx4 {{}}, v{aC1}, {sp(WS)} sc1"],
                  sTA4, RV, self.pc, [RB, RB + 8, RB + 16, RB + 24])
        self.stamp(13)
        a(f"""s_mov_b64 exec, {sp(sM[0])}
        v_pk_add_f32 {vr(RV, 2)}, {vr(RV, 2)}, {vr(RV + 4, 2)}
        v_pk_add_f32 {vr(RV + 2, 2)}, {vr(RV + 2, 2)}, {vr(RV + 6, 2)}
        s_mov_b64 exec, -1""")
        self.rs4(RV)
        for k in (8, 4, 2, 1):
            a(f"v_add_f32_dpp v{RV}, v{RV}, v{RV} row_ror:{k} {DPP}")
        self.bf16r(RV, RV)
        a(f"""v_add_f32 v{RV}, v{RV}, v11
        v_cvt_pk_bf16_f32 v{RV}, v{RV}, v{RV}
        global_store_short v{aOut}, v{RV}, {sp(OUT)}
        s_or_b32 s{sT0}, s2, s{sW}
        s_cmp_lg_u32 s{sT0}, 0
        s_cbranch_scc1 L_exit
        s_mov_b64 exec, 1
        v_mov_b32 v{t0}, 0
        v_mov_b32 v{t1}, s{sE}
        global_store_dword v{t0}, v{t1}, {sp(WS)}
        s_branch L_exit""")

    def f_tail(self):
        a = self.a
        BG, BU, DW, BD, DR = RK, RK + 16, RV, RV + 16, RA
        ONES, CSG, CSU = RX + 8, RX + 9, RX + 10
        H0, H1, HA = DW, DW + 4, RX
        a(f"""s_cmp_eq_u32 s{sG}, 7
        s_cbranch_scc1 L_exit
        s_lshl_b32 s{sT2}, s{sW}, 12""")
        for i in range(4):
            for base, ptr in ((L_G, GA), (L_U, UP)):
                a(f"s_add_u32 m0, s{sT2}, {base + 1024 * i}\nglobal_load_lds_dwordx4 v{aFG}, {sp(ptr)}{self.ntf}")
            if i < 3:
                a(f"v_add_u32 v{aFG}, {8 * 3584}, v{aFG}")
        for jj in range(4):
            a(f"global_load_dwordx4 {vr(DW + 4 * jj, 4)}, v{aFD}, {sp(DN)} offset:{1024 * jj}{self.ntf}")
        a(f"global_load_dwordx4 {vr(DR + 8, 4)}, v{aEG}, {sp(WS)} sc1")
        self.census_load(64)
        a(f"""v_mov_b32 v{ONES}, 0x3f803f80
        v_mov_b32 v{RX}, 0x3f803f80
        v_mov_b32 v{RX + 1}, 0x3f803f80
        v_mov_b32 v{RX + 2}, 0x3f803f80
        v_mov_b32 v{RX + 3}, 0x3f803f80
        s_waitcnt vmcnt(6)
        s_barrier""")
        for base, B in ((L_G, BG), (L_U, BU)):
            for s in range(4):
                for hf in range(2):
                    a(f"ds_read_b64_tr_b16 {vr(B + 4 * s + 2 * hf, 2)}, v{aTR} offset:{base + 8192 * hf + 512 * s}")
        a("s_waitcnt lgkmcnt(0)")
        for s in range(4):
            for B, D in ((BG, DR), (BU, DR + 4)):
                a(f"v_mfma_f32_16x16x32_bf16 {vr(D, 4)}, {vr(RX, 4)}, {vr(B + 4 * s, 4)}, {'0' if s == 0 else vr(D, 4)}")
        a("s_waitcnt vmcnt(0)")
        self.stamp(8)
        for dd in range(4):
            rows = ((0, 1), (2, 3)) if dd < 2 else ((1, 2), (3, 0))
            for p, (lo, hi) in enumerate(rows):
                a(f"v_perm_b32 v{BD + 2 * (2 * dd) + p}, v{DW + 4 * hi + dd}, v{DW + 4 * lo + dd}, s{sPLO}")
                a(f"v_perm_b32 v{BD + 2 * (2 * dd + 1) + p}, v{DW + 4 * hi + dd}, v{DW + 4 * lo + dd}, s{sPHI}")
        a(f"v_mov_b32 v{CSG}, v{DR}\nv_mov_b32 v{CSU}, v{DR + 4}")
        self.census_eval()
        a(f"""L_hpoll:
        global_load_dwordx4 {vr(H0, 4)}, v{aHP}, {sp(WS)} sc1
        global_load_dwordx4 {vr(H1, 4)}, v{aHP}, {sp(WS)} offset:256 sc1""")
        self.spin()
        a("s_waitcnt vmcnt(1)")
        self.check4(H0, sTH4, sp(sT2))
        a(f"""v_perm_b32 v{HA}, v{H0 + 1}, v{H0}, s{sPHI}
        v_perm_b32 v{HA + 1}, v{H0 + 3}, v{H0 + 2}, s{sPHI}
        s_waitcnt vmcnt(0)
        v_perm_b32 v{HA + 2}, v{H1 + 1}, v{H1}, s{sPHI}
        v_perm_b32 v{HA + 3}, v{H1 + 3}, v{H1 + 2}, s{sPHI}""")
        self.check4(H1, sTH4)
        a(f"s_or_b64 vcc, vcc, {sp(sT2)}\ns_cbranch_vccnz L_hpoll")
        self.stamp(9)
        SA, SB = RX + 4, RX + 5
        mf = [f"v_mfma_f32_16x16x32_bf16 {vr(D + 4 * s, 4)}, {vr(HA, 4)}, {vr(B + 4 * s, 4)}, 0" for s in range(4) for B, D in ((BG, DR), (BU, DR + 16))]
        a(f"v_dot2_f32_bf16 v{SA}, v{HA}, v{ONES}, 0\nv_dot2_f32_bf16 v{SB}, v{HA}, v{HA}, 0")
        for i in range(1, 4):
            a(f"v_dot2_f32_bf16 v{SA}, v{HA + i}, v{ONES}, v{SA}\nv_dot2_f32_bf16 v{SB}, v{HA + i}, v{HA + i}, v{SB}")
        a(mf[0]); a(mf[1])
        a(f"v_permlane16_swap_b32 v{SA}, v{SB}\nv_add_f32 v{SA}, v{SA}, v{SB}")
        for k, m in zip((8, 4, 2, 1), mf[2:6]):
            a(m)
            a(f"v_add_f32_dpp v{SA}, v{SA}, v{SA} row_ror:{k} {DPP}")
        a(f"v_mov_b32 v{SB}, v{SA}")
        a(mf[6])
        a(f"v_permlane32_swap_b32 v{SA}, v{SB}\nv_add_f32 v{SA}, v{SA}, v{SB}\nv_mul_f32 v{t0}, 0x3b000000, v{SA}\nv_mul_f32 v{t1}, 0x3b000000, v{SA}")
        a(mf[7])
        a(f"""v_permlane16_swap_b32 v{t0}, v{t1}
        v_fma_f32 v{t1}, -v{t0}, v{t0}, v{t1}
        v_add_f32 v{SA}, v{DR}, v{DR + 5}
        v_max_f32 v{t1}, 0, v{t1}
        v_add_f32 v{SB}, v{DR + 16}, v{DR + 21}""")
        self.ln_scale(t0, t1, t2)
        a(f"""v_add_f32 v{SA}, v{SA}, v{DR + 10}
        v_rcp_f32 v{t1}, v{t1}
        v_add_f32 v{SB}, v{SB}, v{DR + 26}
        v_add_f32 v{SA}, v{SA}, v{DR + 15}
        v_add_f32 v{SB}, v{SB}, v{DR + 31}
        s_cmp_eq_u32 s{sFAST}, 0
        v_fma_f32 v{SA}, -v{t0}, v{CSG}, v{SA}
        v_fma_f32 v{SB}, -v{t0}, v{CSU}, v{SB}
        s_mov_b64 exec, {sp(sKM)}
        v_mul_f32 v{SA}, v{SA}, v{t1}
        v_mul_f32 v{SB}, v{SB}, v{t1}""")
        self.tag(SA, SA, sTA4)
        self.tag(SB, SB, sTA4)
        self.pub("e", f"global_store_dwordx2 v{aES}, {vr(SA, 2)}, {sp(WS)}", cmp=False)
        a("s_mov_b64 exec, -1")
        self.stamp(11)
        self.sleep(self.d_e)
        self.poll("epoll", [f"global_load_dwordx4 {{}}, v{aEG}, {sp(WS)} sc1"], sTA4, H0, self.pe, [RW, RW + 4, RW + 8, RW + 12])
        self.stamp(12)
        a(f"""v_pk_add_f32 {vr(t2, 2)}, {vr(H0, 2)}, {vr(H0 + 2, 2)}
        v_add_f32_dpp v{t2}, v{t2}, v{t2} quad_perm:[1,0,3,2] {DPP}
        v_add_f32_dpp v{t3}, v{t3}, v{t3} quad_perm:[1,0,3,2] {DPP}
        v_cvt_pk_bf16_f32 v{t3}, v{t2}, v{t3}
        v_lshlrev_b32 v{t2}, 16, v{t3}
        v_and_b32 v{t3}, 0xffff0000, v{t3}
        v_mul_f32 v{t0}, 0xbfb8aa3b, v{t2}
        v_exp_f32 v{t0}, v{t0}
        v_add_f32 v{t0}, 1.0, v{t0}
        v_rcp_f32 v{t0}, v{t0}
        v_mul_f32 v{t2}, v{t2}, v{t0}""")
        self.bf16r(t2, t2)
        a(f"""v_mul_f32 v{t2}, v{t2}, v{t3}
        v_cvt_pk_bf16_f32 v{t2}, v{t2}, v{t2}
        v_mov_b32_dpp v{t3}, v{t2} row_ror:12 {DPP}
        v_perm_b32 v{HA}, v{t3}, v{t2}, s{sPHI}
        v_mov_b32_dpp v{HA + 1}, v{HA} row_ror:8 {DPP}""")
        self.matvec8(lambda t: f"v_mfma_f32_16x16x16_bf16 {vr(DR + 4 * t, 4)}, {vr(HA, 2)}, {vr(BD + 2 * t, 2)}, 0", DR, H0, sTA4,
                     after="s_mov_b32 exec_hi, 0")
        a(f"global_store_dwordx4 v{aCS}, {vr(H0, 4)}, {sp(WS)} sc1\ns_mov_b64 exec, -1")
        self.stamp(10)
        a("s_branch L_exit")

    def helper(self):
        a = self.a
        per_wg = self.code_bytes // 32
        a(f"""L_helper:
        s_getpc_b64 {sp(sCODE)}
        L_pc:
        s_sub_u32 s{sCODE}, s{sCODE}, L_pc-{NAME}_kernel
        s_subb_u32 s{sCODE + 1}, s{sCODE + 1}, 0
        s_mul_i32 s{sT0}, s{sJ}, {per_wg}
        v_lshl_add_u32 v{t2}, v{vL}, {(per_wg // 64).bit_length() - 1}, s{sT0}
        v_min_u32 v{t2}, L_code_end-{NAME}_kernel-4, v{t2}""")
        if self.codepf == 1:
            a(f"global_load_dword v{RK}, v{t2}, {sp(sCODE)}")
        a(f"""v_mov_b32 v{vQ}, v{t2}
        s_lshl_b32 s{sT0}, s{sG}, 24
        s_add_u32 s{sT0}, s{sT0}, 0xF00000
        v_mov_b32 v{t3}, s{sT0}""")
        if self.pf3:
            a(f"""s_lshl_b32 s{sT1}, s{sJ}, 17
            s_lshl_b32 s{sT2}, s{sG}, 10
            s_add_u32 s{sT1}, s{sT1}, s{sT2}
            s_add_u32 s{sT1}, s{sT1}, 384
            v_bfe_u32 v{t0}, v{vL}, 1, 4
            v_lshlrev_b32 v{t0}, 13, v{t0}
            v_and_b32 v{t1}, 1, v{vL}
            v_lshl_add_u32 v{t0}, v{t1}, 6, v{t0}
            v_add_u32 v{t0}, s{sT1}, v{t0}""")
        a("s_waitcnt lgkmcnt(0)")
        if self.pf3:
            a(f"global_load_dword v{RK + 23}, v{t0}, {sp(WQ)}{' nt' if self.pf3 == 2 else ''}")
        a(f"""s_cmp_ge_u32 s{sJ}, 16
        s_cbranch_scc1 L_helper_q
        s_load_dword s{sE}, {sp(WS)}, 0""")
        if self.touch == 2:
            a(f"""s_cmp_lg_u32 s{sJ}, 0
            s_cbranch_scc1 L_notouch
            s_load_dword s70, {sp(VP)}, s{sT0}
            s_lshl_b32 s{sT1}, s{sG}, 19
            s_load_dword s71, {sp(WO)}, s{sT1}
            s_load_dword s72, {sp(GA)}, 0
            s_load_dword s73, {sp(UP)}, 0
            s_load_dword s74, {sp(DN)}, 0
            s_load_dword s75, {sp(OUT)}, 0
            s_mov_b32 s{sT1}, {512 * 3584 - 4}
            s_load_dword s76, {sp(GA)}, s{sT1}
            s_load_dword s77, {sp(UP)}, s{sT1}
            s_load_dword s78, {sp(DN)}, s{sT1}
            L_notouch:""")
        a(f"""v_mov_b32 v{vK}, v{t3}
        s_getreg_b32 s{sXCC}, hwreg(HW_REG_XCC_ID, 0, 4)
        s_lshl_b32 s{sT0}, s{sG}, 7
        s_add_u32 s{sT0}, s{sT0}, {WS_HI}
        v_and_b32 v{t0}, 31, v{vL}
        v_lshl_add_u32 v{vB}, v{t0}, 2, s{sT0}
        s_lshl_b32 s{sT1}, s{sJ}, 2
        s_add_u32 s{sT0}, s{sT0}, s{sT1}
        v_mov_b32 v{vC}, s{sT0}
        s_lshl_b32 s{sT0}, s{sG}, 13
        s_lshl_b32 s{sT1}, s{sJ}, 9
        s_add_u32 s{sT0}, s{sT0}, s{sT1}
        s_add_u32 s{sT0}, s{sT0}, {WS_QA}
        v_lshl_add_u32 v{t0}, v{vL}, 3, s{sT0}
        s_lshl_b32 s{sT1}, s{sJ}, 7
        s_lshl_b32 s{sT0}, s{sG}, 16
        s_add_u32 s{sT0}, s{sT0}, s{sT1}
        s_add_u32 s{sT0}, s{sT0}, {WS_A1}
        v_lshrrev_b32 v{t1}, 3, v{vL}
        v_lshlrev_b32 v{t1}, 11, v{t1}
        v_and_b32 v{t2}, 7, v{vL}
        v_lshl_add_u32 v{t1}, v{t2}, 4, v{t1}
        v_add_u32 v{t1}, s{sT0}, v{t1}
        s_lshl_b32 s{sT0}, s{sG}, 10
        s_lshl_b32 s{sT1}, s{sJ}, 6
        s_add_u32 s{sT0}, s{sT0}, s{sT1}
        s_add_u32 s{sT0}, s{sT0}, {WS_ML}
        v_lshl_add_u32 v{t2}, v{vN}, 2, s{sT0}
        s_lshl_b32 s{sT0}, s{sG}, 19
        s_lshl_b32 s{sT1}, s{sJ}, 15
        s_add_u32 s{sT0}, s{sT0}, s{sT1}
        v_mov_b32 v{t3}, s{sT0}
        v_mov_b32 v{vA}, 0
        v_mov_b32 v{vV}, {512 * 3584 - 4}
        s_barrier""")
        if self.codepf == 2:
            a(f"global_load_dword v{RK}, v{vQ}, {sp(sCODE)}")
        if self.touch == 1:
            pages = [(VP, vK), (WO, t3), (GA, vA), (UP, vA), (DN, vA), (OUT, vA), (GA, vV), (UP, vV), (DN, vV)]
            for i, (ptr, off) in enumerate(pages):
                a(f"s_cmp_lg_u32 s{sJ}, {i}\ns_cbranch_scc1 L_touch{i}\nglobal_load_dword v{RK + 22}, v{off}, {sp(ptr)}{self.nt}\nL_touch{i}:")
        a(f"""global_load_dword v{RK + 21}, v{vB}, {sp(WS)} sc1
        global_load_dword v{RK + 1}, v{t0}, {sp(WS)} sc1""")
        for i in range(4):
            a(f"global_load_dwordx4 {vr(RK + 4 + 4 * i, 4)}, v{t1}, {sp(WS)} sc1")
            if i < 3:
                a(f"v_add_u32 v{t1}, 0x4000, v{t1}")
        a(f"""global_load_dword v{RK + 2}, v{t2}, {sp(WS)} sc1
        s_waitcnt lgkmcnt(0)
        s_add_u32 s{sE}, s{sE}, 1
        s_lshl_b32 s{sE}, s{sE}, 4
        s_or_b32 s{sE}, s{sE}, s{sXCC}
        v_mov_b32 v{vD}, s{sE}
        s_mov_b64 exec, 1
        global_store_dword v{vC}, v{vD}, {sp(WS)}
        s_endpgm
        L_helper_q:
        v_mov_b32 v{t0}, {WS_QB}
        s_barrier""")
        if self.codepf == 2:
            a(f"global_load_dword v{RK}, v{vQ}, {sp(sCODE)}")
        if self.qtouch:
            a(f"""global_load_dword v{RK + 8}, v{t3}, {sp(KP)}{self.nt}
            global_load_dword v{RK + 1}, v{t0}, {sp(WS)} sc1
            global_load_dword v{RK + 9}, v{t3}, {sp(VP)}{self.nt}""")
        a("s_endpgm")

    def exit(self):
        a = self.a
        a("L_exit:")
        if self.leak[0] >= 0:
            self.stamp(14)
            a(f"""s_lshl_b32 s{sT0}, s2, 2
            s_add_u32 s{sT0}, s{sT0}, s{sW}
            s_cmp_lg_u32 s{sT0}, {self.leak[0] * 4}
            s_cbranch_scc1 L_end
            s_memrealtime {sp(ST0 + 4)}
            s_waitcnt lgkmcnt(0)
            s_sub_u32 s{sT0}, s{ST0 + 2}, s{ST0}""")
            if self.leak[3] == 1:
                a(f"s_mul_i32 s{sT0}, s{sT0}, 2731\ns_lshr_b32 s{sT0}, s{sT0}, 16")
            if self.leak[3] >= 2:
                a(f"""s_mov_b64 exec, -1
                v_and_b32 v{t0}, 7, v{vL}
                v_lshlrev_b32 v{t0}, 7, v{t0}
                v_add_u32 v{t0}, {WS_ST}, v{t0}
                global_load_dword v{t1}, v{t0}, {sp(WS)} sc1
                s_waitcnt vmcnt(0)
                v_subrev_u32 v{t1}, s{ST0}, v{t1}
                v_add_u32 v{t1}, 1000, v{t1}
                s_nop 1
                v_readlane_b32 s{sT0}, v{t1}, 0
                s_mov_b32 s{sT1}, s{sT0}""")
                for i in range(1, 8):
                    a(f"v_readlane_b32 s{sT2}, v{t1}, {i}\ns_nop 1\ns_max_u32 s{sT0}, s{sT0}, s{sT2}\ns_min_u32 s{sT1}, s{sT1}, s{sT2}")
                a(f"s_sub_u32 s{sT0}, s{sT0}, s{sT1}" if self.leak[3] == 2 else f"s_sub_u32 s{sT0}, 1000, s{sT1}")
            a(f"""s_min_u32 s{sT0}, s{sT0}, 5000
            s_mul_i32 s{sT0}, s{sT0}, 10
            s_add_u32 s{sT0}, s{sT0}, 2000
            L_leak:
            s_memrealtime {sp(ST0 + 6)}
            s_waitcnt lgkmcnt(0)
            s_sub_u32 s{sT1}, s{ST0 + 6}, s{ST0 + 4}
            s_cmp_lt_u32 s{sT1}, s{sT0}
            s_cbranch_scc1 L_leak""")
        if self.prof:
            self.stamp(14)
            a(f"""s_memrealtime {sp(ST0 + 32)}
            s_mov_b64 exec, 1
            s_lshl_b32 s{sT0}, s2, 2
            s_add_u32 s{sT0}, s{sT0}, s{sW}
            s_lshl_b32 s{sT0}, s{sT0}, 7
            s_add_u32 s{sT0}, s{sT0}, {WS_ST}
            v_mov_b32 v{t0}, s{sT0}
            s_waitcnt lgkmcnt(0)""")
            for k in (range(17) if self.prof == 1 else (15, 16)):
                a(f"v_mov_b32 v{t1}, s{ST0 + 2 * k}\nglobal_store_dword v{t0}, v{t1}, {sp(WS)} offset:{4 * k}")
            a(f"v_mov_b32 v{t1}, s{sFAST}\nglobal_store_dword v{t0}, v{t1}, {sp(WS)} offset:68")
            a(f"v_mov_b32 v{t1}, s{sQN}\nglobal_store_dword v{t0}, v{t1}, {sp(WS)} offset:72")
            a(f"v_mov_b32 v{t1}, s{sSPIN}\nglobal_store_dword v{t0}, v{t1}, {sp(WS)} offset:76")
            if self.dbgwg >= 0:
                a(f"s_lshl_b32 s{sT0}, s2, 2\ns_add_u32 s{sT0}, s{sT0}, s{sW}\ns_cmp_lg_u32 s{sT0}, {self.dbgwg * 4}\ns_cbranch_scc1 L_end")
                a(f"v_mov_b32 v{t0}, 0")
                for k in range(1, 15):
                    a(f"s_sub_u32 s{sT0}, s{ST0 + 2 * k}, s{ST0}\nv_mov_b32 v{t1}, s{sT0}\nglobal_store_dword v{t0}, v{t1}, {sp(DBG)} offset:{4 * k}")
                a(f"s_sub_u32 s{sT0}, s{ST0 + 32}, s{ST0 + 30}\nv_mov_b32 v{t1}, s{sT0}\nglobal_store_dword v{t0}, v{t1}, {sp(DBG)} offset:0")
                a(f"v_mov_b32 v{t1}, s{sFAST}\nglobal_store_dword v{t0}, v{t1}, {sp(DBG)} offset:60")
        a("L_end:\ns_endpgm")

    def build(self):
        head = open("cdna_kernels/" + NAME + ".s.ref").read().split("; Override launch")[0]
        if self.prof == 1:
            for k in range(17):
                self.a(f"s_mov_b32 s{ST0 + 2 * k}, 0")
        self.prologue()
        self.w_start(0)
        self.q_start(0)
        self.w_start(1)
        self.attention("w")
        self.w_tail()
        self.q_start(1)
        self.attention("q")
        self.f_tail()
        self.exit()
        self.helper()
        for c in self.cold:
            self.a(c)
        self.a("L_code_end:")
        body = "\n".join(pad(self.L))
        return f"""{head}; @launch grid=(256,1,1) block=(320,1,1) lds={LDS_BYTES}
.amdgcn_target "amdgcn-amd-amdhsa--gfx950"
.text
.globl {NAME}_kernel
.p2align 8
.type {NAME}_kernel,@function
{NAME}_kernel:
{body}
.section .rodata,"a"
.p2align 6
.amdhsa_kernel {NAME}_kernel
  .amdhsa_next_free_vgpr {NVGPR}
  .amdhsa_next_free_sgpr 102
  .amdhsa_accum_offset {NVGPR}
  .amdhsa_group_segment_fixed_size 0
  .amdhsa_kernarg_size 96
  .amdhsa_user_sgpr_count 2
  .amdhsa_user_sgpr_kernarg_segment_ptr 1
  .amdhsa_system_sgpr_workgroup_id_x 1
.end_amdhsa_kernel
"""


if __name__ == "__main__":
    out = sys.argv[1]
    kw = {}
    for arg in sys.argv[2:]:
        k, v = arg.split("=")
        kw[k] = int(v)
    open(out, "w").write(Gen(**kw).build())
```

```python
import sys
NAME = "sequential_preLN__sliding_block_cached__swiglu_ffn__decode"
HDR = """; @launch grid=(256,1,1) block=({T},1,1) lds={lds}
.amdgcn_target "amdgcn-amd-amdhsa--gfx950"
.text
.globl {N}_kernel
.p2align 8
.type {N}_kernel,@function
{N}_kernel:
"""
FTR = """L_end:
  s_endpgm
.section .rodata,"a"
.p2align 6
.amdhsa_kernel {N}_kernel
  .amdhsa_next_free_vgpr {nv}
  .amdhsa_next_free_sgpr 96
  .amdhsa_accum_offset {ao}
  .amdhsa_group_segment_fixed_size 0
  .amdhsa_kernarg_size 96
  .amdhsa_user_sgpr_count 2
  .amdhsa_user_sgpr_kernarg_segment_ptr 1
  .amdhsa_system_sgpr_workgroup_id_x 1
.end_amdhsa_kernel
"""
def gen(stages, T=256, sleep=0, prew="", delay=0, late=0):
    L = [HDR.format(T=T, lds=90000, N=NAME)]
    a = L.append
    a("  s_cmp_ge_u32 s2, 256")
    a("  s_cbranch_scc1 L_end")
    a("  s_load_dwordx8 s[20:27], s[0:1], 64")
    a("  v_lshrrev_b32 v1, 6, v0")
    a("  v_and_b32 v2, 63, v0")
    a("  v_readfirstlane_b32 s3, v1")
    a("  s_and_b32 s4, s2, 7")
    a("  s_lshr_b32 s5, s2, 3")
    a("  s_waitcnt lgkmcnt(0)")
    a("  s_mov_b32 s28, s26")
    a("  s_and_b32 s29, s27, 0xffff")
    a("  s_mov_b32 s30, 0x10000000")
    a("  s_mov_b32 s31, 0x20000")
    a("  v_mov_b32 v3, 0")
    a("  s_mov_b32 s6, 0x100000")
    a("  s_or_b32 s7, s2, s3")
    a("  s_cmp_lg_u32 s7, 0")
    a("  s_cbranch_scc1 L_nopub")
    a("  s_memrealtime s[8:9]")
    a("  s_waitcnt lgkmcnt(0)")
    a("  s_add_u32 s8, s8, 800")
    a("  v_mov_b32 v4, s8")
    a("  v_mov_b32 v5, 0x12345678")
    a("  buffer_store_dwordx2 v[4:5], v3, s[28:31], s6 offen sc1")
    a("L_nopub:")
    a("  s_mov_b32 s18, 0")
    a("L_pollT:")
    a("  s_add_u32 s18, s18, 1")
    a("  s_cmp_gt_u32 s18, 20000")
    a("  s_cbranch_scc1 L_fin")
    a("  buffer_load_dwordx2 v[4:5], v3, s[28:31], s6 offen sc1")
    a("  s_waitcnt vmcnt(0)")
    a("  v_readfirstlane_b32 s8, v4")
    a("  v_readfirstlane_b32 s9, v5")
    a("  s_cmp_lg_u32 s9, 0x12345678")
    a("  s_cbranch_scc1 L_pollT")
    for i, stg in enumerate(stages):
        a(f"  s_mov_b32 s10, {0x200000*(i+1) + 0x1f0000}")
        a("  buffer_load_dword v6, v3, s[28:31], s10 offen")
    a("  s_waitcnt vmcnt(0)")
    a("@@PREWARM@@")
    if late:
        a("  s_cmp_eq_u32 s4, 7")
        a(f"  s_cselect_b32 s10, {late}, 0")
        a("  s_add_u32 s8, s8, s10")
    a("  s_waitcnt vmcnt(0)")
    a("  s_mov_b32 s18, 0")
    a("L_spin:")
    a("  s_add_u32 s18, s18, 1")
    a("  s_cmp_gt_u32 s18, 20000")
    a("  s_cbranch_scc1 L_fin")
    a("  s_memrealtime s[10:11]")
    a("  s_waitcnt lgkmcnt(0)")
    a("  s_cmp_lt_u32 s10, s8")
    a("  s_cbranch_scc1 L_spin")
    a("  s_memrealtime s[60:61]")
    a("  s_memtime s[40:41]")
    for i, stg in enumerate(stages):
        base = 0x200000 * (i + 1)
        tag = i + 1
        kind = stg["kind"]; stf = stg.get("st", "sc1"); ldf = stg.get("ld", "sc1")
        for r in range(8, 12):
            a(f"  v_mov_b32 v{r}, {tag}")
        a(f"  s_mov_b32 s12, {tag * 0x01010101}")
        a("  s_mov_b32 s13, 0x0c0c0400")
        a("  s_mov_b32 s14, 0x04000c0c")
        def check(regs, lab):
            first = True
            for r in regs:
                a(f"  v_perm_b32 v6, v{r+1}, v{r}, s13")
                a(f"  v_perm_b32 v7, v{r+3}, v{r+2}, s14")
                a("  v_or_b32 v6, v6, v7")
                if first:
                    a("  v_cmp_ne_u32 vcc, s12, v6")
                    first = False
                else:
                    a("  v_cmp_ne_u32 s[16:17], s12, v6")
                    a("  s_or_b64 vcc, vcc, s[16:17]")
            if sleep:
                a(f"  s_cbranch_vccz {lab}_ok")
                a(f"  s_sleep {sleep}")
                a(f"  s_branch {lab}")
                a(f"{lab}_ok:")
            else:
                a(f"  s_cbranch_vccnz {lab}")
        if kind == "intra":
            a("  s_cmp_lg_u32 s3, 0")
            a(f"  s_cbranch_scc1 L_skip{i}")
            a("  s_lshl_b32 s10, s4, 16")
            a(f"  s_add_u32 s10, s10, {base}")
            a("  s_lshl_b32 s11, s5, 11")
            a("  s_add_u32 s11, s11, s10")
            a("  v_lshlrev_b32 v12, 4, v2")
            a(f"  buffer_store_dwordx4 v[8:11], v12, s[28:31], s11 offen {stf}")
            a(f"  buffer_store_dwordx4 v[8:11], v12, s[28:31], s11 offen offset:1024 {stf}")
            a("  v_lshrrev_b32 v13, 2, v2")
            a("  v_lshlrev_b32 v13, 11, v13")
            a("  v_and_b32 v14, 3, v2")
            a("  v_lshl_add_u32 v13, v14, 4, v13")
            a("  s_lshl_b32 s11, s5, 6")
            a("  s_add_u32 s11, s11, s10")
            a("  s_add_u32 s15, s11, 0x8000")
            a("  s_mov_b32 s18, 0"); a(f"L_poll{i}:"); a("  s_add_u32 s18, s18, 1"); a("  s_cmp_gt_u32 s18, 20000"); a("  s_cbranch_scc1 L_fin")
            a(f"  buffer_load_dwordx4 v[16:19], v13, s[28:31], s11 offen {ldf}")
            a(f"  buffer_load_dwordx4 v[20:23], v13, s[28:31], s15 offen {ldf}")
            a("  s_waitcnt vmcnt(0)")
            check([16, 20], f"L_poll{i}")
            a(f"L_skip{i}:")
            if stg.get("bar", True): a("  s_barrier")
        elif kind == "gather":
            nr = stg.get("readers", 256)
            a("  s_cmp_lg_u32 s3, 0")
            a(f"  s_cbranch_scc1 L_nst{i}")
            a("  v_lshlrev_b32 v12, 4, v2")
            if stg.get("xmajor", True):
                a("  s_lshl_b32 s10, s4, 11")
                a("  s_lshl_b32 s11, s5, 6")
                a("  s_add_u32 s10, s10, s11")
            else:
                a("  s_lshl_b32 s10, s2, 6")
            a(f"  s_add_u32 s10, s10, {base}")
            a("  s_mov_b64 s[16:17], exec")
            a("  s_mov_b64 exec, 0xf")
            a(f"  buffer_store_dwordx4 v[8:11], v12, s[28:31], s10 offen {stf}")
            a("  s_mov_b64 exec, s[16:17]")
            a(f"L_nst{i}:")
            a(f"  s_cmp_ge_u32 s2, {nr}")
            a(f"  s_cbranch_scc1 L_fin")
            a("  v_lshlrev_b32 v12, 4, v2")
            a("  s_lshl_b32 s10, s3, 12")
            a(f"  s_add_u32 s10, s10, {base}")
            a("  s_mov_b32 s18, 0"); a(f"L_poll{i}:"); a("  s_add_u32 s18, s18, 1"); a("  s_cmp_gt_u32 s18, 20000"); a("  s_cbranch_scc1 L_fin")
            for q in range(4):
                a(f"  buffer_load_dwordx4 v[{16+4*q}:{19+4*q}], v12, s[28:31], s10 offen offset:{1024*q} {ldf}")
            a("  s_waitcnt vmcnt(0)")
            check([16, 20, 24, 28], f"L_poll{i}")
            a("  s_barrier")
        elif kind == "x11":
            mode = stg.get("mode", "load")
            copies = stg.get("copies", True)
            a("  s_cmp_lg_u32 s3, 0")
            a(f"  s_cbranch_scc1 L_skip{i}")
            a("  v_lshrrev_b32 v13, 2, v2")
            a("  v_and_b32 v14, 3, v2")
            a("  v_lshlrev_b32 v12, 15, v13")
            a("  v_lshl_add_u32 v12, v14, 4, v12")
            a("  s_lshl_b32 s10, s5, 10")
            a("  s_lshl_b32 s11, s4, 7")
            a("  s_add_u32 s11, s11, s10")
            a(f"  s_add_u32 s11, s11, {base}")
            a("  s_mov_b64 s[16:17], exec")
            a("  s_mov_b64 exec, " + ("0xffffffff" if copies else "0xf"))
            a(f"  buffer_store_dwordx4 v[8:11], v12, s[28:31], s11 offen {stf}")
            a("  s_mov_b64 exec, s[16:17]")
            if copies:
                a("  s_lshl_b32 s11, s4, 15")
                a("  s_add_u32 s11, s11, s10")
            else:
                a("  s_mov_b32 s11, s10")
            a(f"  s_add_u32 s11, s11, {base}")
            a("  v_lshrrev_b32 v13, 3, v2")
            a("  v_and_b32 v14, 7, v2")
            a("  v_lshlrev_b32 v13, 7, v13")
            a("  v_lshl_add_u32 v13, v14, 3, v13")
            a(f"  s_mov_b32 s12, {tag * 0x0101}")
            if mode in ("load", "atomic"):
                a("  s_mov_b32 s18, 0"); a(f"L_poll{i}:"); a("  s_add_u32 s18, s18, 1"); a("  s_cmp_gt_u32 s18, 20000"); a("  s_cbranch_scc1 L_fin")
                if mode == "load":
                    a(f"  buffer_load_dwordx2 v[16:17], v13, s[28:31], s11 offen {ldf}")
                else:
                    a("  v_mov_b32 v16, 0"); a("  v_mov_b32 v17, 0")
                    a(f"  buffer_atomic_or_x2 v[16:17], v13, s[28:31], s11 offen sc0 {ldf}")
                a("  s_waitcnt vmcnt(0)")
                a("  v_perm_b32 v6, v17, v16, s13")
                a("  v_cmp_ne_u32 vcc, s12, v6")
                if sleep:
                    a(f"  s_cbranch_vccz L_skip{i}")
                    a(f"  s_sleep {sleep}")
                    a(f"  s_branch L_poll{i}")
                else:
                    a(f"  s_cbranch_vccnz L_poll{i}")
            else:
                op = mode[1:]
                gap = stg.get("gap", 2)
                def issue(r):
                    if op == "load":
                        a(f"  buffer_load_dwordx2 v[{r}:{r+1}], v13, s[28:31], s11 offen {ldf}")
                    else:
                        a(f"  v_mov_b32 v{r}, 0"); a(f"  v_mov_b32 v{r+1}, 0")
                        a(f"  buffer_atomic_or_x2 v[{r}:{r+1}], v13, s[28:31], s11 offen sc0 {ldf}")
                D = stg.get("depth", 4)
                for q in range(D - 1):
                    issue(16 + 16*i + 2*q); a(f"  s_sleep {gap}")
                a("  s_mov_b32 s18, 0"); a(f"L_poll{i}:"); a("  s_add_u32 s18, s18, 1"); a("  s_cmp_gt_u32 s18, 20000"); a("  s_cbranch_scc1 L_fin")
                for q in range(D):
                    issue(16 + 16*i + 2*((q + D - 1) % D))
                    a(f"  s_waitcnt vmcnt({D-1})")
                    a(f"  v_perm_b32 v6, v{17+16*i+2*q}, v{16+16*i+2*q}, s13")
                    a("  v_cmp_ne_u32 vcc, s12, v6")
                    a(f"  s_cbranch_vccz L_done{i}")
                    a(f"  s_sleep {gap}")
                a(f"  s_branch L_poll{i}")
                a(f"L_done{i}:")
            a(f"L_skip{i}:")
            a("  s_barrier")
        elif kind == "sfl":
            glc = stg.get("glc", "glc")
            a("  s_cmp_lg_u32 s3, 0")
            a(f"  s_cbranch_scc1 L_skip{i}")
            a("  s_cmp_ge_u32 s5, 16")
            a(f"  s_cbranch_scc1 L_skip{i}")
            a("  s_cmp_lg_u32 s5, 0")
            a(f"  s_cbranch_scc1 L_nst{i}")
            a("  v_lshlrev_b32 v12, 7, v2")
            a("  s_lshl_b32 s10, s4, 2")
            a(f"  s_add_u32 s10, s10, {base}")
            a("  s_mov_b64 s[16:17], exec")
            a("  s_mov_b64 exec, 0xff")
            a(f"  buffer_store_dword v8, v12, s[28:31], s10 offen sc1")
            a("  s_mov_b64 exec, s[16:17]")
            a(f"L_nst{i}:")
            a("  s_lshl_b32 s10, s4, 7")
            a(f"  s_add_u32 s10, s10, {base}")
            a("  s_add_u32 s14, s26, s10")
            a("  s_addc_u32 s15, s27, 0")
            a("  s_mov_b32 s18, 0"); a(f"L_poll{i}:"); a("  s_add_u32 s18, s18, 1"); a("  s_cmp_gt_u32 s18, 20000"); a("  s_cbranch_scc1 L_fin")
            a(f"  s_load_dwordx8 s[80:87], s[14:15], 0 {glc}")
            a("  s_waitcnt lgkmcnt(0)")
            for q in range(1, 8):
                a(f"  s_and_b32 s80, s80, s{80+q}")
            a(f"  s_cmp_lg_u32 s80, {tag}")
            a(f"  s_cbranch_scc1 L_poll{i}")
            a(f"L_skip{i}:")
            a("  s_barrier")
        elif kind == "g2":
            nc = stg.get("nc", 14); sel = stg.get("sel", False); dl = stg.get("dl", 0)
            a("  s_cmp_ge_u32 s5, 16")
            a(f"  s_cbranch_scc1 L_nst{i}")
            a("  s_cmp_lg_u32 s3, 0")
            a(f"  s_cbranch_scc1 L_nxt{i}")
            a("  v_lshlrev_b32 v12, 4, v2")
            a("  s_lshl_b32 s10, s4, 11")
            a("  s_lshl_b32 s11, s5, 7")
            a("  s_add_u32 s10, s10, s11")
            a(f"  s_add_u32 s10, s10, {base}")
            a("  s_mov_b64 s[16:17], exec")
            a("  s_mov_b64 exec, 0xff")
            a(f"  buffer_store_dwordx4 v[8:11], v12, s[28:31], s10 offen {stf}")
            a("  s_mov_b64 exec, s[16:17]")
            a(f"  s_branch L_nxt{i}")
            a(f"L_nst{i}:")
            a(f"  s_cmp_ge_u32 s5, {16+nc}")
            a(f"  s_cbranch_scc1 L_nxt{i}")
            a("  v_lshlrev_b32 v12, 4, v2")
            a("  s_lshl_b32 s10, s3, 12")
            a(f"  s_add_u32 s10, s10, {base}")
            if dl: a(f"  s_sleep {dl}")
            if not sel:
                a("  s_mov_b32 s18, 0"); a(f"L_poll{i}:"); a("  s_add_u32 s18, s18, 1"); a("  s_cmp_gt_u32 s18, 20000"); a("  s_cbranch_scc1 L_fin")
                for q in range(4):
                    a(f"  buffer_load_dwordx4 v[{16+4*q}:{19+4*q}], v12, s[28:31], s10 offen offset:{1024*q} {ldf}")
                a("  s_waitcnt vmcnt(0)")
                check([16, 20, 24, 28], f"L_poll{i}")
            else:
                for q in range(4):
                    a(f"  buffer_load_dwordx4 v[{16+4*q}:{19+4*q}], v12, s[28:31], s10 offen offset:{1024*q} {ldf}")
                for q in range(4):
                    a(f"  s_waitcnt vmcnt({3-q})")
                    a(f"  s_branch L_chk{i}_{q}")
                    a(f"L_poll{i}_{q}:"); a("  s_add_u32 s18, s18, 1"); a("  s_cmp_gt_u32 s18, 20000"); a("  s_cbranch_scc1 L_fin")
                    a(f"  buffer_load_dwordx4 v[{16+4*q}:{19+4*q}], v12, s[28:31], s10 offen offset:{1024*q} {ldf}")
                    a("  s_waitcnt vmcnt(0)")
                    a(f"L_chk{i}_{q}:")
                    check([16+4*q], f"L_poll{i}_{q}")
            a("  s_barrier")
            a(f"L_nxt{i}:")
        elif kind == "c2":
            dl = stg.get("dl", 0); pdl = stg.get("pdl", 0)
            a("  s_cmp_lt_u32 s5, 16")
            a(f"  s_cbranch_scc1 L_nxt{i}")
            a("  s_cmp_ge_u32 s5, 30")
            a(f"  s_cbranch_scc1 L_nst{i}")
            a("  s_cmp_lg_u32 s3, 0")
            a(f"  s_cbranch_scc1 L_nxt{i}")
            if pdl: a(f"  s_sleep {pdl}")
            a("  v_lshlrev_b32 v12, 4, v2")
            a("  s_mul_i32 s10, s4, 14")
            a("  s_add_u32 s10, s10, s5")
            a("  s_sub_u32 s10, s10, 16")
            a("  s_lshl_b32 s10, s10, 11")
            a(f"  s_add_u32 s10, s10, {base}")
            a(f"  buffer_store_dwordx4 v[8:11], v12, s[28:31], s10 offen {stf}")
            a(f"  buffer_store_dwordx4 v[8:11], v12, s[28:31], s10 offen offset:1024 {stf}")
            a(f"  s_branch L_nxt{i}")
            a(f"L_nst{i}:")
            for q in range(4):
                a(f"  v_add_u32 v13, {q*256}, v0")
                a("  v_min_u32 v13, 895, v13")
                a("  v_lshrrev_b32 v14, 3, v13")
                a("  v_lshlrev_b32 v14, 11, v14")
                a("  v_and_b32 v13, 7, v13")
                a(f"  v_lshl_add_u32 v{40+q}, v13, 4, v14")
            a("  s_lshl_b32 s10, s4, 1")
            a("  s_add_u32 s10, s10, s5")
            a("  s_sub_u32 s10, s10, 30")
            a("  s_lshl_b32 s10, s10, 7")
            a(f"  s_add_u32 s10, s10, {base}")
            if dl: a(f"  s_sleep {dl}")
            a("  s_mov_b32 s18, 0"); a(f"L_poll{i}:"); a("  s_add_u32 s18, s18, 1"); a("  s_cmp_gt_u32 s18, 20000"); a("  s_cbranch_scc1 L_fin")
            for q in range(4):
                a(f"  buffer_load_dwordx4 v[{64+4*q}:{67+4*q}], v{40+q}, s[28:31], s10 offen {ldf}")
            a("  s_waitcnt vmcnt(0)")
            check([64 + 4*q for q in range(4)], f"L_poll{i}")
            a("  s_barrier")
            a(f"L_nxt{i}:")
        elif kind == "final":
            npd = stg.get("producers", 256); nc = stg.get("consumers", 32)
            cols = 512 // nc
            lanes_per = cols // 4
            a("  s_cmp_lg_u32 s3, 0")
            a(f"  s_cbranch_scc1 L_nst{i}")
            a("  v_lshlrev_b32 v12, 4, v2")
            a("  s_lshl_b32 s10, s2, 11")
            a(f"  s_add_u32 s10, s10, {base}")
            a(f"  buffer_store_dwordx4 v[8:11], v12, s[28:31], s10 offen {stf}")
            a(f"  buffer_store_dwordx4 v[8:11], v12, s[28:31], s10 offen offset:1024 {stf}")
            a(f"L_nst{i}:")
            a(f"  s_cmp_ge_u32 s2, {nc}")
            a(f"  s_cbranch_scc1 L_fin")
            total = npd * lanes_per
            nl = (total + T - 1) // T
            if npd & (npd - 1):
                raise SystemExit("producers must be pow2 here")
            for q in range(nl):
                a(f"  v_add_u32 v13, {q*T}, v0")
                a(f"  v_and_b32 v13, {total-1}, v13")
                sh = lanes_per.bit_length() - 1
                a(f"  v_lshrrev_b32 v14, {sh}, v13")
                a("  v_lshlrev_b32 v14, 11, v14")
                a(f"  v_and_b32 v13, {lanes_per-1}, v13")
                a(f"  v_lshl_add_u32 v{40+q}, v13, 4, v14")
            a(f"  s_mul_i32 s10, s2, {cols*4}")
            a(f"  s_add_u32 s10, s10, {base}")
            a("  s_mov_b32 s18, 0"); a(f"L_poll{i}:"); a("  s_add_u32 s18, s18, 1"); a("  s_cmp_gt_u32 s18, 20000"); a("  s_cbranch_scc1 L_fin")
            for q in range(nl):
                a(f"  buffer_load_dwordx4 v[{64+4*q}:{67+4*q}], v{40+q}, s[28:31], s10 offen {ldf}")
            a("  s_waitcnt vmcnt(0)")
            check([64 + 4*q for q in range(nl)], f"L_poll{i}")
            a("  s_barrier")
        a(f"  s_memrealtime s[{62+2*i}:{63+2*i}]")
        a(f"  s_memtime s[{42+2*i}:{43+2*i}]")
    a("L_fin:")
    a("  s_waitcnt lgkmcnt(0)")
    a("  s_lshl_b32 s56, s2, 10")
    a("  s_lshl_b32 s57, s3, 6")
    a("  s_add_u32 s56, s56, s57")
    for i in range(len(stages) + 1):
        a(f"  v_mov_b32 v1, s{60+2*i}")
        a(f"  buffer_store_dword v1, v3, s[28:31], s56 offen offset:{4*i}")
        a(f"  v_mov_b32 v1, s{40+2*i}")
        a(f"  buffer_store_dword v1, v3, s[28:31], s56 offen offset:{32+4*i}")
    L.append(FTR.format(N=NAME, nv=128, ao=128))
    s = "\n".join(L)
    body = s.split("  s_memtime s[40:41]")[1].split("L_fin:")[0]
    pw = []
    for ln in body.split("\n"):
        t = ln.strip()
        if t.startswith("s_memrealtime") or t.startswith("s_memtime") or t.startswith("s_barrier"): continue
        if t.startswith("v_perm") or t.startswith("v_or_b32 v6") or t.startswith("v_cmp_ne") or t.startswith("s_or_b64 vcc"): continue
        if t.startswith("s_cbranch_vcc") or t.startswith("s_sleep") or (t.startswith("s_branch") and "L_nxt" not in t) or t.endswith("_ok:"): continue
        if t.startswith("s_add_u32 s18") or t.startswith("s_cmp_gt_u32 s18"): continue
        if t == "s_cbranch_scc1 L_fin":
            if pw and pw[-1].strip().startswith("s_cmp_ge_u32 s2"):
                pw.append("  s_cbranch_scc1 L_pwend")
            continue
        if t.startswith("buffer_store") and "w" not in prew: continue
        if t.startswith("buffer_load") and "r" not in prew: continue
        if t.startswith("s_load_dwordx8 s[80") or t.startswith("s_and_b32 s80") or t.startswith("s_cmp_lg_u32 s80") or t.startswith("s_cbranch_scc1 L_poll"): continue
        if t.startswith("buffer_atomic") or t.startswith("v_perm") or t.startswith("L_done"): continue
        if t.startswith("v_mov_b32 v8,") or t.startswith("v_mov_b32 v9,") or t.startswith("v_mov_b32 v10,") or t.startswith("v_mov_b32 v11,"):
            ln = ln.split(",")[0] + ", 0"
        ln = ln.replace("L_", "P_") if "L_pwend" not in ln else ln
        pw.append(ln)
    pw.append("L_pwend:")
    s = s.replace("@@PREWARM@@", "\n".join(pw) if prew else "")
    if delay:
        import re
        s = re.sub(r"(  s_mov_b32 s18, 0\nL_poll\d+:)", lambda m: f"  s_sleep {delay}\n" + m.group(1), s)
    init = "".join(f"  s_mov_b32 s{r}, 0\n" for r in list(range(40, 56)) + list(range(60, 78)))
    return s.replace("  s_load_dwordx8 s[20:27], s[0:1], 64", init + "  s_load_dwordx8 s[20:27], s[0:1], 64", 1)
if __name__ == "__main__":
    I = lambda st, ld="sc1": dict(kind="intra", st=st, ld=ld)
    G = lambda n, st="sc1", ld="sc1": dict(kind="gather", readers=n, st=st, ld=ld)
    F = lambda p, c, st="sc1", ld="sc1": dict(kind="final", producers=p, consumers=c, st=st, ld=ld)
    files = []
    for late in (0, 100):
        for pw in ("w", ""):
            f = f"h6_sfl_{pw or 'n'}_l{late}.s"
            open(f, "w").write(gen([dict(kind="sfl"), dict(kind="sfl")], prew=pw, late=late)); files.append(f)
    print(" ".join(files))
    print(", ".join('"work/%s"' % f for f in files))
```

```python
from gen_hop import HDR, FTR, NAME
def gen(nload, natom=16, glc=""):
    L = [HDR.format(T=256, lds=90000, N=NAME)]
    a = L.append
    a("  s_cmp_ge_u32 s2, 256"); a("  s_cbranch_scc1 L_end")
    a("  s_load_dwordx16 s[4:19], s[0:1], 0"); a("  s_load_dwordx8 s[20:27], s[0:1], 64")
    a("  v_lshrrev_b32 v1, 6, v0"); a("  v_and_b32 v0, 63, v0"); a("  v_readfirstlane_b32 s3, v1")
    a("  v_lshlrev_b32 v2, 4, v0")
    a("  s_waitcnt lgkmcnt(0)")
    for r in range(60, 70): a(f"  s_mov_b32 s{r}, 0")
    a("  s_and_b32 s40, s2, 127"); a("  s_lshl_b32 s40, s40, 9"); a("  s_add_u32 s40, s40, 0x200000")
    a("  v_lshl_add_u32 v3, v0, 3, s40")
    a("  global_load_dwordx2 v[4:5], v3, s[26:27] sc1"); a("  s_waitcnt vmcnt(0)"); a("  s_sleep 40"); a("  s_barrier")
    a("  s_cmp_ge_u32 s2, 128"); a("  s_cbranch_scc1 L_cons")
    a(f"  s_mul_i32 s56, s2, {4*max(nload,1)*1024}"); a(f"  s_mul_i32 s57, s3, {nload*1024}"); a("  s_add_u32 s56, s56, s57")
    a("  v_add_u32 v6, s56, v2")
    for i in range(nload):
        a(f"  global_load_dwordx4 v[{8+4*i}:{11+4*i}], v6, s[6:7] nt"); a("  v_add_u32 v6, 1024, v6")
    a("  s_sleep 6")
    a(f"  s_mul_i32 s41, s3, {natom*8}"); a("  s_add_u32 s41, s41, s40"); a("  s_add_u32 s42, s26, s41"); a("  s_addc_u32 s43, s27, 0")
    a("  s_memrealtime s[60:61]")
    for i in range(natom):
        a(f"  s_mov_b32 s{70+2*(i%8)}, 0x55"); a(f"  s_mov_b32 s{71+2*(i%8)}, 0x77")
        a(f"  s_atomic_swap_x2 s[{70+2*(i%8)}:{71+2*(i%8)}], s[42:43], {8*i} {glc}")
    a("  s_memrealtime s[62:63]"); a("  s_waitcnt lgkmcnt(0)"); a("  s_memrealtime s[64:65]"); a("  s_waitcnt vmcnt(0)"); a("  s_memrealtime s[66:67]")
    a("  s_branch L_fin")
    a("L_cons:"); a("  s_cmp_lg_u32 s3, 0"); a("  s_cbranch_scc1 L_fin"); a("  s_mov_b32 s18, 0"); a("  s_movk_i32 s19, 0x77")
    a("L_poll:"); a("  s_add_u32 s18, s18, 1"); a("  s_cmp_gt_u32 s18, 5000"); a("  s_cbranch_scc1 L_fin")
    a("  global_load_dwordx2 v[4:5], v3, s[26:27] sc1"); a("  s_waitcnt vmcnt(0)"); a("  v_cmp_ne_u32 vcc, s19, v5"); a("  s_cbranch_vccnz L_poll")
    a("  s_memrealtime s[60:61]")
    a("L_fin:"); a("  s_waitcnt lgkmcnt(0)")
    a("  s_lshl_b32 s56, s2, 10"); a("  s_lshl_b32 s57, s3, 6"); a("  s_add_u32 s56, s56, s57"); a("  v_mov_b32 v3, s56")
    for i in range(4):
        a(f"  v_mov_b32 v1, s{60+2*i}"); a(f"  global_store_dword v3, v1, s[26:27] offset:{4*i}")
    L.append(FTR.format(N=NAME, nv=128, ao=128))
    return "\n".join(L)
for n in (0, 12):
    open(f"sa_{n}.s", "w").write(gen(n))
```

```python
import sys
from asmlib import pad

NAME = "sequential_preLN__sliding_block_cached__swiglu_ffn__decode"

WS_HI, WS_ML, WS_B2A, WS_A1, WS_C, WS_QA, WS_QB, WS_E, WS_ST = 0x1000, 0x2000, 0x8000, 0x10000, 0x100000, 0xD0000, 0xE0000, 0xF0000, 0x180000
L_QS, L_MX, L_OV, L_HV, L_QP = 0, 1024, 1664, 1792, 4096
L_OR, OR_PLANE = 4096, 68
OR_STRIDE = 8 * 4 * OR_PLANE
L_G, L_U, L_K = 16384, 32768, 16384
LDS_BASE = 16384

sW, sG, sJ, sE, sXCC, sHX, sFAST = 3, 28, 29, 30, 31, 32, 33
sTA4, sTA2, sTB4, sTH4 = 34, 35, 36, 37
sSLO, sSHI, sPLO, sPHI = 38, 39, 40, 41
sM = [42, 44, 46, 48]
sG1 = 50
sQP = 52
sT0, sT1, sT2, sT3 = 54, 55, 56, 57
sQN, sSPIN = 59, 60
sA1G, sF, sKQ, sKM = 58, 58, 61, 98
sCM = 24
sCODE = 62
ST0 = 64
X, KP, VP, WQ, WO, GA, UP, DN, OUT, DBG, WS = 4, 6, 8, 10, 12, 16, 18, 20, 22, 24, 26
KB, VB = [KP, 0, 14, 10], [VP, 62, 100, 12]
REGION = 1 << 16

vL, vK, vV, vN, vGp, vSEL, vQ = 0, 1, 2, 3, 4, 5, 6
vA, vB, vC, vD, vXH = 7, 8, 9, 10, 11
t0, t1, t2, t3 = 12, 13, 14, 15
RK, RV, RB, RA, RD, RP, RX = 16, 80, 144, 176, 192, 208, 216
RW, RWB, RWD = RV + 16, RK + 16, RB
vKD, vF, vHI, vHA, aOX, aMR = 228, 232, 236, 237, 253, 254
aKR, aQW, aQR, aMW, aOW, aOR, aA1, aML, aFG, aFD, aTR, aHP, aES, aEG, aCS = range(238, 253)
aWO, aMG, aAG, aVW, aVR, aB1, aBG, aB2, aHG, aHB, aHW, aC0, aC1, aHR, aOut = range(RV + 48, RV + 63)
NVGPR = 256
LOG2E = "0x3fb8aa3b"
DPP = "row_mask:0xf bank_mask:0xf"
TILE = 4 << 16


def sp(r):
    return f"s[{r}:{r + 1}]"


def vr(r, n):
    return f"v[{r}:{r + n - 1}]"


class Gen:
    def __init__(self, prof=0, nt=1, qa_tries=24, d_b1=0, d_b2a=10, d_c=36, d_e=0, force_slow=0, code_bytes=16384,
                 codepf=1, qtouch=1, fine=0, leak_wg=-1, leak_a=0, leak_b=14, leak_clk=0,
                 uh=12, depth=8, d0=8, hq_at=8, hq_wait=5, lw=8, lp=2, ciod=1, biod=1):
        self.L, self.cold = [], []
        self.prof, self.fine, self.nt = prof, fine, " nt" if nt else ""
        self.qa_tries, self.force_slow = qa_tries, force_slow
        self.d_b1, self.d_b2a, self.d_c, self.d_e = d_b1, d_b2a, d_c, d_e
        self.code_bytes, self.codepf, self.qtouch = code_bytes, codepf, qtouch
        self.leak = (leak_wg, leak_a, leak_b, leak_clk)
        assert uh == 12
        self.uh, self.ul, self.nh, self.nl = uh, 16 - uh, (uh + 3) // 4, 1
        self.depth, self.hq_at, self.hq_wait, self.lw = depth, hq_at, hq_wait, lw
        self.gap, self.d0, self.lp = 0, d0, lp
        self.ciod, self.biod = ciod, biod

    def a(self, s):
        for ln in s.strip("\n").split("\n"):
            ln = ln.strip()
            if ln:
                self.L.append(ln if ln.endswith(":") or ln.startswith(".") or ln.startswith(";") else "  " + ln)

    def stamp(self, k, early=False):
        if self.fine and 8 <= k <= 13 and not early:
            return
        if self.prof == 1:
            self.a(f"s_memtime {sp(ST0 + 2 * k)}")
        if self.leak[0] >= 0 and k in self.leak[1:3]:
            self.a(f"{'s_memtime' if self.leak[3] == 1 else 's_memrealtime'} {sp(ST0 + (0 if k == self.leak[1] else 2))}")

    def fstamp(self, k):
        if self.fine:
            self.stamp(k, True)

    def sleep(self, n):
        if n:
            self.a(f"s_sleep {n}")

    def spin(self):
        self.a(f"s_sub_u32 s{sSPIN}, s{sSPIN}, 1\ns_cbranch_scc1 L_exit")

    def check4(self, r, tag, dst="vcc"):
        self.a(f"""v_perm_b32 v{t0}, v{r + 1}, v{r}, s{sSLO}
        v_perm_b32 v{t1}, v{r + 3}, v{r + 2}, s{sSHI}
        v_or_b32 v{t0}, v{t0}, v{t1}
        v_cmp_ne_u32 {dst}, s{tag}, v{t0}""")

    def check2(self, r):
        self.a(f"v_perm_b32 v{t0}, v{r + 1}, v{r}, s{sSLO}\nv_cmp_ne_u32 vcc, s{sTA2}, v{t0}")

    def tag(self, dst, src, tag):
        self.a(f"v_perm_b32 v{dst}, v{src}, s{tag}, v{vSEL}")

    def pub_cmp(self):
        self.a(f"s_cmp_eq_u32 s{sFAST}, 0")

    def pub(self, name, store, cmp=True):
        if cmp:
            self.pub_cmp()
        self.a(f"s_cbranch_scc1 L_slow_{name}\n{store}\nL_back_{name}:")
        self.cold.append(f"L_slow_{name}:\n{store} sc1\ns_branch L_back_{name}")

    def poll(self, name, loads, tag, dst, depth, slots, primed=False):
        a, n = self.a, len(loads)

        def issue(k):
            for i, ld in enumerate(loads):
                a(ld.format(vr(slots[k] + 4 * i, 4)))

        def test(k, younger):
            for i in range(n):
                a(f"s_waitcnt vmcnt({younger + n - 1 - i})")
                self.check4(slots[k] + 4 * i, tag, "vcc" if i == n - 1 else sp(sT2))
                for e in range(4):
                    a(f"v_and_b32 v{dst + 4 * i + e}, 0xffffff00, v{slots[k] + 4 * i + e}")
            if n > 1:
                a(f"s_or_b64 vcc, vcc, {sp(sT2)}")
        if depth == 1:
            if primed:
                a(f"s_branch L_{name}_w")
            a(f"L_{name}:")
            issue(0)
            self.spin()
            if primed:
                a(f"L_{name}_w:")
            test(0, 0)
            a(f"s_cbranch_vccnz L_{name}")
            return
        for k in range(1 if primed else 0, depth - 1):
            issue(k)
            self.sleep(self.gap)
        a(f"L_{name}:")
        for k in range(depth):
            issue((k + depth - 1) % depth)
            if k == 0:
                self.spin()
            test(k, (depth - 1) * n)
            a(f"s_cbranch_vccz L_{name}_ok" if k < depth - 1 else f"s_cbranch_vccnz L_{name}")
        a(f"L_{name}_ok:")

    def bf16r(self, dst, src):
        self.a(f"v_cvt_pk_bf16_f32 v{dst}, v{src}, v{src}\nv_and_b32 v{dst}, 0xffff0000, v{dst}")

    def allred(self, r, op, rors=(8, 4, 2, 1), tmp=t3):
        for k in rors:
            self.a(f"{op}_dpp v{r}, v{r}, v{r} row_ror:{k} {DPP}")
        for sw in ("v_permlane16_swap_b32", "v_permlane32_swap_b32"):
            self.a(f"v_mov_b32 v{tmp}, v{r}\n{sw} v{r}, v{tmp}\n{op} v{r}, v{r}, v{tmp}")

    def rs4(self, r):
        self.a(f"""v_permlane32_swap_b32 v{r}, v{r + 2}
        v_permlane32_swap_b32 v{r + 1}, v{r + 3}
        v_add_f32 v{r}, v{r}, v{r + 2}
        v_add_f32 v{r + 1}, v{r + 1}, v{r + 3}
        v_permlane16_swap_b32 v{r}, v{r + 1}
        v_add_f32 v{r}, v{r}, v{r + 1}""")

    def matvec8(self, mf, D, out, tag, after=None):
        order = [0, 4, 1, 5, 2, 6, 3, 7]
        sel = [f"v_cndmask_b32 v{out + i}, v{D + 4 * i}, v{D + 16 + 4 * i}, {sp(sG1)}" for i in range(4)]
        for t in order:
            self.a(mf(t))
        if after:
            self.a(after)
        for i in range(4):
            self.a(sel[i])
            if i:
                self.tag(out + i - 1, out + i - 1, tag)
        self.tag(out + 3, out + 3, tag)

    def ln_scale(self, mean, var, tmp):
        self.a(f"v_cvt_pk_bf16_f32 v{tmp}, v{mean}, v{var}")
        self.a(f"v_lshlrev_b32 v{mean}, 16, v{tmp}\nv_and_b32 v{var}, 0xffff0000, v{tmp}")
        self.a(f"v_add_f32 v{var}, 0x3727c5ac, v{var}")
        self.bf16r(var, var)
        self.a(f"v_sqrt_f32 v{var}, v{var}")
        self.bf16r(var, var)

    def perm_pair(self, src0, src1, dst, stride, slot):
        for dd in range(4):
            self.a(f"v_perm_b32 v{dst + stride * (2 * dd) + slot}, v{src1 + dd}, v{src0 + dd}, s{sPLO}")
            self.a(f"v_perm_b32 v{dst + stride * (2 * dd + 1) + slot}, v{src1 + dd}, v{src0 + dd}, s{sPHI}")

    def consts(self):
        self.a(f"""s_mov_b32 s{sSLO}, 0x0c0c0400
        s_mov_b32 s{sSHI}, 0x04000c0c
        s_mov_b32 s{sPLO}, 0x05040100
        s_mov_b32 s{sPHI}, 0x07060302
        s_mov_b32 s{sM[0]}, 0x11111111
        s_mov_b32 s{sM[0] + 1}, 0x11111111
        s_lshl_b64 {sp(sM[1])}, {sp(sM[0])}, 1
        s_lshl_b64 {sp(sM[2])}, {sp(sM[0])}, 2
        s_lshl_b64 {sp(sM[3])}, {sp(sM[0])}, 3
        s_mov_b32 s{sG1}, 0xffff0000
        s_mov_b32 s{sG1 + 1}, 0xffff0000
        s_mov_b32 s{sSPIN}, 0x20000
        s_mov_b32 s{sQN}, 0
        s_mov_b32 s{sCM}, 2
        v_mov_b32 v{vSEL}, 0x07060500
        s_getreg_b32 s{sXCC}, hwreg(HW_REG_XCC_ID, 0, 4)
        s_lshl_b32 s{sT0}, s{sG}, 7
        s_add_u32 s{sT0}, s{sT0}, {WS_HI}
        v_lshl_add_u32 v{vHA}, v{vN}, 2, s{sT0}
        s_lshl_b32 s{sT0}, s{sG}, 13
        s_lshl_b32 s{sT1}, s{sW}, 10
        s_add_u32 s{sT0}, s{sT0}, s{sT1}
        s_add_u32 s{sT0}, s{sT0}, {WS_QA + 2048}
        v_lshl_add_u32 v{vQ}, v{vL}, 4, s{sT0}
        s_mov_b64 {sp(sQP)}, {sp(WS)}""")

    def addr_att(self, nt):
        self.a(f"""v_xor_b32 v{t0}, v{vN}, v{vGp}
        v_lshlrev_b32 v{t0}, 4, v{t0}
        v_lshl_add_u32 v{t0}, v{vN}, 8, v{t0}
        s_mul_i32 s{sT0}, s{sW}, {4096 * nt}
        v_add_u32 v{aKR}, s{sT0}, v{t0}
        s_lshl_b32 s{sT0}, s{sW}, 8
        v_lshl_add_u32 v{aQW}, v{vL}, 2, s{sT0}
        v_lshrrev_b32 v{t0}, 2, v{vN}
        v_lshlrev_b32 v{t1}, 8, v{t0}
        v_lshl_add_u32 v{aQR}, v{vGp}, 4, v{t1}
        s_lshl_b32 s{sT1}, s{sW}, 3
        v_lshl_add_u32 v{aMW}, v{t0}, 5, s{sT1}
        s_mul_i32 s{sT1}, s{sW}, {OR_STRIDE}
        s_add_u32 s{sT1}, s{sT1}, {L_OR}
        v_lshl_add_u32 v{aOW}, v{vL}, 2, s{sT1}
        v_add_u32 v{aOX}, {16 * OR_PLANE}, v{aOW}
        s_lshl_b32 s{sT1}, s{sW}, 5
        v_mov_b32 v{aMR}, s{sT1}
        s_lshl_b32 s{sT1}, s{sW}, 6
        s_add_u32 s{sT1}, s{sT1}, {L_OR}
        v_and_b32 v{t0}, 0x3c, v{vL}
        v_add_u32 v{aOR}, s{sT1}, v{t0}
        v_and_b32 v{t0}, 3, v{vL}
        v_mul_u32_u24 v{t0}, {8 * OR_PLANE}, v{t0}
        v_add_u32 v{aOR}, v{t0}, v{aOR}
        v_add_u32 v{RD + 13}, {OR_STRIDE}, v{aOR}
        v_add_u32 v{RD + 14}, {2 * OR_STRIDE}, v{aOR}
        v_add_u32 v{RD + 15}, {3 * OR_STRIDE}, v{aOR}
        s_lshl_b32 s{sT0}, s{sG}, 16
        s_lshl_b32 s{sT1}, s{sJ}, 11
        s_add_u32 s{sT0}, s{sT0}, s{sT1}
        s_lshl_b32 s{sT1}, s{sW}, 9
        s_add_u32 s{sT0}, s{sT0}, s{sT1}
        s_add_u32 s{sT0}, s{sT0}, {WS_A1}
        v_lshl_add_u32 v{aA1}, v{vL}, 3, s{sT0}
        s_lshl_b32 s{sT0}, s{sG}, 10
        s_lshl_b32 s{sT1}, s{sJ}, 5
        s_add_u32 s{sT0}, s{sT0}, s{sT1}
        s_lshl_b32 s{sT1}, s{sW}, 3
        s_add_u32 s{sT0}, s{sT0}, s{sT1}
        s_add_u32 s{sT0}, s{sT0}, {WS_ML}
        v_mov_b32 v{aML}, s{sT0}""")

    def addr_w(self):
        self.a(f"""s_lshl_b32 s{sT0}, s{sG}, 19
        s_lshl_b32 s{sT1}, s{sJ}, 15
        s_add_u32 s{sT0}, s{sT0}, s{sT1}
        s_lshl_b32 s{sT1}, s{sW}, 8
        s_add_u32 s{sT0}, s{sT0}, s{sT1}
        s_add_u32 s{sT0}, s{sT0}, 4096
        v_lshlrev_b32 v{t0}, 13, v{vGp}
        v_lshl_add_u32 v{t0}, v{vN}, 4, v{t0}
        v_add_u32 v{aWO}, s{sT0}, v{t0}
        v_lshrrev_b32 v{t0}, 1, v{vL}
        s_lshl_b32 s{sT0}, s{sG}, 10
        s_lshr_b32 s{sT1}, s{sJ}, 2
        s_lshl_b32 s{sT1}, s{sT1}, 3
        s_add_u32 s{sT0}, s{sT0}, s{sT1}
        s_add_u32 s{sT0}, s{sT0}, {WS_ML}
        v_lshl_add_u32 v{aMG}, v{t0}, 5, s{sT0}
        s_lshl_b32 s{sA1G}, s{sG}, 16
        s_add_u32 s{sA1G}, s{sA1G}, {WS_A1}
        s_lshl_b32 s{sT1}, s{sJ}, 7
        s_add_u32 s{sT2}, s{sA1G}, s{sT1}
        s_lshl_b32 s{sT1}, s{sW}, 5
        s_add_u32 s{sT0}, s{sT2}, s{sT1}
        v_lshlrev_b32 v{aAG}, 11, v{t0}
        v_and_b32 v{t1}, 1, v{vL}
        v_lshl_add_u32 v{aAG}, v{t1}, 4, v{aAG}
        v_add_u32 v{aAG}, s{sT0}, v{aAG}
        v_lshlrev_b32 v{aVW}, 3, v{t1}
        v_lshl_add_u32 v{aVW}, v{vGp}, 1, v{aVW}
        s_lshl_b32 s{sT1}, s{sW}, 4
        v_add_u32 v{aVW}, s{sT1}, v{aVW}
        v_lshlrev_b32 v{aVR}, 4, v{vGp}
        v_lshrrev_b32 v{t0}, 2, v{vN}
        v_lshlrev_b32 v{aB1}, 11, v{t0}
        v_and_b32 v{t0}, 3, v{vN}
        v_lshl_add_u32 v{aB1}, v{t0}, 5, v{aB1}
        v_and_b32 v{t0}, 1, v{vGp}
        v_lshl_add_u32 v{aB1}, v{t0}, 4, v{aB1}
        s_lshl_b32 s{sT1}, s{sW}, 13
        s_add_u32 s{sT0}, s{sT2}, s{sT1}
        v_add_u32 v{aB1}, s{sT0}, v{aB1}
        s_add_u32 s{sT2}, s{sT2}, {16 * 2048}
        v_lshl_add_u32 v{aHB}, v{vD}, 2, s{sT2}
        v_lshlrev_b32 v{aHW}, 2, v{vD}
        s_lshl_b32 s{sT1}, s{sJ}, 11
        s_add_u32 s{sT0}, s{sA1G}, s{sT1}
        v_lshl_add_u32 v{aBG}, v{vL}, 4, s{sT0}
        v_and_b32 v{t0}, 7, v{vL}
        v_lshlrev_b32 v{aB2}, 2, v{t0}
        v_lshl_add_u32 v{aB2}, v{vGp}, 5, v{aB2}
        v_bfe_u32 v{t1}, v{vL}, 3, {1 if self.biod else 0}
        v_lshl_add_u32 v{aB2}, v{t1}, 13, v{aB2}
        s_and_b32 s{sT0}, s{sG}, 4
        s_add_u32 s{sT0}, s{sT0}, s{sG}
        s_lshl_b32 s{sT0}, s{sT0}, 11
        s_lshl_b32 s{sT1}, s{sJ}, 7
        s_add_u32 s{sT1}, s{sT1}, {WS_B2A}
        s_add_u32 s{sT0}, s{sT0}, s{sT1}
        v_add_u32 v{aB2}, s{sT0}, v{aB2}
        v_lshrrev_b32 v{aHG}, 3, v{vL}
        v_and_b32 v{t1}, 4, v{aHG}
        v_add_u32 v{aHG}, v{t1}, v{aHG}
        v_lshlrev_b32 v{aHG}, 11, v{aHG}
        v_lshl_add_u32 v{aHG}, v{t0}, 4, v{aHG}
        s_lshr_b32 s{sT0}, s{sG}, 2
        s_xor_b32 s{sT0}, s{sT0}, {1 if self.biod == 2 else 0}
        s_mul_i32 s{sT0}, s{sT0}, {0x2000 if self.biod else 0}
        s_add_u32 s{sT1}, s{sT1}, s{sT0}
        v_add_u32 v{aHG}, s{sT1}, v{aHG}
        s_lshl_b32 s{sT0}, s{sG}, 9
        s_lshl_b32 s{sT1}, s{sJ}, 5
        s_add_u32 s{sT0}, s{sT0}, s{sT1}
        s_lshl_b32 s{sT1}, s{sW}, 4
        s_add_u32 s{sT0}, s{sT0}, s{sT1}
        s_add_u32 s{sT0}, s{sT0}, {WS_C}
        v_min_u32 v{aC1}, 47, v{vL}""")
        for r, src in ((aC0, vL), (aC1, aC1)):
            if self.ciod:
                self.a(f"""v_and_b32 v{t0}, 0x3c, v{src}
                v_add_u32 v{r}, v{t0}, v{src}
                v_lshlrev_b32 v{r}, 11, v{r}""")
            else:
                self.a(f"v_lshlrev_b32 v{r}, 11, v{src}")
        self.a(f"""s_add_u32 s{sT0}, s{sT0}, {0x2000 if self.ciod == 2 else 0}
        v_add_u32 v{aC0}, s{sT0}, v{aC0}
        s_add_u32 s{sT0}, s{sT0}, {64 * 2048 * (2 if self.ciod else 1)}
        v_add_u32 v{aC1}, s{sT0}, v{aC1}
        s_lshl_b32 s{sT0}, s{sG}, 3
        s_lshl_b32 s{sT1}, s{sW}, 2
        s_add_u32 s{sT0}, s{sT0}, s{sT1}
        v_add_u32 v{t2}, s{sT0}, v{vGp}
        v_lshlrev_b32 v{aHR}, 2, v{t2}
        s_lshl_b32 s{sT1}, s{sJ}, 6
        v_lshl_add_u32 v{aOut}, v{t2}, 1, s{sT1}""")

    def addr_f(self):
        self.a(f"""s_lshl_b32 s{sF}, s{sG}, 4
        s_add_u32 s{sF}, s{sF}, s{sJ}
        s_sub_u32 s{sF}, s{sF}, 16
        s_and_b32 s{sKQ}, s{sF}, 3
        s_lshl_b32 s{sT0}, s{sKQ}, 2
        s_add_u32 s{sT0}, s{sT0}, s{sW}
        s_mul_i32 s{sT0}, s{sT0}, {32 * 3584}
        s_lshr_b32 s{sT1}, s{sF}, 2
        s_lshl_b32 s{sT1}, s{sT1}, 7
        s_add_u32 s{sT0}, s{sT0}, s{sT1}
        v_lshrrev_b32 v{t0}, 3, v{vL}
        v_mul_u32_u24 v{t0}, 3584, v{t0}
        v_and_b32 v{t1}, 7, v{vL}
        v_lshl_add_u32 v{t0}, v{t1}, 4, v{t0}
        v_add_u32 v{aFG}, s{sT0}, v{t0}
        s_lshl_b32 s{sT0}, s{sF}, 14
        s_lshl_b32 s{sT1}, s{sW}, 8
        s_add_u32 s{sT0}, s{sT0}, s{sT1}
        v_lshlrev_b32 v{t0}, 12, v{vGp}
        v_lshl_add_u32 v{t0}, v{vN}, 4, v{t0}
        v_add_u32 v{aFD}, s{sT0}, v{t0}
        v_lshrrev_b32 v{t0}, 2, v{vN}
        v_and_b32 v{t1}, 3, v{vL}
        v_lshlrev_b32 v{aTR}, 11, v{vGp}
        v_lshl_add_u32 v{aTR}, v{t0}, 7, v{aTR}
        v_lshl_add_u32 v{aTR}, v{t1}, 3, v{aTR}
        s_lshl_b32 s{sT0}, s{sW}, 5
        v_add_u32 v{aTR}, s{sT0}, v{aTR}
        v_lshlrev_b32 v{aHP}, 9, v{t0}
        v_lshl_add_u32 v{aHP}, v{vGp}, 6, v{aHP}
        v_lshl_add_u32 v{aHP}, v{t1}, 4, v{aHP}
        s_lshl_b32 s{sT0}, s{sG}, 16
        s_add_u32 s{sT0}, s{sT0}, {WS_A1 + 16 * 2048}
        v_add_u32 v{aHP}, s{sT0}, v{aHP}
        s_and_b32 s{sT0}, s{sF}, 0xfc
        s_add_u32 s{sT0}, s{sT0}, s{sW}
        s_lshl_b32 s{sT0}, s{sT0}, 9
        s_lshl_b32 s{sT1}, s{sKQ}, 3
        s_add_u32 s{sT0}, s{sT0}, s{sT1}
        s_add_u32 s{sT0}, s{sT0}, {WS_E}
        v_lshl_add_u32 v{aES}, v{vN}, 5, s{sT0}
        s_lshl_b32 s{sT0}, s{sF}, 9
        s_add_u32 s{sT0}, s{sT0}, {WS_E}
        v_lshrrev_b32 v{t2}, 2, v{vL}
        v_lshl_add_u32 v{aEG}, v{t2}, 5, s{sT0}
        v_and_b32 v{t2}, 1, v{vL}
        v_lshl_add_u32 v{aEG}, v{t2}, 4, v{aEG}
        v_lshlrev_b32 v{aCS}, 9, v{t1}
        v_lshl_add_u32 v{aCS}, v{t0}, 5, v{aCS}
        v_and_b32 v{t1}, 1, v{vGp}
        v_lshl_add_u32 v{aCS}, v{t1}, 4, v{aCS}
        s_and_b32 s{sT0}, s{sF}, {0xfc if self.ciod else 0}
        s_add_u32 s{sT0}, s{sT0}, s{sF}
        s_lshl_b32 s{sT0}, s{sT0}, 11
        s_add_u32 s{sT0}, s{sT0}, {0x2000 if self.ciod == 2 else 0}
        s_lshl_b32 s{sT1}, s{sW}, 7
        s_add_u32 s{sT0}, s{sT0}, s{sT1}
        s_add_u32 s{sT0}, s{sT0}, {WS_C}
        v_add_u32 v{aCS}, s{sT0}, v{aCS}
        s_lshl_b32 s{sT0}, s{sKQ}, 4
        s_mov_b64 {sp(sKM)}, 0xffff
        s_lshl_b64 {sp(sKM)}, {sp(sKM)}, s{sT0}""")

    def tags(self):
        self.a(f"""s_add_u32 s{sE}, s{sE}, 1
        s_and_b32 s{sT0}, s{sE}, 0xff
        s_mul_i32 s{sTA4}, s{sT0}, 0x01010101
        s_and_b32 s{sTA2}, s{sTA4}, 0xffff
        s_xor_b32 s{sTB4}, s{sTA4}, 0x40404040
        s_xor_b32 s{sTH4}, s{sTA4}, 0x80808080
        s_lshl_b32 s{sHX}, s{sE}, 4
        s_or_b32 s{sHX}, s{sHX}, s{sXCC}""")

    def census_load(self, off):
        self.a(f"global_load_dword v{vHI}, v{vHA}, {sp(WS)} offset:{off} sc1")

    def census_eval(self):
        if self.force_slow:
            self.a(f"s_mov_b32 s{sFAST}, 0")
        else:
            self.a(f"v_cmp_ne_u32 vcc, s{sHX}, v{vHI}\ns_cmp_eq_u64 vcc, 0\ns_cselect_b32 s{sFAST}, 1, 0")

    def kload(self, i):
        self.a(f"s_add_u32 m0, s{sT3}, {L_K + 1024 * i}\nglobal_load_lds_dwordx4 v{vKD + i % 4}, {sp(KB[i // 4])}{self.nt}")

    def live(self, groups):
        m = (1 << 16 * groups) - 1
        self.a(f"s_mov_b32 exec_lo, {hex(m & 0xffffffff)}\ns_mov_b32 exec_hi, {hex(m >> 32)}")

    def vload(self, i):
        self.a(f"global_load_dwordx4 {vr(RV + 4 * i, 4)}, v{vV}, {sp(VB[i // 4])} offset:{256 * (i % 4)}{self.nt}")

    def vload_last(self, nt, groups):
        if groups < 4:
            self.live(groups)
        for i in range(4 * nt - 4, 4 * nt):
            self.vload(i)
        if groups < 4:
            self.a("s_mov_b64 exec, -1")

    def vzero(self, nt):
        if self.uh % 4 == 0:
            return
        for r in range(RV + 16 * nt - 16, RV + 16 * nt):
            self.a(f"v_mov_b32 v{r}, 0")

    def tile_bases(self, nt, ptrs):
        for tau in range(1, nt):
            self.a(f"s_add_u32 s{ptrs[tau]}, s{ptrs[0]}, {tau * TILE}\ns_addc_u32 s{ptrs[tau] + 1}, s{ptrs[0] + 1}, 0")

    def kreads(self, nt):
        for s in range(4):
            if s:
                self.a(f"v_xor_b32 v{t1}, {64 * s}, v{aKR}")
            for tau in range(nt):
                self.a(f"ds_read_b128 {vr(RK + 16 * tau + 4 * s, 4)}, v{t1 if s else aKR} offset:{L_K + 4096 * tau}")

    def vperm(self, p, nt):
        if nt == 1:
            self.perm_pair(RV + 8 * p, RV + 8 * p + 4, RB, 2, p)
        elif nt == 3 and p >= 4:
            self.perm_pair(RV + 8 * p, RV + 8 * p + 4, RV, 2, p - 4)
        else:
            self.perm_pair(RV + 8 * p, RV + 8 * p + 4, RB if p < 4 else RV, 4, p % 4)

    def wo_load(self, jj):
        self.a(f"global_load_dwordx4 {vr(RW + 4 * jj, 4)}, v{aWO}, {sp(WO)} offset:{1024 * jj - 4096}{self.nt}")

    def qloads(self, base):
        self.a(f"global_load_dwordx4 {vr(RX, 4)}, v{vQ}, {sp(base)} offset:-2048 sc1")
        self.a(f"global_load_dwordx4 {vr(RX + 4, 4)}, v{vQ}, {sp(base)} offset:2048 sc1")

    def qcheck(self):
        self.a(f"""v_xor_b32 v{t0}, s{sE}, v{RX + 1}
        v_xor_b32 v{t1}, s{sE}, v{RX + 3}
        v_xor_b32 v{t2}, s{sE}, v{RX + 5}
        v_xor_b32 v{t3}, s{sE}, v{RX + 7}
        v_or3_b32 v{t0}, v{t0}, v{t1}, v{t2}
        v_xor_b32 v{t1}, s{sHX}, v{vHI}
        v_or_b32 v{t0}, v{t0}, v{t3}
        v_lshrrev_b32 v{t1}, s{sCM}, v{t1}
        v_lshrrev_b32 v{t1}, s{sCM}, v{t1}
        v_or_b32 v{t0}, v{t0}, v{t1}
        v_cmp_ne_u32 vcc, 0, v{t0}""")

    def prologue(self):
        a = self.a
        if self.prof:
            a(f"s_memrealtime {sp(ST0 + 30)}")
        self.stamp(0)
        a(f"""s_cmpk_ge_u32 s2, 0x100
        s_cbranch_scc1 L_end
        s_load_dwordx16 s[4:19], s[0:1], 0
        s_load_dwordx8 s[20:27], s[0:1], 64
        v_lshrrev_b32 v{t0}, 6, v0
        v_and_b32 v{vL}, 63, v0
        v_readfirstlane_b32 s{sW}, v{t0}
        s_and_b32 s{sG}, s2, 7
        s_lshr_b32 s{sJ}, s2, 3
        v_and_b32 v{vN}, 15, v{vL}
        v_lshrrev_b32 v{vGp}, 4, v{vL}
        s_lshl_b32 s{sT0}, s{sG}, 24
        s_and_b32 s{sT1}, s{sJ}, 15
        s_lshl_b32 s{sT1}, s{sT1}, 12
        s_add_u32 s{sT0}, s{sT0}, s{sT1}
        s_lshl_b32 s{sT1}, s{sW}, 10
        s_add_u32 s{sT0}, s{sT0}, s{sT1}
        s_cmp_lt_u32 s{sJ}, 16
        s_cselect_b32 s{sT1}, {self.uh * REGION}, 0
        s_add_u32 s{sT0}, s{sT0}, s{sT1}
        s_add_u32 s{sT0}, s{sT0}, 0xF00000
        v_xor_b32 v{t0}, v{vN}, v{vGp}
        v_lshlrev_b32 v{t0}, 4, v{t0}
        v_lshl_add_u32 v{t0}, v{vGp}, 8, v{t0}
        v_add_u32 v{vKD}, s{sT0}, v{t0}""")
        for i in range(1, 4):
            a(f"v_xor_b32 v{vKD + i}, {64 * i + (i << 16) + 0x2000 * (i & 1)}, v{vKD}")
        a(f"""v_lshlrev_b32 v{vV}, 16, v{vGp}
        v_lshl_add_u32 v{vV}, v{vN}, 4, v{vV}
        v_add_u32 v{vV}, s{sT0}, v{vV}
        v_lshlrev_b32 v{t0}, 9, v{vL}
        v_and_b32 v{t0}, 0x2000, v{t0}
        v_xor_b32 v{vV}, v{t0}, v{vV}
        s_cmp_eq_u32 s{sW}, 4
        s_cbranch_scc1 L_helper
        s_cmp_lt_u32 s{sJ}, 16
        s_cbranch_scc1 L_l_start""")

    def h_issue(self):
        a = self.a
        a(f"s_mul_i32 s{sT3}, s{sW}, {4096 * self.nh}\ns_waitcnt lgkmcnt(0)")
        for i in range(self.d0):
            if i == 4:
                self.tile_bases(self.nh, KB)
            self.kload(i)
        if self.d0 <= 4:
            self.tile_bases(self.nh, KB)
        a(f"s_load_dword s{sE}, {sp(WS)}, 0\ns_branch L_h_rest")

    def h_rest(self):
        a, n, d, at = self.a, self.uh, self.depth, self.hq_at
        nv = 4 * self.nh
        assert at <= nv - 4
        a("L_h_rest:\ns_barrier")
        self.stamp(1)
        self.tile_bases(self.nh, VB)
        self.consts()
        self.addr_att(self.nh)
        self.addr_f()
        self.vzero(self.nh)
        done = 0
        for i in range(self.d0, d):
            a(f"s_waitcnt vmcnt({self.d0 - 1 + (i - self.d0 + 1) // 2})")
            self.kload(i)
        for i in range(d, n + at):
            a(f"s_waitcnt vmcnt({d - 1})")
            if i == d:
                self.fstamp(8)
            self.kload(i) if i < n else self.vload(i - n)
            if i == n - 1:
                a("s_waitcnt lgkmcnt(0)")
                self.tags()
            if i == n + d - 1:
                self.stamp(2)
                self.kreads(self.nh)
            while 2 * done + 1 <= i - d - n:
                self.vperm(done, self.nh)
                done += 1
        a(f"s_waitcnt vmcnt({self.hq_wait})\ns_barrier")
        self.fstamp(9)
        self.qloads(WS)
        self.census_load(0)
        a("s_barrier")
        for i in range(at, nv - 4):
            self.vload(i)
        self.vload_last(self.nh, n - (nv - 4))
        rest = nv - at
        if at < d:
            a(f"s_waitcnt vmcnt({nv + 3})")
            self.stamp(2)
            self.kreads(self.nh)
        while 2 * done + 1 < at:
            a(f"s_waitcnt vmcnt({at - 1 - (2 * done + 1) + 3 + rest})")
            self.vperm(done, self.nh)
            done += 1
        a(f"s_waitcnt vmcnt({rest})")
        self.stamp(3)
        self.qcheck()
        a("s_cbranch_vccz L_qok_h")
        return done

    def l_issue(self):
        a = self.a
        XA, XB = RA, RA + 4
        a("L_l_start:")
        a(f"""v_lshlrev_b32 v{t0}, 4, v{vL}
        v_lshrrev_b32 v{t2}, 3, v{vL}
        s_and_b32 s{sT2}, s{sJ}, 1
        s_lshl_b32 s{sT2}, s{sT2}, 2
        s_add_u32 s{sT2}, s{sT2}, s{sW}
        s_lshl_b32 s{sT0}, s{sT2}, 7
        v_lshl_add_u32 v{t1}, v{t2}, 4, s{sT0}
        s_lshl_b32 s{sT0}, s{sT2}, 19
        s_lshl_b32 s{sT1}, s{sG}, 10
        s_add_u32 s{sT0}, s{sT0}, s{sT1}
        s_bfe_u32 s{sT1}, s{sJ}, 0x30001
        s_lshl_b32 s{sT1}, s{sT1}, 7
        s_add_u32 s{sT0}, s{sT0}, s{sT1}
        v_lshlrev_b32 v{t2}, 16, v{t2}
        v_and_b32 v{t3}, 7, v{vL}
        v_lshl_add_u32 v{t2}, v{t3}, 4, v{t2}
        v_add_u32 v{t2}, s{sT0}, v{t2}
        """)
        a(f"""v_and_b32 v{t3}, 1, v{vL}
        v_lshlrev_b32 v{vD}, 4, v{t3}
        v_lshl_add_u32 v{vD}, v{vGp}, 2, v{vD}
        v_bfe_u32 v{t3}, v{vL}, 1, 2
        v_add_u32 v{vD}, v{t3}, v{vD}""")
        a(f"""
        s_lshl_b32 s{sT0}, s{sJ}, 6
        v_lshl_add_u32 v{t3}, v{vD}, 1, s{sT0}
        s_waitcnt lgkmcnt(0)""")
        a(f"""global_load_dwordx4 {vr(XA, 4)}, v{t0}, {sp(X)}
        global_load_dwordx4 {vr(XB, 4)}, v{t1}, {sp(X)}
        global_load_ushort v{vXH}, v{t3}, {sp(X)}""")
        for i in range(8):
            a(f"global_load_dwordx4 {vr(RW + 4 * i, 4)}, v{t2}, {sp(WQ)}{self.nt}")
            if i < 7:
                a(f"v_add_u32 v{t2}, 0x2000, v{t2}")
        a(f"s_load_dword s{sE}, {sp(WS)}, 0\ns_branch L_l_rest")

    def l_rest(self):
        a = self.a
        XA, XB, XF, ACC, XN = RA, RA + 4, RA + 8, RK + 16, RD
        RV = RW
        a("L_l_rest:\ns_barrier")
        self.stamp(1)
        self.consts()
        self.addr_att(self.nl)
        self.addr_w()
        self.vzero(self.nl)
        a("s_waitcnt vmcnt(8)")
        for i in range(4):
            a(f"v_lshlrev_b32 v{XF + 2 * i}, 16, v{XA + i}\nv_and_b32 v{XF + 2 * i + 1}, 0xffff0000, v{XA + i}")
        a(f"v_add_f32 v{t0}, v{XF}, v{XF + 1}")
        for i in range(2, 8):
            a(f"v_add_f32 v{t0}, v{t0}, v{XF + i}")
        self.allred(t0, "v_add_f32")
        a(f"v_mul_f32 v{t0}, 0x3b000000, v{t0}")
        for i in range(8):
            a(f"v_sub_f32 v{XF + i}, v{XF + i}, v{t0}")
        a(f"v_mul_f32 v{t1}, v{XF}, v{XF}")
        for i in range(1, 8):
            a(f"v_fmac_f32 v{t1}, v{XF + i}, v{XF + i}")
        self.allred(t1, "v_add_f32")
        a(f"v_mul_f32 v{t1}, 0x3b000000, v{t1}")
        self.ln_scale(t0, t1, t2)
        a(f"""v_rcp_f32 v{t2}, v{t1}
        v_fma_f32 v{t3}, -v{t1}, v{t2}, 1.0
        v_fmac_f32 v{t2}, v{t3}, v{t2}""")
        for i in range(4):
            a(f"v_lshlrev_b32 v{XF + 2 * i}, 16, v{XB + i}\nv_and_b32 v{XF + 2 * i + 1}, 0xffff0000, v{XB + i}")
        for i in range(8):
            a(f"v_sub_f32 v{XF + i}, v{XF + i}, v{t0}")
        for i in range(4):
            a(f"v_cvt_pk_bf16_f32 v{XB + i}, v{XF + 2 * i}, v{XF + 2 * i + 1}")
        for i in range(4):
            a(f"v_lshlrev_b32 v{XF + 2 * i}, 16, v{XB + i}\nv_and_b32 v{XF + 2 * i + 1}, 0xffff0000, v{XB + i}")
        for i in range(8):
            a(f"""v_mul_f32 v{ACC + i}, v{XF + i}, v{t2}
            v_fma_f32 v{XF + i}, -v{ACC + i}, v{t1}, v{XF + i}
            v_fmac_f32 v{ACC + i}, v{XF + i}, v{t2}""")
        for i in range(4):
            a(f"v_cvt_pk_bf16_f32 v{XN + i}, v{ACC + 2 * i}, v{ACC + 2 * i + 1}")
        for i in range(8):
            a(f"v_mov_b32 v{ACC + i}, 0")
        a(f"""v_and_b32 v{t0}, 7, v{vL}
        v_lshlrev_b32 v{t0}, 7, v{t0}
        v_lshl_add_u32 v{t0}, v{vGp}, 5, v{t0}
        s_lshl_b32 s{sT0}, s{sW}, 2
        s_add_u32 s{sT0}, s{sT0}, {L_QP}
        v_add_u32 v{vA}, s{sT0}, v{t0}
        v_lshlrev_b32 v{vB}, 4, v{vL}
        s_lshl_b32 s{sT0}, s{sG}, 13
        s_and_b32 s{sT1}, s{sJ}, 1
        s_lshl_b32 s{sT1}, s{sT1}, 12
        s_add_u32 s{sT0}, s{sT0}, s{sT1}
        s_bfe_u32 s{sT1}, s{sJ}, 0x30001
        s_lshl_b32 s{sT1}, s{sT1}, 9
        s_add_u32 s{sT0}, s{sT0}, s{sT1}
        s_add_u32 s{sT0}, s{sT0}, {WS_QA}
        v_lshl_add_u32 v{vC}, v{vL}, 3, s{sT0}""")
        a("s_waitcnt lgkmcnt(0)")
        self.tags()
        PR = RK + 24
        for p in range(4):
            a(f"s_waitcnt vmcnt({6 - 2 * p})")
            if p == 3:
                self.stamp(2)
            self.perm_pair(RV + 8 * p, RV + 8 * p + 4, PR, 1, 0)
            for t in range(8):
                a(f"v_dot2c_f32_bf16 v{ACC + t}, v{PR + t}, v{XN + p}")
        for t in range(4):
            a(f"v_permlane32_swap_b32 v{ACC + t}, v{ACC + t + 4}")
        for t in range(4):
            a(f"v_add_f32 v{ACC + t}, v{ACC + t}, v{ACC + t + 4}")
        for t in range(2):
            a(f"v_permlane16_swap_b32 v{ACC + t}, v{ACC + t + 2}")
        for t in range(2):
            a(f"v_add_f32 v{ACC + t}, v{ACC + t}, v{ACC + t + 2}")
        for t in range(2):
            a(f"v_add_f32_dpp v{ACC + t}, v{ACC + t}, v{ACC + t} row_ror:8 {DPP}")
        a(f"""s_mov_b32 exec_lo, 0x00ff00ff
        s_mov_b32 exec_hi, 0x00ff00ff
        ds_write2_b32 v{vA}, v{ACC}, v{ACC + 1} offset0:0 offset1:4
        s_mov_b64 exec, -1
        s_waitcnt lgkmcnt(0)
        s_barrier
        s_cmp_lg_u32 s{sW}, 0
        s_cbranch_scc1 L_q_pubdone
        ds_read_b128 {vr(ACC, 4)}, v{vB} offset:{L_QP}
        s_lshl_b32 s{sT0}, s{sG}, 7
        s_lshl_b32 s{sT1}, s{sJ}, 2
        s_add_u32 s{sT0}, s{sT0}, s{sT1}
        s_add_u32 s{sT0}, s{sT0}, {WS_HI}
        v_mov_b32 v{t0}, s{sT0}
        v_mov_b32 v{t1}, s{sHX}
        global_store_dword v{t0}, v{t1}, {sp(WS)}
        s_waitcnt lgkmcnt(0)
        v_add_f32 v{ACC}, v{ACC}, v{ACC + 1}
        v_add_f32 v{ACC + 2}, v{ACC + 2}, v{ACC + 3}
        v_mov_b32 v{ACC + 1}, s{sE}
        v_add_f32 v{ACC}, v{ACC}, v{ACC + 2}
        global_store_dwordx2 v{vC}, {vr(ACC, 2)}, {sp(WS)}
        v_add_u32 v{vC}, {WS_QB - WS_QA}, v{vC}
        global_store_dwordx2 v{vC}, {vr(ACC, 2)}, {sp(WS)} sc1
        L_q_pubdone:
        s_barrier""")
        self.stamp(3)
        n = self.ul
        a(f"s_lshl_b32 s{sT3}, s{sW}, 12")
        for i in range(n):
            self.kload(i)
        if self.lp:
            a("s_barrier")
        for jj in range(self.lp):
            self.wo_load(jj)
        a(f"s_cmp_lg_u32 s{sW}, 0\ns_cbranch_scc1 L_l_k0\ns_waitcnt vmcnt({n - 1 + self.lp})\nL_l_k0:\ns_barrier")
        self.fstamp(8)
        self.qloads(WS)
        self.census_load(0)
        a("s_barrier")
        self.vload_last(self.nl, n)
        a(f"s_waitcnt vmcnt({3 + 4 + self.lp})")
        self.fstamp(9)
        self.kreads(self.nl)
        a("s_waitcnt vmcnt(4)")
        self.qcheck()
        a("s_cbranch_vccz L_qok_l")

    def attention(self, role, nt, done, younger, groups):
        a = self.a
        ns = 4 * nt
        RO = RK + 32 if nt == 1 else RK
        a(f"L_qpoll_{role}:")
        self.qloads(sQP)
        self.census_load(0)
        self.spin()
        a(f"""s_add_u32 s{sQN}, s{sQN}, 1
        s_cmp_eq_u32 s{sQN}, {self.qa_tries}
        s_cselect_b32 s{sT0}, {WS_QB - WS_QA}, 0
        s_cselect_b32 s{sCM}, 16, s{sCM}
        s_add_u32 s{sQP}, s{sQP}, s{sT0}
        s_addc_u32 s{sQP + 1}, s{sQP + 1}, 0
        s_waitcnt vmcnt(0)""")
        self.qcheck()
        a(f"s_cbranch_vccnz L_qpoll_{role}\nL_qok_{role}:")
        self.stamp(4)
        a(f"""v_add_f32 v{t0}, v{RX}, v{RX + 4}
        v_add_f32 v{t1}, v{RX + 2}, v{RX + 6}
        v_cvt_pk_bf16_f32 v{t0}, v{t0}, v{t1}
        ds_write_b32 v{aQW}, v{t0} offset:{L_QS}
        s_waitcnt lgkmcnt(0)
        s_barrier""")
        for s in range(4):
            a(f"ds_read_b128 {vr(RA + 4 * s, 4)}, v{aQR} offset:{L_QS + 64 * s}")
        for jj in range(younger):
            self.wo_load(self.lp + jj)
        self.census_eval()
        for s in range(4):
            a(f"s_waitcnt lgkmcnt({3 - s})")
            for tau in range(nt):
                c = "0" if s == 0 else vr(RD + 4 * tau, 4)
                a(f"v_mfma_f32_16x16x32_bf16 {vr(RD + 4 * tau, 4)}, {vr(RK + 16 * tau + 4 * s, 4)}, {vr(RA + 4 * s, 4)}, {c}")
        a(f"s_mov_b32 s{sT2}, 0x3db504f3\ns_mov_b32 s{sT3}, 0x3db504f3")
        for rnd in range(2):
            for i in range(ns // 2):
                a(f"v_cvt_pk_bf16_f32 v{RP + i}, v{RD + 2 * i}, v{RD + 2 * i + 1}")
            for i in range(ns // 2):
                a(f"v_lshlrev_b32 v{RD + 2 * i}, 16, v{RP + i}\nv_and_b32 v{RD + 2 * i + 1}, 0xffff0000, v{RP + i}")
            if rnd == 0:
                for i in range(ns // 2):
                    a(f"v_pk_mul_f32 {vr(RD + 2 * i, 2)}, {vr(RD + 2 * i, 2)}, {sp(sT2)}")
        if groups < 4:
            m = ((1 << 64) - 1) ^ ((1 << 16 * groups) - 1)
            a(f"s_mov_b32 exec_lo, {hex(m & 0xffffffff)}\ns_mov_b32 exec_hi, {hex(m >> 32)}")
            for i in range(ns - 4, ns):
                a(f"v_mov_b32 v{RD + i}, 0xff7f0000")
            a("s_mov_b64 exec, -1")
        a(f"v_max3_f32 v{t0}, v{RD}, v{RD + 1}, v{RD + 2}")
        for i in range(3, ns - 1, 2):
            a(f"v_max3_f32 v{t0}, v{t0}, v{RD + i}, v{RD + i + 1}")
        a(f"v_max_f32 v{t0}, v{t0}, v{RD + ns - 1}\ns_mov_b32 s{sT2}, {LOG2E}\ns_mov_b32 s{sT3}, {LOG2E}")
        self.allred(t0, "v_max_f32", rors=())
        a(f"v_mul_f32 v{t2}, 0xbfb8aa3b, v{t0}")
        for i in range(ns // 2):
            a(f"v_pk_fma_f32 {vr(RD + 2 * i, 2)}, {vr(RD + 2 * i, 2)}, {sp(sT2)}, {vr(t2, 2)} op_sel_hi:[1,1,0]")
        for i in range(ns):
            a(f"v_exp_f32 v{RD + i}, v{RD + i}")
        a(f"v_pk_add_f32 {vr(RX, 2)}, {vr(RD, 2)}, {vr(RD + 2, 2)}")
        for i in range(4, ns, 2):
            a(f"v_pk_add_f32 {vr(RX, 2)}, {vr(RX, 2)}, {vr(RD + i, 2)}")
        cvt = [f"v_cvt_pk_bf16_f32 v{RP + i}, v{RD + 2 * i}, v{RD + 2 * i + 1}" for i in range(ns // 2)]
        a(f"v_add_f32 v{t1}, v{RX}, v{RX + 1}\nv_mov_b32 v{t3}, v{t1}")
        a(cvt[0]); a(cvt[1])
        a(f"v_permlane16_swap_b32 v{t1}, v{t3}\nv_add_f32 v{t1}, v{t1}, v{t3}\nv_mov_b32 v{t3}, v{t1}")
        for c in cvt[2:4]:
            a(c)
        a(f"v_permlane32_swap_b32 v{t1}, v{t3}\nv_add_f32 v{t1}, v{t1}, v{t3}")
        a(f"ds_write_b64 v{aMW}, {vr(t0, 2)} offset:{L_MX}")
        for c in cvt[4:]:
            a(c)
        self.stamp(5)
        npair = 2 * nt

        def mf(t, half):
            d = vr(RO + 4 * t, 4)
            if nt == 1:
                return f"v_mfma_f32_16x16x16_bf16 {d}, {vr(RP, 2)}, {vr(RB + 2 * t, 2)}, 0"
            if half == 0:
                return f"v_mfma_f32_16x16x32_bf16 {d}, {vr(RP, 4)}, {vr(RB + 4 * t, 4)}, 0"
            if nt == 3:
                return f"v_mfma_f32_16x16x16_bf16 {d}, {vr(RP + 4, 2)}, {vr(RV + 2 * t, 2)}, {d}"
            return f"v_mfma_f32_16x16x32_bf16 {d}, {vr(RP + 4, 4)}, {vr(RV + 4 * t, 4)}, {d}"

        def wait_pair(p, ml):
            a(f"s_waitcnt vmcnt({ns - 1 - (2 * p + 1) + younger + ml})")
        first = 4 if nt > 1 else 1
        for p in range(done, first):
            wait_pair(p, 0)
            self.fstamp(10)
            self.vperm(p, nt)
        done = max(done, first)
        early = [mf(t, 0) for t in range(8)] if nt > 1 else [""] * 8
        a(f"""{early[0]}
        {early[1]}
        s_waitcnt lgkmcnt(0)
        s_barrier
        ds_read_b128 {vr(RX, 4)}, v{aMR} offset:{L_MX}
        ds_read_b128 {vr(RX + 4, 4)}, v{aMR} offset:{L_MX + 16}
        {early[2]}
        {early[3]}
        {early[4]}
        s_waitcnt lgkmcnt(0)
        v_max3_f32 v{t2}, v{RX}, v{RX + 2}, v{RX + 4}
        v_max_f32 v{t2}, v{t2}, v{RX + 6}
        {early[5]}
        v_mul_f32 v{t3}, 0xbfb8aa3b, v{t2}
        v_fma_f32 v{vF}, v{RX}, s{sT2}, v{t3}
        {early[6]}
        v_fma_f32 v{vF + 1}, v{RX + 2}, s{sT2}, v{t3}
        v_fma_f32 v{vF + 2}, v{RX + 4}, s{sT2}, v{t3}
        {early[7]}
        v_fma_f32 v{vF + 3}, v{RX + 6}, s{sT2}, v{t3}""")
        for i in range(4):
            a(f"v_exp_f32 v{vF + i}, v{vF + i}")
        a(f"v_mul_f32 v{t3}, v{vF}, v{RX + 1}")
        for i in range(1, 4):
            a(f"v_fmac_f32 v{t3}, v{vF + i}, v{RX + 2 * i + 1}")
        self.pub_cmp()
        self.tag(t2, t2, sTA4)
        self.tag(t3, t3, sTA4)
        self.pub("ml" + role, f"global_store_dwordx2 v{aML}, {vr(t2, 2)}, {sp(WS)}", cmp=False)
        for p in range(done, npair - 1):
            wait_pair(p, 1)
            self.fstamp(11)
            self.vperm(p, nt)
        last = npair - 1
        if done <= last:
            wait_pair(last, 1)
        self.stamp(6)
        s0, s1 = RV + 8 * last, RV + 8 * last + 4

        def pm(t):
            dst = {1: RB + 2 * t + 1, 3: RV + 2 * t + 1, 4: RV + 4 * t + 3}[nt]
            if done <= last:
                a(f"v_perm_b32 v{dst}, v{s1 + t // 2}, v{s0 + t // 2}, s{sPHI if t % 2 else sPLO}")

        def wr(k):
            base = aOW if k < 2 else aOX
            a(f"ds_write2_b32 v{base}, v{RO + 8 * k}, v{RO + 8 * k + 4} offset0:{2 * (k % 2) * OR_PLANE} offset1:{(2 * (k % 2) + 1) * OR_PLANE}")
        pm(0); pm(1); pm(2)
        for t in range(8):
            a(mf(t, 1))
            if t + 3 < 8:
                pm(t + 3)
        for k in range(4):
            wr(k)
        a("s_waitcnt lgkmcnt(0)\ns_barrier")
        for w in range(4):
            a(f"ds_read2_b32 {vr(RD + 2 * w, 2)}, v{RD + 12 + w if w else aOR} offset0:0 offset1:{OR_PLANE}")
        self.pub_cmp()
        a(f"""s_waitcnt lgkmcnt(2)
        v_pk_mul_f32 {vr(RD, 2)}, {vr(RD, 2)}, {vr(vF, 2)} op_sel_hi:[1,0]
        v_pk_fma_f32 {vr(RD, 2)}, {vr(RD + 2, 2)}, {vr(vF, 2)}, {vr(RD, 2)} op_sel:[0,1,0] op_sel_hi:[1,1,1]
        s_waitcnt lgkmcnt(0)
        v_pk_fma_f32 {vr(RD, 2)}, {vr(RD + 4, 2)}, {vr(vF + 2, 2)}, {vr(RD, 2)} op_sel_hi:[1,0,1]
        v_pk_fma_f32 {vr(RD, 2)}, {vr(RD + 6, 2)}, {vr(vF + 2, 2)}, {vr(RD, 2)} op_sel:[0,1,0] op_sel_hi:[1,1,1]""")
        self.tag(RD, RD, sTA4)
        self.tag(RD + 1, RD + 1, sTA4)
        self.pub("a1" + role, f"global_store_dwordx2 v{aA1}, {vr(RD, 2)}, {sp(WS)}", cmp=False)
        if role == "h" or self.lw < 8:
            a("s_barrier")
        self.stamp(7)

    def w_tail(self):
        a = self.a
        for jj in range(self.lw, 8):
            self.wo_load(jj)
        a(f"v_lshlrev_b32 v{vXH}, 16, v{vXH}\nv_cmp_gt_u32 {sp(sM[0])}, 48, v{vL}")
        WT = RX + 4
        for p in range(4):
            last = 2 * p + 1
            extra = 2 if p == 3 else 0
            a(f"s_waitcnt vmcnt({7 - last + (2 if last < self.lw else 0) + extra})")
            self.perm_pair(RW + 8 * p, RW + 8 * p + 4, RWB, 4, p)
            if p == 2:
                self.census_load(64)
                a(f"global_load_dwordx2 {vr(RX, 2)}, v{aMG}, {sp(WS)} sc1")
        self.stamp(8)
        a(f"s_branch L_mlwait\nL_mlpoll:\nglobal_load_dwordx2 {vr(RX, 2)}, v{aMG}, {sp(WS)} sc1")
        self.spin()
        a("L_mlwait:\ns_waitcnt vmcnt(0)")
        self.check2(RX)
        a("s_cbranch_vccnz L_mlpoll")
        a(f"""global_load_dwordx4 {vr(RA, 4)}, v{aAG}, {sp(WS)} sc1
        v_and_b32 v{RX}, 0xffff0000, v{RX}
        v_and_b32 v{RX + 1}, 0xffffff00, v{RX + 1}
        v_mov_b32 v{t2}, v{RX}""")
        self.allred(t2, "v_max_f32", rors=(8, 4, 2))
        a(f"""v_sub_f32 v{WT}, v{RX}, v{t2}
        v_mul_f32 v{WT}, {LOG2E}, v{WT}
        v_exp_f32 v{WT}, v{WT}
        v_mul_f32 v{t2}, v{WT}, v{RX + 1}""")
        self.allred(t2, "v_add_f32", rors=(8, 4, 2))
        a(f"v_rcp_f32 v{t2}, v{t2}\nv_mul_f32 v{WT}, v{WT}, v{t2}")
        self.poll("a1poll", [f"global_load_dwordx4 {{}}, v{aAG}, {sp(WS)} sc1"], sTA4, RD, 1, [RA], primed=True)
        self.stamp(9)
        for i in range(4):
            a(f"v_mul_f32 v{RD + i}, v{RD + i}, v{WT}")
        self.rs4(RD)
        for k in (8, 4, 2):
            a(f"v_add_f32_dpp v{RD}, v{RD}, v{RD} row_ror:{k} {DPP}")
        a(f"""v_cvt_pk_bf16_f32 v{RD}, v{RD}, v{RD}
        ds_write_b16 v{aVW}, v{RD} offset:{L_OV}
        s_waitcnt lgkmcnt(0)
        s_barrier
        ds_read_b128 {vr(RX, 4)}, v{aVR} offset:{L_OV}""")
        self.pub_cmp()
        a("s_waitcnt lgkmcnt(0)")
        self.matvec8(lambda t: f"v_mfma_f32_16x16x32_bf16 {vr(RWD + 4 * t, 4)}, {vr(RX, 4)}, {vr(RWB + 4 * t, 4)}, 0", RWD, RD, sTB4)
        self.pub("b1", f"global_store_dwordx4 v{aB1}, {vr(RD, 4)}, {sp(WS)}", cmp=False)
        self.stamp(10)
        a(f"""s_cmp_ge_u32 s{sW}, 2
        s_cbranch_scc1 L_exit
        s_cmp_eq_u32 s{sW}, 1
        s_cbranch_scc1 L_final""")
        self.sleep(self.d_b1)
        self.poll("b1poll", [f"global_load_dwordx4 {{}}, v{aBG}, {sp(WS)} sc1", f"global_load_dwordx4 {{}}, v{aBG}, {sp(WS)} offset:1024 sc1"],
                  sTB4, RV, 1, [RA])
        self.stamp(11)
        a(f"""v_pk_add_f32 {vr(RV, 2)}, {vr(RV, 2)}, {vr(RV + 4, 2)}
        v_pk_add_f32 {vr(RV + 2, 2)}, {vr(RV + 2, 2)}, {vr(RV + 6, 2)}""")
        self.rs4(RV)
        a(f"v_add_f32_dpp v{RV}, v{RV}, v{RV} row_ror:8 {DPP}")
        self.tag(RV, RV, sTA4)
        a(f"global_store_dword v{aB2}, v{RV}, {sp(WS)} sc1")
        self.census_eval()
        self.sleep(self.d_b2a)
        self.poll("b2poll", [f"global_load_dwordx4 {{}}, v{aHG}, {sp(WS)} sc1"], sTA4, RV, 1, [RA])
        self.stamp(12)
        self.rs4(RV)
        self.pub_cmp()
        a(f"v_add_f32_dpp v{RV}, v{RV}, v{RV} row_ror:8 {DPP}")
        self.bf16r(RV, RV)
        a(f"""v_add_f32 v{RV}, v{RV}, v{vXH}
        v_cvt_pk_bf16_f32 v{RV}, 0, v{RV}""")
        self.tag(RV + 1, RV, sTH4)
        self.pub("b2b", f"global_store_dword v{aHB}, v{RV + 1}, {sp(WS)}", cmp=False)
        a(f"""ds_write_b32 v{aHW}, v{RV} offset:{L_HV}
        L_final:
        s_cmp_ge_u32 s{sG}, 4
        s_cbranch_scc1 L_exit
        s_waitcnt lgkmcnt(0)
        s_barrier
        ds_read_b32 v{vXH}, v{aHR} offset:{L_HV}""")
        if True:
            a(f"""s_add_u32 s{sT0}, s{sA1G}, {16 * 2048}
            v_lshl_add_u32 v{aBG}, v{vL}, 4, s{sT0}""")
            self.poll("hseen", [f"global_load_dwordx4 {{}}, v{aBG}, {sp(WS)} sc1", f"global_load_dwordx4 {{}}, v{aBG}, {sp(WS)} offset:1024 sc1"],
                      sTH4, RV, 1, [RA])
        a("s_waitcnt lgkmcnt(0)")
        self.sleep(self.d_c)
        self.poll("cpoll", [f"global_load_dwordx4 {{}}, v{aC0}, {sp(WS)} sc1", f"global_load_dwordx4 {{}}, v{aC1}, {sp(WS)} sc1"],
                  sTA4, RV, 1, [RA])
        self.stamp(13)
        a(f"""s_mov_b64 exec, {sp(sM[0])}
        v_pk_add_f32 {vr(RV, 2)}, {vr(RV, 2)}, {vr(RV + 4, 2)}
        v_pk_add_f32 {vr(RV + 2, 2)}, {vr(RV + 2, 2)}, {vr(RV + 6, 2)}
        s_mov_b64 exec, -1""")
        self.rs4(RV)
        for k in (8, 4, 2, 1):
            a(f"v_add_f32_dpp v{RV}, v{RV}, v{RV} row_ror:{k} {DPP}")
        self.bf16r(RV, RV)
        a(f"""v_add_f32 v{RV}, v{RV}, v{vXH}
        v_cvt_pk_bf16_f32 v{RV}, v{RV}, v{RV}
        global_store_short v{aOut}, v{RV}, {sp(OUT)}
        s_or_b32 s{sT0}, s2, s{sW}
        s_cmp_lg_u32 s{sT0}, 0
        s_cbranch_scc1 L_exit
        s_mov_b64 exec, 1
        v_mov_b32 v{t0}, 0
        v_mov_b32 v{t1}, s{sE}
        global_store_dword v{t0}, v{t1}, {sp(WS)}
        s_branch L_exit""")

    def f_tail(self):
        a = self.a
        BG, BU, DW, BD, DR = RK, RK + 16, RV, RV + 16, RB
        ONES, CSG, CSU = RX + 8, RX + 9, RX + 10
        H0, H1, HA = DW, DW + 4, RX
        a(f"""s_cmp_eq_u32 s{sG}, 7
        s_cbranch_scc1 L_exit
        s_lshl_b32 s{sT2}, s{sW}, 12""")
        for i in range(4):
            for base, ptr in ((L_G, GA), (L_U, UP)):
                a(f"s_add_u32 m0, s{sT2}, {base + 1024 * i}\nglobal_load_lds_dwordx4 v{aFG}, {sp(ptr)}{self.nt}")
            if i < 3:
                a(f"v_add_u32 v{aFG}, {8 * 3584}, v{aFG}")
        for jj in range(4):
            a(f"global_load_dwordx4 {vr(DW + 4 * jj, 4)}, v{aFD}, {sp(DN)} offset:{1024 * jj}{self.nt}")
        a(f"global_load_dwordx4 {vr(DR + 8, 4)}, v{aEG}, {sp(WS)} sc1")
        self.census_load(64)
        a(f"""v_mov_b32 v{ONES}, 0x3f803f80
        v_mov_b32 v{RX}, 0x3f803f80
        v_mov_b32 v{RX + 1}, 0x3f803f80
        v_mov_b32 v{RX + 2}, 0x3f803f80
        v_mov_b32 v{RX + 3}, 0x3f803f80
        s_waitcnt vmcnt(6)
        s_barrier""")
        for base, B in ((L_G, BG), (L_U, BU)):
            for s in range(4):
                for hf in range(2):
                    a(f"ds_read_b64_tr_b16 {vr(B + 4 * s + 2 * hf, 2)}, v{aTR} offset:{base + 8192 * hf + 512 * s}")
        a("s_waitcnt lgkmcnt(0)")
        for s in range(4):
            for B, D in ((BG, DR), (BU, DR + 4)):
                a(f"v_mfma_f32_16x16x32_bf16 {vr(D, 4)}, {vr(RX, 4)}, {vr(B + 4 * s, 4)}, {'0' if s == 0 else vr(D, 4)}")
        a("s_waitcnt vmcnt(0)")
        self.stamp(8)
        for dd in range(4):
            rows = ((0, 1), (2, 3)) if dd < 2 else ((1, 2), (3, 0))
            for p, (lo, hi) in enumerate(rows):
                a(f"v_perm_b32 v{BD + 2 * (2 * dd) + p}, v{DW + 4 * hi + dd}, v{DW + 4 * lo + dd}, s{sPLO}")
                a(f"v_perm_b32 v{BD + 2 * (2 * dd + 1) + p}, v{DW + 4 * hi + dd}, v{DW + 4 * lo + dd}, s{sPHI}")
        a(f"v_mov_b32 v{CSG}, v{DR}\nv_mov_b32 v{CSU}, v{DR + 4}")
        self.census_eval()
        a(f"""L_hpoll:
        global_load_dwordx4 {vr(H0, 4)}, v{aHP}, {sp(WS)} sc1
        global_load_dwordx4 {vr(H1, 4)}, v{aHP}, {sp(WS)} offset:256 sc1""")
        self.spin()
        a("s_waitcnt vmcnt(1)")
        self.check4(H0, sTH4, sp(sT2))
        a(f"""v_perm_b32 v{HA}, v{H0 + 1}, v{H0}, s{sPHI}
        v_perm_b32 v{HA + 1}, v{H0 + 3}, v{H0 + 2}, s{sPHI}
        s_waitcnt vmcnt(0)
        v_perm_b32 v{HA + 2}, v{H1 + 1}, v{H1}, s{sPHI}
        v_perm_b32 v{HA + 3}, v{H1 + 3}, v{H1 + 2}, s{sPHI}""")
        self.check4(H1, sTH4)
        a(f"s_or_b64 vcc, vcc, {sp(sT2)}\ns_cbranch_vccnz L_hpoll")
        self.stamp(9)
        SA, SB = RX + 4, RX + 5
        mf = [f"v_mfma_f32_16x16x32_bf16 {vr(D + 4 * s, 4)}, {vr(HA, 4)}, {vr(B + 4 * s, 4)}, 0" for s in range(4) for B, D in ((BG, DR), (BU, DR + 16))]
        a(f"v_dot2_f32_bf16 v{SA}, v{HA}, v{ONES}, 0\nv_dot2_f32_bf16 v{SB}, v{HA}, v{HA}, 0")
        for i in range(1, 4):
            a(f"v_dot2_f32_bf16 v{SA}, v{HA + i}, v{ONES}, v{SA}\nv_dot2_f32_bf16 v{SB}, v{HA + i}, v{HA + i}, v{SB}")
        a(mf[0]); a(mf[1])
        a(f"v_permlane16_swap_b32 v{SA}, v{SB}\nv_add_f32 v{SA}, v{SA}, v{SB}")
        for k, m in zip((8, 4, 2, 1), mf[2:6]):
            a(m)
            a(f"v_add_f32_dpp v{SA}, v{SA}, v{SA} row_ror:{k} {DPP}")
        a(f"v_mov_b32 v{SB}, v{SA}")
        a(mf[6])
        a(f"v_permlane32_swap_b32 v{SA}, v{SB}\nv_add_f32 v{SA}, v{SA}, v{SB}\nv_mul_f32 v{t0}, 0x3b000000, v{SA}\nv_mul_f32 v{t1}, 0x3b000000, v{SA}")
        a(mf[7])
        a(f"""v_permlane16_swap_b32 v{t0}, v{t1}
        v_fma_f32 v{t1}, -v{t0}, v{t0}, v{t1}
        v_add_f32 v{SA}, v{DR}, v{DR + 5}
        v_max_f32 v{t1}, 0, v{t1}
        v_add_f32 v{SB}, v{DR + 16}, v{DR + 21}""")
        self.ln_scale(t0, t1, t2)
        a(f"""v_add_f32 v{SA}, v{SA}, v{DR + 10}
        v_rcp_f32 v{t1}, v{t1}
        v_add_f32 v{SB}, v{SB}, v{DR + 26}
        v_add_f32 v{SA}, v{SA}, v{DR + 15}
        v_add_f32 v{SB}, v{SB}, v{DR + 31}
        s_cmp_eq_u32 s{sFAST}, 0
        v_fma_f32 v{SA}, -v{t0}, v{CSG}, v{SA}
        v_fma_f32 v{SB}, -v{t0}, v{CSU}, v{SB}
        s_mov_b64 exec, {sp(sKM)}
        v_mul_f32 v{SA}, v{SA}, v{t1}
        v_mul_f32 v{SB}, v{SB}, v{t1}""")
        self.tag(SA, SA, sTA4)
        self.tag(SB, SB, sTA4)
        self.pub("e", f"global_store_dwordx2 v{aES}, {vr(SA, 2)}, {sp(WS)}", cmp=False)
        a("s_mov_b64 exec, -1")
        self.stamp(11)
        self.sleep(self.d_e)
        self.poll("epoll", [f"global_load_dwordx4 {{}}, v{aEG}, {sp(WS)} sc1"], sTA4, H0, 1, [RA])
        self.stamp(12)
        a(f"""v_pk_add_f32 {vr(t2, 2)}, {vr(H0, 2)}, {vr(H0 + 2, 2)}
        v_add_f32_dpp v{t2}, v{t2}, v{t2} quad_perm:[1,0,3,2] {DPP}
        v_add_f32_dpp v{t3}, v{t3}, v{t3} quad_perm:[1,0,3,2] {DPP}
        v_cvt_pk_bf16_f32 v{t3}, v{t2}, v{t3}
        v_lshlrev_b32 v{t2}, 16, v{t3}
        v_and_b32 v{t3}, 0xffff0000, v{t3}
        v_mul_f32 v{t0}, 0xbfb8aa3b, v{t2}
        v_exp_f32 v{t0}, v{t0}
        v_add_f32 v{t0}, 1.0, v{t0}
        v_rcp_f32 v{t0}, v{t0}
        v_mul_f32 v{t2}, v{t2}, v{t0}""")
        self.bf16r(t2, t2)
        a(f"""v_mul_f32 v{t2}, v{t2}, v{t3}
        v_cvt_pk_bf16_f32 v{t2}, v{t2}, v{t2}
        v_mov_b32_dpp v{t3}, v{t2} row_ror:12 {DPP}
        v_perm_b32 v{HA}, v{t3}, v{t2}, s{sPHI}
        v_mov_b32_dpp v{HA + 1}, v{HA} row_ror:8 {DPP}""")
        self.matvec8(lambda t: f"v_mfma_f32_16x16x16_bf16 {vr(DR + 4 * t, 4)}, {vr(HA, 2)}, {vr(BD + 2 * t, 2)}, 0", DR, H0, sTA4,
                     after="s_mov_b32 exec_hi, 0")
        a(f"global_store_dwordx4 v{aCS}, {vr(H0, 4)}, {sp(WS)} sc1\ns_mov_b64 exec, -1")
        self.stamp(10)
        a("s_branch L_exit")

    def helper(self):
        a = self.a
        per_wg = self.code_bytes // 32
        a(f"""L_helper:
        s_getpc_b64 {sp(sCODE)}
        L_pc:
        s_sub_u32 s{sCODE}, s{sCODE}, L_pc-{NAME}_kernel
        s_subb_u32 s{sCODE + 1}, s{sCODE + 1}, 0
        s_mul_i32 s{sT0}, s{sJ}, {per_wg}
        v_lshl_add_u32 v{t2}, v{vL}, {(per_wg // 64).bit_length() - 1}, s{sT0}
        v_min_u32 v{t2}, L_code_end-{NAME}_kernel-4, v{t2}""")
        if self.codepf:
            a(f"global_load_dword v{RK}, v{t2}, {sp(sCODE)}")
        a(f"""s_waitcnt lgkmcnt(0)
        s_cmp_lt_u32 s{sJ}, 16
        s_cbranch_scc1 L_helper_l
        s_load_dword s{sE}, {sp(WS)}, 0
        s_getreg_b32 s{sXCC}, hwreg(HW_REG_XCC_ID, 0, 4)
        s_lshl_b32 s{sT0}, s{sG}, 7
        s_add_u32 s{sT0}, s{sT0}, {WS_HI}
        v_and_b32 v{t0}, 31, v{vL}
        v_lshl_add_u32 v{vB}, v{t0}, 2, s{sT0}
        s_lshl_b32 s{sT1}, s{sJ}, 2
        s_add_u32 s{sT0}, s{sT0}, s{sT1}
        v_mov_b32 v{vC}, s{sT0}
        s_and_b32 s{sJ}, s{sJ}, 15
        s_lshl_b32 s{sT0}, s{sG}, 13
        s_lshl_b32 s{sT1}, s{sJ}, 9
        s_add_u32 s{sT0}, s{sT0}, s{sT1}
        s_add_u32 s{sT0}, s{sT0}, {WS_QA}
        v_lshl_add_u32 v{t0}, v{vL}, 3, s{sT0}
        s_lshl_b32 s{sT1}, s{sJ}, 7
        s_lshl_b32 s{sT0}, s{sG}, 16
        s_add_u32 s{sT0}, s{sT0}, s{sT1}
        s_add_u32 s{sT0}, s{sT0}, {WS_A1}
        v_lshrrev_b32 v{t1}, 3, v{vL}
        v_lshlrev_b32 v{t1}, 11, v{t1}
        v_and_b32 v{t2}, 7, v{vL}
        v_lshl_add_u32 v{t1}, v{t2}, 4, v{t1}
        v_add_u32 v{t1}, s{sT0}, v{t1}
        s_lshl_b32 s{sT0}, s{sG}, 10
        s_lshl_b32 s{sT1}, s{sJ}, 6
        s_add_u32 s{sT0}, s{sT0}, s{sT1}
        s_add_u32 s{sT0}, s{sT0}, {WS_ML}
        v_lshl_add_u32 v{t2}, v{vN}, 2, s{sT0}
        s_barrier
        global_load_dword v{RK + 21}, v{vB}, {sp(WS)}
        global_load_dword v{RK + 1}, v{t0}, {sp(WS)}""")
        for i in range(4):
            a(f"global_load_dwordx4 {vr(RK + 4 + 4 * i, 4)}, v{t1}, {sp(WS)}")
            if i < 3:
                a(f"v_add_u32 v{t1}, 0x4000, v{t1}")
        a(f"""global_load_dword v{RK + 2}, v{t2}, {sp(WS)}
        s_waitcnt lgkmcnt(0)
        s_add_u32 s{sE}, s{sE}, 1
        s_lshl_b32 s{sE}, s{sE}, 4
        s_or_b32 s{sE}, s{sE}, s{sXCC}
        v_mov_b32 v{vD}, s{sE}
        s_mov_b64 exec, 1
        global_store_dword v{vC}, v{vD}, {sp(WS)}
        s_endpgm
        L_helper_l:
        v_mov_b32 v{t0}, {WS_QB}
        s_barrier""")
        if self.qtouch:
            a(f"""s_lshl_b32 s{sT0}, s{sG}, 24
            s_add_u32 s{sT0}, s{sT0}, 0xF00000
            v_mov_b32 v{t3}, s{sT0}
            global_load_dword v{RK + 8}, v{t3}, {sp(KP)}{self.nt}
            global_load_dword v{RK + 1}, v{t0}, {sp(WS)} sc1
            global_load_dword v{RK + 9}, v{t3}, {sp(VP)}{self.nt}""")
        a("s_endpgm")

    def exit(self):
        a = self.a
        a("L_exit:")
        if self.leak[0] >= 0:
            self.stamp(14)
            a(f"""s_lshl_b32 s{sT0}, s2, 2
            s_add_u32 s{sT0}, s{sT0}, s{sW}
            s_cmp_lg_u32 s{sT0}, {self.leak[0] * 4}
            s_cbranch_scc1 L_end
            s_memrealtime {sp(ST0 + 4)}
            s_waitcnt lgkmcnt(0)
            s_sub_u32 s{sT0}, s{ST0 + 2}, s{ST0}""")
            if self.leak[3] == 1:
                a(f"s_mul_i32 s{sT0}, s{sT0}, 2731\ns_lshr_b32 s{sT0}, s{sT0}, 16")
            if self.leak[3] >= 2:
                a(f"""s_mov_b64 exec, -1
                v_and_b32 v{t0}, 7, v{vL}
                v_lshlrev_b32 v{t0}, 7, v{t0}
                v_add_u32 v{t0}, {WS_ST}, v{t0}
                global_load_dword v{t1}, v{t0}, {sp(WS)} sc1
                s_waitcnt vmcnt(0)
                v_subrev_u32 v{t1}, s{ST0}, v{t1}
                v_add_u32 v{t1}, 1000, v{t1}
                s_nop 1
                v_readlane_b32 s{sT0}, v{t1}, 0
                s_mov_b32 s{sT1}, s{sT0}""")
                for i in range(1, 8):
                    a(f"v_readlane_b32 s{sT2}, v{t1}, {i}\ns_nop 1\ns_max_u32 s{sT0}, s{sT0}, s{sT2}\ns_min_u32 s{sT1}, s{sT1}, s{sT2}")
                a(f"s_sub_u32 s{sT0}, s{sT0}, s{sT1}" if self.leak[3] == 2 else f"s_sub_u32 s{sT0}, 1000, s{sT1}")
            a(f"""s_min_u32 s{sT0}, s{sT0}, 5000
            s_mul_i32 s{sT0}, s{sT0}, 10
            s_add_u32 s{sT0}, s{sT0}, 2000
            L_leak:
            s_memrealtime {sp(ST0 + 6)}
            s_waitcnt lgkmcnt(0)
            s_sub_u32 s{sT1}, s{ST0 + 6}, s{ST0 + 4}
            s_cmp_lt_u32 s{sT1}, s{sT0}
            s_cbranch_scc1 L_leak""")
        if self.prof:
            self.stamp(14)
            a(f"""s_memrealtime {sp(ST0 + 32)}
            s_mov_b64 exec, 1
            s_lshl_b32 s{sT0}, s2, 2
            s_add_u32 s{sT0}, s{sT0}, s{sW}
            s_lshl_b32 s{sT0}, s{sT0}, 7
            s_add_u32 s{sT0}, s{sT0}, {WS_ST}
            v_mov_b32 v{t0}, s{sT0}
            s_waitcnt lgkmcnt(0)""")
            for k in (range(17) if self.prof == 1 else (15, 16)):
                a(f"v_mov_b32 v{t1}, s{ST0 + 2 * k}\nglobal_store_dword v{t0}, v{t1}, {sp(WS)} offset:{4 * k}")
            a(f"v_mov_b32 v{t1}, s{sFAST}\nglobal_store_dword v{t0}, v{t1}, {sp(WS)} offset:68")
            a(f"v_mov_b32 v{t1}, s{sQN}\nglobal_store_dword v{t0}, v{t1}, {sp(WS)} offset:72")
            a(f"v_mov_b32 v{t1}, s{sSPIN}\nglobal_store_dword v{t0}, v{t1}, {sp(WS)} offset:76")
        a("L_end:\ns_endpgm")

    def build(self):
        head = open("cdna_kernels/" + NAME + ".s.ref").read().split("; Override launch")[0]
        if self.prof == 1:
            for k in range(17):
                self.a(f"s_mov_b32 s{ST0 + 2 * k}, 0")
        self.prologue()
        self.h_issue()
        self.l_issue()
        self.l_rest()
        self.attention("l", self.nl, 0, self.lw - self.lp, self.ul)
        self.w_tail()
        done = self.h_rest()
        self.attention("h", self.nh, done, 0, self.uh - 4 * self.nh + 4)
        self.f_tail()
        self.exit()
        self.helper()
        for c in self.cold:
            self.a(c)
        self.a("L_code_end:")
        body = "\n".join(pad(self.L))
        return f"""{head}; @launch grid=(256,1,1) block=(320,1,1) lds={LDS_BASE + 16384 * self.nh}
.amdgcn_target "amdgcn-amd-amdhsa--gfx950"
.text
.globl {NAME}_kernel
.p2align 8
.type {NAME}_kernel,@function
{NAME}_kernel:
{body}
.section .rodata,"a"
.p2align 6
.amdhsa_kernel {NAME}_kernel
  .amdhsa_next_free_vgpr {NVGPR}
  .amdhsa_next_free_sgpr 102
  .amdhsa_accum_offset {NVGPR}
  .amdhsa_group_segment_fixed_size 0
  .amdhsa_kernarg_size 96
  .amdhsa_user_sgpr_count 2
  .amdhsa_user_sgpr_kernarg_segment_ptr 1
  .amdhsa_system_sgpr_workgroup_id_x 1
.end_amdhsa_kernel
"""


if __name__ == "__main__":
    out = sys.argv[1]
    kw = {}
    for arg in sys.argv[2:]:
        k, v = arg.split("=")
        kw[k] = int(v)
    open(out, "w").write(Gen(**kw).build())
```

```python
import re

TRANS = ("v_exp_f32", "v_log_f32", "v_rcp_f32", "v_rsq_f32", "v_sqrt_f32", "v_sin_f32", "v_cos_f32")


def _regs(tok):
    tok = tok.strip()
    tok = tok.lstrip("-")
    if tok.startswith("abs(") and tok.endswith(")"):
        tok = tok[4:-1]
    m = re.fullmatch(r"([vs])\[(\d+):(\d+)\]", tok)
    if m:
        return [(m.group(1), i) for i in range(int(m.group(2)), int(m.group(3)) + 1)]
    m = re.fullmatch(r"([vs])(\d+)", tok)
    if m:
        return [(m.group(1), int(m.group(2)))]
    if tok == "vcc":
        return [("s", "vcc")]
    if tok == "m0":
        return [("s", "m0")]
    return []


class Ins:
    def __init__(self, text):
        self.text = text
        t = text.split(";")[0].strip()
        self.label = t.endswith(":")
        self.directive = t.startswith(".")
        self.empty = t == ""
        self.op = ""
        self.wr = []
        self.rd = []
        self.srcc = []
        self.srcab = []
        self.store_data = []
        if self.label or self.directive or self.empty:
            return
        parts = t.split(None, 1)
        self.op = parts[0]
        ops = []
        if len(parts) > 1:
            rest = re.sub(r"quad_perm:\[[^\]]*\]|op_sel(_hi)?:\[[^\]]*\]|hwreg\([^)]*\)", "", parts[1])
            ops = [o.strip().split()[0] if o.strip() else "" for o in rest.split(",")]
        op = self.op
        self.is_mfma = op.startswith("v_mfma")
        self.is_valu = op.startswith("v_") and not self.is_mfma
        self.is_vmem = op.startswith("global_") or op.startswith("buffer_")
        self.is_ds = op.startswith("ds_")
        self.is_salu = op.startswith("s_")
        self.is_dpp = "_dpp" in op
        self.is_perml = op.startswith("v_permlane")
        self.is_trans = op.startswith(TRANS)
        self.is_dot = op.startswith("v_dot")
        self.is_rdlane = op.startswith("v_readfirstlane") or op.startswith("v_readlane")
        self.is_ldsdma = "_lds_" in op or " lds" in t
        R = [_regs(o) for o in ops]
        if self.is_mfma:
            self.wr = R[0]
            self.srcab = R[1] + R[2]
            self.srcc = R[3] if len(R) > 3 else []
            self.rd = self.srcab + self.srcc
        elif self.is_valu:
            self.wr = list(R[0])
            self.rd = [r for x in R[1:] for r in x]
            if self.is_perml:
                self.wr = R[0] + R[1]
                self.rd = R[0] + R[1]
            if op.startswith("v_dot2c") or op.startswith("v_fmac") or self.is_dpp:
                self.rd = self.rd + R[0]
            if op.startswith("v_cndmask") and len(R) == 3:
                self.rd.append(("s", "vcc"))
        elif self.is_vmem:
            if self.is_ldsdma:
                self.rd = [r for x in R for r in x] + [("s", "m0")]
            elif "load" in op:
                self.wr = R[0]
                self.rd = [r for x in R[1:] for r in x]
            else:
                self.rd = [r for x in R for r in x]
                if op.endswith("x4") or op.endswith("x3"):
                    self.store_data = R[1] if op.startswith("global_") else R[0]
        elif self.is_ds:
            if op.startswith("ds_read"):
                self.wr = R[0]
                self.rd = [r for x in R[1:] for r in x]
            else:
                self.rd = [r for x in R for r in x]
        elif self.is_salu:
            if op.startswith(("s_cmp", "s_cbranch", "s_branch", "s_waitcnt", "s_nop", "s_sleep", "s_barrier", "s_endpgm", "s_setprio", "s_bitcmp")):
                self.rd = [r for x in R for r in x]
            else:
                self.wr = R[0] if R else []
                self.rd = [r for x in R[1:] for r in x]

    @property
    def real(self):
        return not (self.label or self.directive or self.empty)

    def states(self):
        if self.op == "s_nop":
            return int(self.text.split()[1]) + 1
        return 1


def need(prod, cons):
    n = 0
    pw, cr, cw = set(prod.wr), set(cons.rd), set(cons.wr)
    pv = {r for r in pw if r[0] == "v"}
    ps = {r for r in pw if r[0] == "s"}
    if prod.is_valu:
        if pv & cr:
            if cons.is_dpp or cons.is_perml:
                n = max(n, 2)
            if cons.is_mfma:
                n = max(n, 2)
            if cons.is_rdlane:
                n = max(n, 1)
            if prod.is_trans and cons.is_valu and not cons.is_trans:
                n = max(n, 1)
            if prod.is_trans and (cons.is_vmem or cons.is_ds):
                n = max(n, 1)
        if prod.is_dot and (pv & (cr | cw)):
            same_acc = cons.is_dot and cons.op == prod.op and not (pv & (set(cons.rd) - set(cons.wr)))
            if not same_acc:
                n = max(n, 3)
        if ps & cr:
            if cons.is_valu or cons.is_mfma:
                n = max(n, 2)
            if cons.is_vmem:
                n = max(n, 5)
            if cons.is_salu:
                n = max(n, 1)
    if prod.is_mfma:
        if cons.is_mfma:
            if pv & set(cons.srcab):
                n = max(n, 8)
            if pv & set(cons.srcc) and list(prod.wr) != list(cons.srcc):
                n = max(n, 6)
            if pv & cw and list(prod.wr) != list(cons.srcc):
                n = max(n, 8)
        elif pv & (cr | cw):
            n = max(n, 8)
        if cons.is_valu and set(prod.srcc) & cw:
            n = max(n, 3)
    if prod.store_data and set(prod.store_data) & cw:
        n = max(n, 2)
    if prod.is_salu and ("s", "m0") in pw and cons.is_ldsdma:
        n = max(n, 1)
    return n


def pad(lines):
    out = []
    hist = []
    for text in lines:
        ins = Ins(text)
        if not ins.real:
            out.append(text)
            continue
        req = 0
        dist = 0
        for p in reversed(hist):
            k = need(p, ins)
            if k > dist:
                req = max(req, k - dist)
            dist += p.states()
            if dist >= 8:
                break
        if req > 0:
            nop = f"  s_nop {req - 1}"
            out.append(nop)
            hist.append(Ins(nop))
        out.append(text)
        hist.append(ins)
        hist = hist[-12:]
    return out


def check_branches(lines):
    ins = [Ins(t) for t in lines]
    where = {i.text.strip()[:-1]: k for k, i in enumerate(ins) if i.label}
    problems = []
    for k, i in enumerate(ins):
        if not i.real or not (i.op.startswith("s_cbranch") or i.op == "s_branch"):
            continue
        target = i.text.split()[1]
        if target not in where:
            continue
        before = [p for p in ins[max(0, k - 40):k + 1] if p.real][-9:]
        after = []
        for c in ins[where[target]:]:
            if c.real:
                after.append(c)
                if len(after) == 8 or c.op in ("s_branch", "s_endpgm"):
                    break
        for bi, p in enumerate(before):
            dist = sum(x.states() for x in before[bi + 1:])
            for c in after:
                if need(p, c) > dist:
                    problems.append(f"{p.text.strip()}  ->[{target}]->  {c.text.strip()}  (needs {need(p, c)}, has {dist})")
                dist += c.states()
    return problems
```

```python
import sys
from asmlib import check_branches, pad

NAME = "sequential_preLN__sliding_block_cached__swiglu_ffn__decode"

WS_HI, WS_ML, WS_B2A, WS_A1, WS_C, WS_QA, WS_QB, WS_E, WS_ST = 0x1000, 0x2000, 0x8000, 0x10000, 0x100000, 0xD0000, 0xE0000, 0xF0000, 0x180000
WS_FL = 0xC8000
L_QS, L_MX, L_OK, L_OV, L_HV, L_QP = 0, 1024, 1536, 1664, 1792, 4096
L_OR, OR_PLANE = 4096, 68
OR_STRIDE = 8 * 4 * OR_PLANE
L_G, L_U, L_K = 16384, 32768, 16384
LDS_BASE = 16384

sW, sG, sJ, sE, sXCC, sHX, sFAST = 3, 28, 29, 30, 31, 32, 33
sTA4, sTA2, sTB4, sTH4 = 34, 35, 36, 37
sSLO, sSHI, sPLO, sPHI = 38, 39, 40, 41
sM = [42, 44, 46, 48]
sG1 = 50
sQP = 52
sT0, sT1, sT2, sT3 = 54, 55, 56, 57
sQN, sSPIN = 59, 60
sA1G, sF, sKQ, sKM = 58, 58, 61, 98
sCM = 24
sCODE = 62
ST0 = 64
X, KP, VP, WQ, WO, GA, UP, DN, OUT, DBG, WS = 4, 6, 8, 10, 12, 16, 18, 20, 22, 24, 26
KB, VB = [KP, 0, 14, 10], [VP, 62, 100, 12]
REGION = 1 << 16

vL, vK, vV, vN, vGp, vSEL, vQ = 0, 1, 2, 3, 4, 5, 6
vA, vB, vC, vD, vXH = 7, 8, 9, 10, 11
t0, t1, t2, t3 = 12, 13, 14, 15
RK, RV, RB, RA, RD, RP, RX = 16, 80, 144, 176, 192, 208, 216
RW, RWB, RWD = RV + 16, RK + 16, RB
vKD, vF, vHI, vHA, aOX, aMR = 228, 232, 236, 237, 253, 254
aKR, aQW, aQR, aMW, aOW, aOR, aA1, aML, aFG, aFD, aTR, aHP, aES, aEG, aCS = range(238, 253)
aWO, aMG, aAG, aVW, aVR, aB1, aBG, aB2, aHG, aHB, aHW, aC0, aC1, aHR, aOut = range(RV + 48, RV + 63)
NVGPR = 256
LOG2E = "0x3fb8aa3b"
DPP = "row_mask:0xf bank_mask:0xf"
TILE = 4 << 16


def sp(r):
    return f"s[{r}:{r + 1}]"


def vr(r, n):
    return f"v[{r}:{r + n - 1}]"


class Gen:
    def __init__(self, prof=0, nt=1, qa_tries=24, d_b1=0, d_b2a=10, d_c=36, d_e=0, force_slow=0, code_bytes=16384,
                 codepf=1, qtouch=1, fine=0, leak_wg=-1, leak_a=0, leak_b=14, leak_clk=0,
                 uh=12, depth=8, d0=8, hq_at=8, hq_wait=5, lw=8, lp=2, ciod=1, biod=1, lfast=0, d_q=2, d_cl=0, wprime=1, flag=0, d_fl=0, qb_late=1, out_pw=0, out_sc=0):
        self.L, self.cold = [], []
        self.prof, self.fine, self.nt = prof, fine, " nt" if nt else ""
        self.qa_tries, self.force_slow = qa_tries, force_slow
        self.d_b1, self.d_b2a, self.d_c, self.d_e = d_b1, d_b2a, d_c, d_e
        self.code_bytes, self.codepf, self.qtouch = code_bytes, codepf, qtouch
        self.leak = (leak_wg, leak_a, leak_b, leak_clk)
        assert uh == 12
        self.uh, self.ul, self.nh, self.nl = uh, 16 - uh, (uh + 3) // 4, 1
        self.depth, self.hq_at, self.hq_wait, self.lw = depth, hq_at, hq_wait, lw
        self.gap, self.d0, self.lp = 0, d0, lp
        self.ciod, self.biod, self.lfast, self.d_q = ciod, biod, lfast, d_q
        self.qb_late, self.out_pw, self.out_sc = qb_late, out_pw, out_sc
        self.d_cl, self.wprime, self.flag, self.d_fl = d_cl, wprime, flag, d_fl

    def a(self, s):
        for ln in s.strip("\n").split("\n"):
            ln = ln.strip()
            if ln:
                self.L.append(ln if ln.endswith(":") or ln.startswith(".") or ln.startswith(";") else "  " + ln)

    def stamp(self, k, early=False):
        if self.fine and 8 <= k <= 13 and not early:
            return
        if self.prof == 1:
            self.a(f"s_memtime {sp(ST0 + 2 * k)}")
        if self.leak[0] >= 0 and k in self.leak[1:3]:
            self.a(f"{'s_memtime' if self.leak[3] == 1 else 's_memrealtime'} {sp(ST0 + (0 if k == self.leak[1] else 2))}")

    def fstamp(self, k):
        if self.fine:
            self.stamp(k, True)

    def sleep(self, n):
        if n:
            self.a(f"s_sleep {n}")

    def spin(self):
        self.a(f"s_sub_u32 s{sSPIN}, s{sSPIN}, 1\ns_cbranch_scc1 L_exit")

    def check4(self, r, tag, dst="vcc"):
        self.a(f"""v_perm_b32 v{t0}, v{r + 1}, v{r}, s{sSLO}
        v_perm_b32 v{t1}, v{r + 3}, v{r + 2}, s{sSHI}
        v_or_b32 v{t0}, v{t0}, v{t1}
        v_cmp_ne_u32 {dst}, s{tag}, v{t0}""")

    def tag(self, dst, src, tag):
        self.a(f"v_perm_b32 v{dst}, v{src}, s{tag}, v{vSEL}")

    def pub_cmp(self):
        self.a(f"s_cmp_eq_u32 s{sFAST}, 0")

    def pub(self, name, store, cmp=True):
        if cmp:
            self.pub_cmp()
        self.a(f"s_cbranch_scc1 L_slow_{name}\n{store}\nL_back_{name}:")
        self.cold.append(f"L_slow_{name}:\n{store} sc1\ns_branch L_back_{name}")

    def poll(self, name, loads, tag, dst, depth, slots, primed=False):
        a, n = self.a, len(loads)

        def issue(k):
            for i, ld in enumerate(loads):
                a(ld.format(vr(slots[k] + 4 * i, 4)))

        def test(k, younger):
            for i in range(n):
                a(f"s_waitcnt vmcnt({younger + n - 1 - i})")
                self.check4(slots[k] + 4 * i, tag, "vcc" if i == n - 1 else sp(sT2))
                for e in range(4):
                    a(f"v_and_b32 v{dst + 4 * i + e}, 0xffffff00, v{slots[k] + 4 * i + e}")
            if n > 1:
                a(f"s_or_b64 vcc, vcc, {sp(sT2)}")
        if depth == 1:
            if primed:
                a(f"s_branch L_{name}_w")
            a(f"L_{name}:")
            issue(0)
            self.spin()
            if primed:
                a(f"L_{name}_w:")
            test(0, 0)
            a(f"s_cbranch_vccnz L_{name}")
            return
        for k in range(1 if primed else 0, depth - 1):
            issue(k)
            self.sleep(self.gap)
        a(f"L_{name}:")
        for k in range(depth):
            issue((k + depth - 1) % depth)
            if k == 0:
                self.spin()
            test(k, (depth - 1) * n)
            a(f"s_cbranch_vccz L_{name}_ok" if k < depth - 1 else f"s_cbranch_vccnz L_{name}")
        a(f"L_{name}_ok:")

    def bf16r(self, dst, src):
        self.a(f"v_cvt_pk_bf16_f32 v{dst}, v{src}, v{src}\nv_and_b32 v{dst}, 0xffff0000, v{dst}")

    def allred(self, r, op, rors=(8, 4, 2, 1), tmp=t3):
        for k in rors:
            self.a(f"{op}_dpp v{r}, v{r}, v{r} row_ror:{k} {DPP}")
        for sw in ("v_permlane16_swap_b32", "v_permlane32_swap_b32"):
            self.a(f"v_mov_b32 v{tmp}, v{r}\n{sw} v{r}, v{tmp}\n{op} v{r}, v{r}, v{tmp}")

    def rs4(self, r):
        self.a(f"""v_permlane32_swap_b32 v{r}, v{r + 2}
        v_permlane32_swap_b32 v{r + 1}, v{r + 3}
        v_add_f32 v{r}, v{r}, v{r + 2}
        v_add_f32 v{r + 1}, v{r + 1}, v{r + 3}
        v_permlane16_swap_b32 v{r}, v{r + 1}
        v_add_f32 v{r}, v{r}, v{r + 1}""")

    def matvec8(self, mf, D, out, tag, after=None):
        order = [0, 4, 1, 5, 2, 6, 3, 7]
        sel = [f"v_cndmask_b32 v{out + i}, v{D + 4 * i}, v{D + 16 + 4 * i}, {sp(sG1)}" for i in range(4)]
        for t in order:
            self.a(mf(t))
        if after:
            self.a(after)
        for i in range(4):
            self.a(sel[i])
            if i:
                self.tag(out + i - 1, out + i - 1, tag)
        self.tag(out + 3, out + 3, tag)

    def ln_scale(self, mean, var, tmp):
        self.a(f"v_cvt_pk_bf16_f32 v{tmp}, v{mean}, v{var}")
        self.a(f"v_lshlrev_b32 v{mean}, 16, v{tmp}\nv_and_b32 v{var}, 0xffff0000, v{tmp}")
        self.a(f"v_add_f32 v{var}, 0x3727c5ac, v{var}")
        self.bf16r(var, var)
        self.a(f"v_sqrt_f32 v{var}, v{var}")
        self.bf16r(var, var)

    def perm_pair(self, src0, src1, dst, stride, slot):
        for dd in range(4):
            self.a(f"v_perm_b32 v{dst + stride * (2 * dd) + slot}, v{src1 + dd}, v{src0 + dd}, s{sPLO}")
            self.a(f"v_perm_b32 v{dst + stride * (2 * dd + 1) + slot}, v{src1 + dd}, v{src0 + dd}, s{sPHI}")

    def consts(self):
        self.a('; constants: byte selectors for tag checks and bf16 packing, poll bound, census and query addresses')
        self.a(f"""s_mov_b32 s{sSLO}, 0x0c0c0400
        s_mov_b32 s{sSHI}, 0x04000c0c
        s_mov_b32 s{sPLO}, 0x05040100
        s_mov_b32 s{sPHI}, 0x07060302
        s_mov_b32 s{sG1}, 0xffff0000
        s_mov_b32 s{sG1 + 1}, 0xffff0000
        s_mov_b32 s{sSPIN}, 0x20000
        s_mov_b32 s{sQN}, 0
        s_mov_b32 s{sCM}, 2
        v_mov_b32 v{vSEL}, 0x07060500
        s_getreg_b32 s{sXCC}, hwreg(HW_REG_XCC_ID, 0, 4)
        s_lshl_b32 s{sT0}, s{sG}, 7
        s_add_u32 s{sT0}, s{sT0}, {WS_HI}
        v_lshl_add_u32 v{vHA}, v{vN}, 2, s{sT0}
        s_lshl_b32 s{sT0}, s{sG}, 13
        s_lshl_b32 s{sT1}, s{sW}, 10
        s_add_u32 s{sT0}, s{sT0}, s{sT1}
        s_add_u32 s{sT0}, s{sT0}, {WS_QA + 2048}
        v_lshl_add_u32 v{vQ}, v{vL}, 4, s{sT0}
        s_mov_b64 {sp(sQP)}, {sp(WS)}""")

    def addr_att(self, nt):
        self.a('; addresses of the attention stage (LDS images, (max,sum) record, partial-output record)')
        self.a(f"""v_xor_b32 v{t0}, v{vN}, v{vGp}
        v_lshlrev_b32 v{t0}, 4, v{t0}
        v_lshl_add_u32 v{t0}, v{vN}, 8, v{t0}
        s_mul_i32 s{sT0}, s{sW}, {4096 * nt}
        v_add_u32 v{aKR}, s{sT0}, v{t0}
        s_lshl_b32 s{sT0}, s{sW}, 8
        v_lshl_add_u32 v{aQW}, v{vL}, 2, s{sT0}
        v_lshrrev_b32 v{t0}, 2, v{vN}
        v_lshlrev_b32 v{t1}, 8, v{t0}
        v_lshl_add_u32 v{aQR}, v{vGp}, 4, v{t1}
        s_lshl_b32 s{sT1}, s{sW}, 3
        v_lshl_add_u32 v{aMW}, v{t0}, 5, s{sT1}
        s_mul_i32 s{sT1}, s{sW}, {OR_STRIDE}
        s_add_u32 s{sT1}, s{sT1}, {L_OR}
        v_lshl_add_u32 v{aOW}, v{vL}, 2, s{sT1}
        v_add_u32 v{aOX}, {16 * OR_PLANE}, v{aOW}
        s_lshl_b32 s{sT1}, s{sW}, 5
        v_mov_b32 v{aMR}, s{sT1}
        s_lshl_b32 s{sT1}, s{sW}, 6
        s_add_u32 s{sT1}, s{sT1}, {L_OR}
        v_and_b32 v{t0}, 0x3c, v{vL}
        v_add_u32 v{aOR}, s{sT1}, v{t0}
        v_and_b32 v{t0}, 3, v{vL}
        v_mul_u32_u24 v{t0}, {8 * OR_PLANE}, v{t0}
        v_add_u32 v{aOR}, v{t0}, v{aOR}
        v_add_u32 v{RD + 13}, {OR_STRIDE}, v{aOR}
        v_add_u32 v{RD + 14}, {2 * OR_STRIDE}, v{aOR}
        v_add_u32 v{RD + 15}, {3 * OR_STRIDE}, v{aOR}
        s_lshl_b32 s{sT0}, s{sG}, 16
        s_lshl_b32 s{sT1}, s{sJ}, 11
        s_add_u32 s{sT0}, s{sT0}, s{sT1}
        s_lshl_b32 s{sT1}, s{sW}, 9
        s_add_u32 s{sT0}, s{sT0}, s{sT1}
        s_add_u32 s{sT0}, s{sT0}, {WS_A1}
        v_lshl_add_u32 v{aA1}, v{vL}, 3, s{sT0}
        s_lshl_b32 s{sT0}, s{sG}, 11
        s_lshl_b32 s{sT1}, s{sJ}, 6
        s_add_u32 s{sT0}, s{sT0}, s{sT1}
        s_lshl_b32 s{sT1}, s{sW}, 4
        s_add_u32 s{sT0}, s{sT0}, s{sT1}
        s_add_u32 s{sT0}, s{sT0}, {WS_ML}
        v_mov_b32 v{aML}, s{sT0}""")

    def addr_w(self):
        self.a('; addresses of the output projection, the two reductions of its result and the final stage')
        self.a(f"""s_lshl_b32 s{sT0}, s{sG}, 19
        s_lshl_b32 s{sT1}, s{sJ}, 15
        s_add_u32 s{sT0}, s{sT0}, s{sT1}
        s_lshl_b32 s{sT1}, s{sW}, 8
        s_add_u32 s{sT0}, s{sT0}, s{sT1}
        s_add_u32 s{sT0}, s{sT0}, 4096
        v_lshlrev_b32 v{t0}, 13, v{vGp}
        v_lshl_add_u32 v{t0}, v{vN}, 4, v{t0}
        v_add_u32 v{aWO}, s{sT0}, v{t0}
        v_lshrrev_b32 v{t0}, 1, v{vL}
        s_lshl_b32 s{sT0}, s{sG}, 11
        s_lshr_b32 s{sT1}, s{sJ}, 2
        s_lshl_b32 s{sT1}, s{sT1}, 4
        s_add_u32 s{sT0}, s{sT0}, s{sT1}
        s_add_u32 s{sT0}, s{sT0}, {WS_ML}
        v_lshl_add_u32 v{aMG}, v{t0}, 6, s{sT0}
        s_lshl_b32 s{sA1G}, s{sG}, 16
        s_add_u32 s{sA1G}, s{sA1G}, {WS_A1}
        s_lshl_b32 s{sT1}, s{sJ}, 7
        s_add_u32 s{sT2}, s{sA1G}, s{sT1}
        s_lshl_b32 s{sT1}, s{sW}, 5
        s_add_u32 s{sT0}, s{sT2}, s{sT1}
        v_lshlrev_b32 v{aAG}, 11, v{t0}
        v_and_b32 v{t1}, 1, v{vL}
        v_lshl_add_u32 v{aAG}, v{t1}, 4, v{aAG}
        v_add_u32 v{aAG}, s{sT0}, v{aAG}
        v_lshlrev_b32 v{aVW}, 3, v{t1}
        v_lshl_add_u32 v{aVW}, v{vGp}, 1, v{aVW}
        s_lshl_b32 s{sT1}, s{sW}, 4
        v_add_u32 v{aVW}, s{sT1}, v{aVW}
        v_lshlrev_b32 v{aVR}, 4, v{vGp}
        v_lshrrev_b32 v{t0}, 2, v{vN}
        v_lshlrev_b32 v{aB1}, 11, v{t0}
        v_and_b32 v{t0}, 3, v{vN}
        v_lshl_add_u32 v{aB1}, v{t0}, 5, v{aB1}
        v_and_b32 v{t0}, 1, v{vGp}
        v_lshl_add_u32 v{aB1}, v{t0}, 4, v{aB1}
        s_lshl_b32 s{sT1}, s{sW}, 13
        s_add_u32 s{sT0}, s{sT2}, s{sT1}
        v_add_u32 v{aB1}, s{sT0}, v{aB1}
        s_add_u32 s{sT2}, s{sT2}, {16 * 2048}
        v_lshl_add_u32 v{aHB}, v{vD}, 2, s{sT2}
        v_lshlrev_b32 v{aHW}, 2, v{vD}
        s_lshl_b32 s{sT1}, s{sJ}, 11
        s_add_u32 s{sT0}, s{sA1G}, s{sT1}
        v_lshl_add_u32 v{aBG}, v{vL}, 4, s{sT0}
        v_and_b32 v{t0}, 7, v{vL}
        v_lshlrev_b32 v{aB2}, 2, v{t0}
        v_lshl_add_u32 v{aB2}, v{vGp}, 5, v{aB2}
        v_bfe_u32 v{t1}, v{vL}, 3, {1 if self.biod else 0}
        v_lshl_add_u32 v{aB2}, v{t1}, 13, v{aB2}
        s_and_b32 s{sT0}, s{sG}, 4
        s_add_u32 s{sT0}, s{sT0}, s{sG}
        s_lshl_b32 s{sT0}, s{sT0}, 11
        s_lshl_b32 s{sT1}, s{sJ}, 7
        s_add_u32 s{sT1}, s{sT1}, {WS_B2A}
        s_add_u32 s{sT0}, s{sT0}, s{sT1}
        v_add_u32 v{aB2}, s{sT0}, v{aB2}
        v_lshrrev_b32 v{aHG}, 3, v{vL}
        v_and_b32 v{t1}, 4, v{aHG}
        v_add_u32 v{aHG}, v{t1}, v{aHG}
        v_lshlrev_b32 v{aHG}, 11, v{aHG}
        v_lshl_add_u32 v{aHG}, v{t0}, 4, v{aHG}
        s_lshr_b32 s{sT0}, s{sG}, 2
        s_mul_i32 s{sT0}, s{sT0}, {0x2000 if self.biod else 0}
        s_add_u32 s{sT1}, s{sT1}, s{sT0}
        v_add_u32 v{aHG}, s{sT1}, v{aHG}
        s_lshl_b32 s{sT0}, s{sG}, 9
        s_lshl_b32 s{sT1}, s{sJ}, 5
        s_add_u32 s{sT0}, s{sT0}, s{sT1}
        s_lshl_b32 s{sT1}, s{sW}, 4
        s_add_u32 s{sT0}, s{sT0}, s{sT1}
        s_add_u32 s{sT0}, s{sT0}, {WS_C}
        v_min_u32 v{aC1}, 47, v{vL}""")
        for r, src in ((aC0, vL), (aC1, aC1)):
            if self.ciod:
                self.a(f"""v_and_b32 v{t0}, 0x3c, v{src}
                v_add_u32 v{r}, v{t0}, v{src}
                v_lshlrev_b32 v{r}, 11, v{r}""")
            else:
                self.a(f"v_lshlrev_b32 v{r}, 11, v{src}")
        self.a(f"""v_add_u32 v{aC0}, s{sT0}, v{aC0}
        s_add_u32 s{sT0}, s{sT0}, {64 * 2048 * (2 if self.ciod else 1)}
        v_add_u32 v{aC1}, s{sT0}, v{aC1}
        s_lshl_b32 s{sT0}, s{sG}, 3
        s_lshl_b32 s{sT1}, s{sW}, 2
        s_add_u32 s{sT0}, s{sT0}, s{sT1}
        v_add_u32 v{t2}, s{sT0}, v{vGp}
        v_lshlrev_b32 v{aHR}, 2, v{t2}
        s_lshl_b32 s{sT1}, s{sJ}, 6
        v_lshl_add_u32 v{aOut}, v{t2}, 1, s{sT1}""")

    def addr_f(self):
        self.a('; addresses of the feed-forward stage: f = 16g + j - 16 owns hidden columns 16f..16f+15 and,')
        self.a(f"""s_lshl_b32 s{sF}, s{sG}, 4
        s_add_u32 s{sF}, s{sF}, s{sJ}
        s_sub_u32 s{sF}, s{sF}, 16
        s_and_b32 s{sKQ}, s{sF}, 3
        s_lshl_b32 s{sT0}, s{sKQ}, 2
        s_add_u32 s{sT0}, s{sT0}, s{sW}
        s_mul_i32 s{sT0}, s{sT0}, {32 * 3584}
        s_lshr_b32 s{sT1}, s{sF}, 2
        s_lshl_b32 s{sT1}, s{sT1}, 7
        s_add_u32 s{sT0}, s{sT0}, s{sT1}
        v_lshrrev_b32 v{t0}, 3, v{vL}
        v_mul_u32_u24 v{t0}, 3584, v{t0}
        v_and_b32 v{t1}, 7, v{vL}
        v_lshl_add_u32 v{t0}, v{t1}, 4, v{t0}
        v_add_u32 v{aFG}, s{sT0}, v{t0}
        s_lshl_b32 s{sT0}, s{sF}, 14
        s_lshl_b32 s{sT1}, s{sW}, 8
        s_add_u32 s{sT0}, s{sT0}, s{sT1}
        v_lshlrev_b32 v{t0}, 12, v{vGp}
        v_lshl_add_u32 v{t0}, v{vN}, 4, v{t0}
        v_add_u32 v{aFD}, s{sT0}, v{t0}
        v_lshrrev_b32 v{t0}, 2, v{vN}
        v_and_b32 v{t1}, 3, v{vL}
        v_lshlrev_b32 v{aTR}, 11, v{vGp}
        v_lshl_add_u32 v{aTR}, v{t0}, 7, v{aTR}
        v_lshl_add_u32 v{aTR}, v{t1}, 3, v{aTR}
        s_lshl_b32 s{sT0}, s{sW}, 5
        v_add_u32 v{aTR}, s{sT0}, v{aTR}
        v_lshlrev_b32 v{aHP}, 9, v{t0}
        v_lshl_add_u32 v{aHP}, v{vGp}, 6, v{aHP}
        v_lshl_add_u32 v{aHP}, v{t1}, 4, v{aHP}
        s_lshl_b32 s{sT0}, s{sG}, 16
        s_add_u32 s{sT0}, s{sT0}, {WS_A1 + 16 * 2048}
        v_add_u32 v{aHP}, s{sT0}, v{aHP}
        s_and_b32 s{sT0}, s{sF}, 0xfc
        s_add_u32 s{sT0}, s{sT0}, s{sW}
        s_lshl_b32 s{sT0}, s{sT0}, 9
        s_lshl_b32 s{sT1}, s{sKQ}, 3
        s_add_u32 s{sT0}, s{sT0}, s{sT1}
        s_add_u32 s{sT0}, s{sT0}, {WS_E}
        v_lshl_add_u32 v{aES}, v{vN}, 5, s{sT0}
        s_lshl_b32 s{sT0}, s{sF}, 9
        s_add_u32 s{sT0}, s{sT0}, {WS_E}
        v_lshrrev_b32 v{t2}, 2, v{vL}
        v_lshl_add_u32 v{aEG}, v{t2}, 5, s{sT0}
        v_and_b32 v{t2}, 1, v{vL}
        v_lshl_add_u32 v{aEG}, v{t2}, 4, v{aEG}
        v_lshlrev_b32 v{aCS}, 9, v{t1}
        v_lshl_add_u32 v{aCS}, v{t0}, 5, v{aCS}
        v_and_b32 v{t1}, 1, v{vGp}
        v_lshl_add_u32 v{aCS}, v{t1}, 4, v{aCS}
        s_and_b32 s{sT0}, s{sF}, {0xfc if self.ciod else 0}
        s_add_u32 s{sT0}, s{sT0}, s{sF}
        s_lshl_b32 s{sT0}, s{sT0}, 11
        s_lshl_b32 s{sT1}, s{sW}, 7
        s_add_u32 s{sT0}, s{sT0}, s{sT1}
        s_add_u32 s{sT0}, s{sT0}, {WS_C}
        v_add_u32 v{aCS}, s{sT0}, v{aCS}
        s_lshl_b32 s{sT0}, s{sKQ}, 4
        s_mov_b64 {sp(sKM)}, 0xffff
        s_lshl_b64 {sp(sKM)}, {sp(sKM)}, s{sT0}""")

    def tags(self):
        self.a("; this launch's tags: epoch word + 1 (full word, low byte and two variants of it, census word)")
        self.a(f"""s_add_u32 s{sE}, s{sE}, 1
        s_and_b32 s{sT0}, s{sE}, 0xff
        s_mul_i32 s{sTA4}, s{sT0}, 0x01010101
        s_xor_b32 s{sTB4}, s{sTA4}, 0x40404040
        s_xor_b32 s{sTH4}, s{sTA4}, 0x80808080
        s_lshl_b32 s{sHX}, s{sE}, 4
        s_or_b32 s{sHX}, s{sHX}, s{sXCC}""")

    def census_load(self, off):
        self.a(f"global_load_dword v{vHI}, v{vHA}, {sp(WS)} offset:{off} sc1")

    def census_eval(self, keep=False):
        if self.force_slow:
            self.a(f"s_mov_b32 s{sFAST}, 0")
        else:
            self.a(f"v_cmp_ne_u32 vcc, s{sHX}, v{vHI}\ns_cmp_eq_u64 vcc, 0\ns_cselect_b32 s{sFAST}, {f's{sFAST}' if keep else 1}, 0")

    def kload(self, i):
        self.a(f"s_add_u32 m0, s{sT3}, {L_K + 1024 * i}\nglobal_load_lds_dwordx4 v{vKD + i % 4}, {sp(KB[i // 4])}{self.nt}")

    def live(self, groups):
        m = (1 << 16 * groups) - 1
        self.a(f"s_mov_b32 exec_lo, {hex(m & 0xffffffff)}\ns_mov_b32 exec_hi, {hex(m >> 32)}")

    def vload(self, i):
        self.a(f"global_load_dwordx4 {vr(RV + 4 * i, 4)}, v{vV}, {sp(VB[i // 4])} offset:{256 * (i % 4)}{self.nt}")

    def vload_last(self, nt, groups):
        if groups < 4:
            self.live(groups)
        for i in range(4 * nt - 4, 4 * nt):
            self.vload(i)
        if groups < 4:
            self.a("s_mov_b64 exec, -1")

    def vzero(self, nt):
        if self.uh % 4 == 0:
            return
        for r in range(RV + 16 * nt - 16, RV + 16 * nt):
            self.a(f"v_mov_b32 v{r}, 0")

    def tile_bases(self, nt, ptrs):
        for tau in range(1, nt):
            self.a(f"s_add_u32 s{ptrs[tau]}, s{ptrs[0]}, {tau * TILE}\ns_addc_u32 s{ptrs[tau] + 1}, s{ptrs[0] + 1}, 0")

    def kreads(self, nt):
        for s in range(4):
            if s:
                self.a(f"v_xor_b32 v{t1}, {64 * s}, v{aKR}")
            for tau in range(nt):
                self.a(f"ds_read_b128 {vr(RK + 16 * tau + 4 * s, 4)}, v{t1 if s else aKR} offset:{L_K + 4096 * tau}")

    def vperm(self, p, nt):
        if nt == 1:
            self.perm_pair(RV + 8 * p, RV + 8 * p + 4, RB, 2, p)
        elif nt == 3 and p >= 4:
            self.perm_pair(RV + 8 * p, RV + 8 * p + 4, RV, 2, p - 4)
        else:
            self.perm_pair(RV + 8 * p, RV + 8 * p + 4, RB if p < 4 else RV, 4, p % 4)

    def wo_load(self, jj):
        self.a(f"global_load_dwordx4 {vr(RW + 4 * jj, 4)}, v{aWO}, {sp(WO)} offset:{1024 * jj - 4096}{self.nt}")

    def qloads(self, base):
        self.a(f"global_load_dwordx4 {vr(RX, 4)}, v{vQ}, {sp(base)} offset:-2048 sc1")
        self.a(f"global_load_dwordx4 {vr(RX + 4, 4)}, v{vQ}, {sp(base)} offset:2048 sc1")

    def qstage(self):
        self.a(f"""v_add_f32 v{t0}, v{RX}, v{RX + 4}
        v_add_f32 v{t1}, v{RX + 2}, v{RX + 6}
        v_cvt_pk_bf16_f32 v{t0}, v{t0}, v{t1}
        ds_write_b32 v{aQW}, v{t0} offset:{L_QS}""")

    def qreads(self):
        for s in range(4):
            self.a(f"ds_read_b128 {vr(RA + 4 * s, 4)}, v{aQR} offset:{L_QS + 64 * s}")

    def qcheck(self):
        self.a(f"""v_xor_b32 v{t0}, s{sE}, v{RX + 1}
        v_xor_b32 v{t1}, s{sE}, v{RX + 3}
        v_xor_b32 v{t2}, s{sE}, v{RX + 5}
        v_xor_b32 v{t3}, s{sE}, v{RX + 7}
        v_or3_b32 v{t0}, v{t0}, v{t1}, v{t2}
        v_xor_b32 v{t1}, s{sHX}, v{vHI}
        v_or_b32 v{t0}, v{t0}, v{t3}
        v_lshrrev_b32 v{t1}, s{sCM}, v{t1}
        v_lshrrev_b32 v{t1}, s{sCM}, v{t1}
        v_or_b32 v{t0}, v{t0}, v{t1}
        v_cmp_ne_u32 vcc, 0, v{t0}""")

    def prologue(self):
        a = self.a
        if self.prof:
            a(f"s_memrealtime {sp(ST0 + 30)}")
        self.stamp(0)
        a(f"""s_cmpk_ge_u32 s2, 0x100
        s_cbranch_scc1 L_end
        s_load_dwordx16 s[4:19], s[0:1], 0
        s_load_dwordx8 s[20:27], s[0:1], 64
        v_lshrrev_b32 v{t0}, 6, v0
        v_and_b32 v{vL}, 63, v0
        v_readfirstlane_b32 s{sW}, v{t0}
        s_and_b32 s{sG}, s2, 7
        s_lshr_b32 s{sJ}, s2, 3
        v_and_b32 v{vN}, 15, v{vL}
        v_lshrrev_b32 v{vGp}, 4, v{vL}
        s_lshl_b32 s{sT0}, s{sG}, 24
        s_and_b32 s{sT1}, s{sJ}, 15
        s_lshl_b32 s{sT1}, s{sT1}, 12
        s_add_u32 s{sT0}, s{sT0}, s{sT1}
        s_lshl_b32 s{sT1}, s{sW}, 10
        s_add_u32 s{sT0}, s{sT0}, s{sT1}
        s_cmp_lt_u32 s{sJ}, 16
        s_cselect_b32 s{sT1}, {self.uh * REGION}, 0
        s_add_u32 s{sT0}, s{sT0}, s{sT1}
        s_add_u32 s{sT0}, s{sT0}, 0xF00000
        v_xor_b32 v{t0}, v{vN}, v{vGp}
        v_lshlrev_b32 v{t0}, 4, v{t0}
        v_lshl_add_u32 v{t0}, v{vGp}, 8, v{t0}
        v_add_u32 v{vKD}, s{sT0}, v{t0}""")
        for i in range(1, 4):
            a(f"v_xor_b32 v{vKD + i}, {64 * i + (i << 16) + 0x2000 * (i & 1)}, v{vKD}")
        a(f"""v_lshlrev_b32 v{vV}, 16, v{vGp}
        v_lshl_add_u32 v{vV}, v{vN}, 4, v{vV}
        v_add_u32 v{vV}, s{sT0}, v{vV}
        v_lshlrev_b32 v{t0}, 9, v{vL}
        v_and_b32 v{t0}, 0x2000, v{t0}
        v_xor_b32 v{vV}, v{t0}, v{vV}
        s_cmp_eq_u32 s{sW}, 4
        s_cbranch_scc1 L_helper
        s_cmp_lt_u32 s{sJ}, 16
        s_cbranch_scc1 L_l_start""")

    def h_issue(self):
        a = self.a
        a(f"s_mul_i32 s{sT3}, s{sW}, {4096 * self.nh}\ns_waitcnt lgkmcnt(0)")
        for i in range(self.d0):
            if i == 4:
                self.tile_bases(self.nh, KB)
            self.kload(i)
        if self.d0 <= 4:
            self.tile_bases(self.nh, KB)
        a(f"s_load_dword s{sE}, {sp(WS)}, 0\ns_branch L_h_rest")

    def h_rest(self):
        a, n, d, at = self.a, self.uh, self.depth, self.hq_at
        nv = 4 * self.nh
        assert at <= nv - 4
        a("L_h_rest:\ns_barrier")
        self.stamp(1)
        self.tile_bases(self.nh, VB)
        self.consts()
        self.addr_att(self.nh)
        self.addr_f()
        self.vzero(self.nh)
        done = 0
        for i in range(self.d0, d):
            a(f"s_waitcnt vmcnt({self.d0 - 1 + (i - self.d0 + 1) // 2})")
            self.kload(i)
        for i in range(d, n + at):
            a(f"s_waitcnt vmcnt({d - 1})")
            if i == d:
                self.fstamp(8)
            self.kload(i) if i < n else self.vload(i - n)
            if i == n - 1:
                a("s_waitcnt lgkmcnt(0)")
                self.tags()
                a(f"""s_cmp_lg_u32 s{sW}, 3
                s_cbranch_scc1 L_h_census
                s_lshl_b32 s{sT0}, s{sG}, 7
                s_lshl_b32 s{sT1}, s{sJ}, 2
                s_add_u32 s{sT0}, s{sT0}, s{sT1}
                s_add_u32 s{sT0}, s{sT0}, {WS_HI}
                v_mov_b32 v{t0}, s{sT0}
                v_mov_b32 v{t1}, s{sHX}
                global_store_dword v{t0}, v{t1}, {sp(WS)}
                L_h_census:""")
            if i == n + d - 1:
                self.stamp(2)
                self.kreads(self.nh)
            while 2 * done + 1 <= i - d - n:
                self.vperm(done, self.nh)
                done += 1
        a(f"s_waitcnt vmcnt({self.hq_wait})\ns_barrier")
        self.fstamp(9)
        self.qloads(WS)
        self.census_load(0)
        a("s_barrier")
        for i in range(at, nv - 4):
            self.vload(i)
        self.vload_last(self.nh, n - (nv - 4))
        rest = nv - at
        if at < d:
            a(f"s_waitcnt vmcnt({nv + 3})")
            self.stamp(2)
            self.kreads(self.nh)
        while 2 * done + 1 < at:
            a(f"s_waitcnt vmcnt({at - 1 - (2 * done + 1) + 3 + rest})")
            self.vperm(done, self.nh)
            done += 1
        a(f"s_waitcnt vmcnt({rest})")
        self.stamp(3)
        self.qcheck()
        a("s_cbranch_vccz L_qok_h")
        return done

    def l_issue(self):
        a = self.a
        XA, XB = RA, RA + 4
        a("L_l_start:")
        a(f"""v_lshlrev_b32 v{t0}, 4, v{vL}
        v_lshrrev_b32 v{t2}, 3, v{vL}
        s_and_b32 s{sT2}, s{sJ}, 1
        s_lshl_b32 s{sT2}, s{sT2}, 2
        s_add_u32 s{sT2}, s{sT2}, s{sW}
        s_lshl_b32 s{sT0}, s{sT2}, 7
        v_lshl_add_u32 v{t1}, v{t2}, 4, s{sT0}
        s_lshl_b32 s{sT0}, s{sT2}, 19
        s_lshl_b32 s{sT1}, s{sG}, 10
        s_add_u32 s{sT0}, s{sT0}, s{sT1}
        s_bfe_u32 s{sT1}, s{sJ}, 0x30001
        s_lshl_b32 s{sT1}, s{sT1}, 7
        s_add_u32 s{sT0}, s{sT0}, s{sT1}
        v_lshlrev_b32 v{t2}, 16, v{t2}
        v_and_b32 v{t3}, 7, v{vL}
        v_lshl_add_u32 v{t2}, v{t3}, 4, v{t2}
        v_add_u32 v{t2}, s{sT0}, v{t2}
        """)
        a(f"""v_and_b32 v{t3}, 1, v{vL}
        v_lshlrev_b32 v{vD}, 4, v{t3}
        v_lshl_add_u32 v{vD}, v{vGp}, 2, v{vD}
        v_bfe_u32 v{t3}, v{vL}, 1, 2
        v_add_u32 v{vD}, v{t3}, v{vD}""")
        a(f"""
        s_lshl_b32 s{sT0}, s{sJ}, 6
        v_lshl_add_u32 v{t3}, v{vD}, 1, s{sT0}
        s_waitcnt lgkmcnt(0)""")
        a(f"""global_load_dwordx4 {vr(XA, 4)}, v{t0}, {sp(X)}
        global_load_dwordx4 {vr(XB, 4)}, v{t1}, {sp(X)}
        global_load_ushort v{vXH}, v{t3}, {sp(X)}""")
        for i in range(8):
            a(f"global_load_dwordx4 {vr(RW + 4 * i, 4)}, v{t2}, {sp(WQ)}{self.nt}")
            if i < 7:
                a(f"v_add_u32 v{t2}, 0x2000, v{t2}")
        a(f"s_load_dword s{sE}, {sp(WS)}, 0\ns_branch L_l_rest")

    def l_rest(self):
        a = self.a
        XA, XB, XF, ACC, XN = RA, RA + 4, RA + 8, RK + 16, RD
        RV = RW
        a("L_l_rest:\ns_barrier")
        self.stamp(1)
        self.consts()
        self.addr_att(self.nl)
        self.addr_w()
        self.vzero(self.nl)
        a("s_waitcnt vmcnt(8)")
        for i in range(4):
            a(f"v_lshlrev_b32 v{XF + 2 * i}, 16, v{XA + i}\nv_and_b32 v{XF + 2 * i + 1}, 0xffff0000, v{XA + i}")
        a(f"v_add_f32 v{t0}, v{XF}, v{XF + 1}")
        for i in range(2, 8):
            a(f"v_add_f32 v{t0}, v{t0}, v{XF + i}")
        self.allred(t0, "v_add_f32")
        a(f"v_mul_f32 v{t0}, 0x3b000000, v{t0}")
        for i in range(8):
            a(f"v_sub_f32 v{XF + i}, v{XF + i}, v{t0}")
        a(f"v_mul_f32 v{t1}, v{XF}, v{XF}")
        for i in range(1, 8):
            a(f"v_fmac_f32 v{t1}, v{XF + i}, v{XF + i}")
        self.allred(t1, "v_add_f32")
        a(f"v_mul_f32 v{t1}, 0x3b000000, v{t1}")
        self.ln_scale(t0, t1, t2)
        a(f"""v_rcp_f32 v{t2}, v{t1}
        v_fma_f32 v{t3}, -v{t1}, v{t2}, 1.0
        v_fmac_f32 v{t2}, v{t3}, v{t2}""")
        for i in range(4):
            a(f"v_lshlrev_b32 v{XF + 2 * i}, 16, v{XB + i}\nv_and_b32 v{XF + 2 * i + 1}, 0xffff0000, v{XB + i}")
        for i in range(8):
            a(f"v_sub_f32 v{XF + i}, v{XF + i}, v{t0}")
        for i in range(4):
            a(f"v_cvt_pk_bf16_f32 v{XB + i}, v{XF + 2 * i}, v{XF + 2 * i + 1}")
        for i in range(4):
            a(f"v_lshlrev_b32 v{XF + 2 * i}, 16, v{XB + i}\nv_and_b32 v{XF + 2 * i + 1}, 0xffff0000, v{XB + i}")
        for i in range(8):
            a(f"""v_mul_f32 v{ACC + i}, v{XF + i}, v{t2}
            v_fma_f32 v{XF + i}, -v{ACC + i}, v{t1}, v{XF + i}
            v_fmac_f32 v{ACC + i}, v{XF + i}, v{t2}""")
        for i in range(4):
            a(f"v_cvt_pk_bf16_f32 v{XN + i}, v{ACC + 2 * i}, v{ACC + 2 * i + 1}")
        for i in range(8):
            a(f"v_mov_b32 v{ACC + i}, 0")
        a(f"""v_and_b32 v{t0}, 7, v{vL}
        v_lshlrev_b32 v{t0}, 7, v{t0}
        v_lshl_add_u32 v{t0}, v{vGp}, 5, v{t0}
        s_lshl_b32 s{sT0}, s{sW}, 2
        s_add_u32 s{sT0}, s{sT0}, {L_QP}
        v_add_u32 v{vA}, s{sT0}, v{t0}
        v_lshlrev_b32 v{vB}, 4, v{vL}
        s_lshl_b32 s{sT0}, s{sG}, 13
        s_and_b32 s{sT1}, s{sJ}, 1
        s_lshl_b32 s{sT1}, s{sT1}, 12
        s_add_u32 s{sT0}, s{sT0}, s{sT1}
        s_bfe_u32 s{sT1}, s{sJ}, 0x30001
        s_lshl_b32 s{sT1}, s{sT1}, 9
        s_add_u32 s{sT0}, s{sT0}, s{sT1}
        s_add_u32 s{sT0}, s{sT0}, {WS_QA}
        v_lshl_add_u32 v{vC}, v{vL}, 3, s{sT0}""")
        a("s_waitcnt lgkmcnt(0)")
        self.tags()
        PR = RK + 24
        for p in range(4):
            a(f"s_waitcnt vmcnt({6 - 2 * p})")
            if p == 3:
                self.stamp(2)
            self.perm_pair(RV + 8 * p, RV + 8 * p + 4, PR, 1, 0)
            for t in range(8):
                a(f"v_dot2c_f32_bf16 v{ACC + t}, v{PR + t}, v{XN + p}")
        for t in range(4):
            a(f"v_permlane32_swap_b32 v{ACC + t}, v{ACC + t + 4}")
        for t in range(4):
            a(f"v_add_f32 v{ACC + t}, v{ACC + t}, v{ACC + t + 4}")
        for t in range(2):
            a(f"v_permlane16_swap_b32 v{ACC + t}, v{ACC + t + 2}")
        for t in range(2):
            a(f"v_add_f32 v{ACC + t}, v{ACC + t}, v{ACC + t + 2}")
        for t in range(2):
            a(f"v_add_f32_dpp v{ACC + t}, v{ACC + t}, v{ACC + t} row_ror:8 {DPP}")
        a(f"""s_mov_b32 exec_lo, 0x00ff00ff
        s_mov_b32 exec_hi, 0x00ff00ff
        ds_write2_b32 v{vA}, v{ACC}, v{ACC + 1} offset0:0 offset1:4
        s_mov_b64 exec, -1
        s_waitcnt lgkmcnt(0)
        s_barrier
        s_cmp_lg_u32 s{sW}, 0
        s_cbranch_scc1 L_q_pubdone
        ds_read_b128 {vr(ACC, 4)}, v{vB} offset:{L_QP}
        s_lshl_b32 s{sT0}, s{sG}, 7
        s_lshl_b32 s{sT1}, s{sJ}, 2
        s_add_u32 s{sT0}, s{sT0}, s{sT1}
        s_add_u32 s{sT0}, s{sT0}, {WS_HI}
        v_mov_b32 v{t0}, s{sT0}
        v_mov_b32 v{t1}, s{sHX}
        global_store_dword v{t0}, v{t1}, {sp(WS)}
        s_waitcnt lgkmcnt(0)
        v_add_f32 v{ACC}, v{ACC}, v{ACC + 1}
        v_add_f32 v{ACC + 2}, v{ACC + 2}, v{ACC + 3}
        v_mov_b32 v{ACC + 1}, s{sE}
        v_add_f32 v{ACC}, v{ACC}, v{ACC + 2}
        global_store_dwordx2 v{vC}, {vr(ACC, 2)}, {sp(WS)}
        v_add_u32 v{vC}, {WS_QB - WS_QA}, v{vC}
        {"" if self.qb_late else f"global_store_dwordx2 v{vC}, {vr(ACC, 2)}, {sp(WS)} sc1"}
        L_q_pubdone:
        s_barrier""")
        self.stamp(3)
        n = self.ul
        a(f"s_lshl_b32 s{sT3}, s{sW}, 12")
        if self.lfast:
            self.sleep(self.d_q)
            self.qloads(WS)
            self.census_load(0)
            a("s_barrier")
        for i in range(n):
            self.kload(i)
        if self.lp:
            a("s_barrier")
        for jj in range(self.lp):
            self.wo_load(jj)
        if self.lfast:
            a(f"s_lshl_b32 s{sT0}, s{sW}, 2\nv_mov_b32 v{vA}, s{sT0}\nv_mov_b32 v{vB}, 0\ns_waitcnt vmcnt({n + self.lp})")
            self.qcheck()
            self.qstage()
            a(f"""s_cmp_lg_u64 vcc, 0
            s_cselect_b32 s{sT0}, 1, 0
            v_mov_b32 v{t1}, s{sT0}
            ds_write_b32 v{vA}, v{t1} offset:{L_OK}
            s_waitcnt lgkmcnt(0)
            s_barrier
            ds_read_b128 {vr(t0, 4)}, v{vB} offset:{L_OK}
            s_waitcnt lgkmcnt(0)
            v_or3_b32 v{t0}, v{t0}, v{t1}, v{t2}
            v_or_b32 v{t0}, v{t0}, v{t3}
            v_readfirstlane_b32 s{sT0}, v{t0}
            s_cmp_lg_u32 s{sT0}, 0
            s_cbranch_scc1 L_l_second""")
            self.vload_last(self.nl, n)
            a("s_barrier")
            self.qreads()
            for jj in range(self.lp, self.lw):
                self.wo_load(jj)
            self.census_eval()
            a(f"s_waitcnt vmcnt({4 + self.lw})")
            self.kreads(self.nl)
            a("s_waitcnt lgkmcnt(0)\ns_branch L_qk_l\nL_l_second:")
        a(f"s_cmp_lg_u32 s{sW}, 0\ns_cbranch_scc1 L_l_k0")
        if self.qb_late:
            a(f"global_store_dwordx2 v{vC}, {vr(ACC, 2)}, {sp(WS)} sc1")
        a(f"s_waitcnt vmcnt({n - 1 + self.lp + self.qb_late})\nL_l_k0:\ns_barrier")
        self.fstamp(8)
        self.qloads(WS)
        self.census_load(0)
        a("s_barrier")
        self.vload_last(self.nl, n)
        a(f"s_waitcnt vmcnt({3 + 4 + self.lp})")
        self.fstamp(9)
        self.kreads(self.nl)
        a("s_waitcnt vmcnt(4)")
        self.qcheck()
        a("s_cbranch_vccz L_qok_l")

    def attention(self, role, nt, done, younger, groups):
        a = self.a
        ns = 4 * nt
        RO = RK + 32 if nt == 1 else RK
        a(f"L_qpoll_{role}:")
        self.qloads(sQP)
        self.census_load(0)
        self.spin()
        a(f"""s_add_u32 s{sQN}, s{sQN}, 1
        s_cmp_eq_u32 s{sQN}, {self.qa_tries}
        s_cselect_b32 s{sT0}, {WS_QB - WS_QA}, 0
        s_cselect_b32 s{sCM}, 16, s{sCM}
        s_add_u32 s{sQP}, s{sQP}, s{sT0}
        s_addc_u32 s{sQP + 1}, s{sQP + 1}, 0
        s_waitcnt vmcnt(0)""")
        self.qcheck()
        a(f"s_cbranch_vccnz L_qpoll_{role}\nL_qok_{role}:")
        self.stamp(4)
        self.qstage()
        a("s_waitcnt lgkmcnt(0)\ns_barrier")
        self.qreads()
        for jj in range(younger):
            self.wo_load(self.lp + jj)
        self.census_eval()
        a(f"L_qk_{role}:")
        for s in range(4):
            a(f"s_waitcnt lgkmcnt({3 - s})")
            for tau in range(nt):
                c = "0" if s == 0 else vr(RD + 4 * tau, 4)
                a(f"v_mfma_f32_16x16x32_bf16 {vr(RD + 4 * tau, 4)}, {vr(RK + 16 * tau + 4 * s, 4)}, {vr(RA + 4 * s, 4)}, {c}")
        a(f"s_mov_b32 s{sT2}, 0x3db504f3\ns_mov_b32 s{sT3}, 0x3db504f3")
        for rnd in range(2):
            for i in range(ns // 2):
                a(f"v_cvt_pk_bf16_f32 v{RP + i}, v{RD + 2 * i}, v{RD + 2 * i + 1}")
            for i in range(ns // 2):
                a(f"v_lshlrev_b32 v{RD + 2 * i}, 16, v{RP + i}\nv_and_b32 v{RD + 2 * i + 1}, 0xffff0000, v{RP + i}")
            if rnd == 0:
                for i in range(ns // 2):
                    a(f"v_pk_mul_f32 {vr(RD + 2 * i, 2)}, {vr(RD + 2 * i, 2)}, {sp(sT2)}")
        if groups < 4:
            m = ((1 << 64) - 1) ^ ((1 << 16 * groups) - 1)
            a(f"s_mov_b32 exec_lo, {hex(m & 0xffffffff)}\ns_mov_b32 exec_hi, {hex(m >> 32)}")
            for i in range(ns - 4, ns):
                a(f"v_mov_b32 v{RD + i}, 0xff7f0000")
            a("s_mov_b64 exec, -1")
        a(f"v_max3_f32 v{t0}, v{RD}, v{RD + 1}, v{RD + 2}")
        for i in range(3, ns - 1, 2):
            a(f"v_max3_f32 v{t0}, v{t0}, v{RD + i}, v{RD + i + 1}")
        a(f"v_max_f32 v{t0}, v{t0}, v{RD + ns - 1}\ns_mov_b32 s{sT2}, {LOG2E}\ns_mov_b32 s{sT3}, {LOG2E}")
        self.allred(t0, "v_max_f32", rors=())
        a(f"v_mul_f32 v{t2}, 0xbfb8aa3b, v{t0}")
        for i in range(ns // 2):
            a(f"v_pk_fma_f32 {vr(RD + 2 * i, 2)}, {vr(RD + 2 * i, 2)}, {sp(sT2)}, {vr(t2, 2)} op_sel_hi:[1,1,0]")
        for i in range(ns):
            a(f"v_exp_f32 v{RD + i}, v{RD + i}")
        a(f"v_pk_add_f32 {vr(RX, 2)}, {vr(RD, 2)}, {vr(RD + 2, 2)}")
        for i in range(4, ns, 2):
            a(f"v_pk_add_f32 {vr(RX, 2)}, {vr(RX, 2)}, {vr(RD + i, 2)}")
        cvt = [f"v_cvt_pk_bf16_f32 v{RP + i}, v{RD + 2 * i}, v{RD + 2 * i + 1}" for i in range(ns // 2)]
        a(f"v_add_f32 v{t1}, v{RX}, v{RX + 1}\nv_mov_b32 v{t3}, v{t1}")
        a(cvt[0]); a(cvt[1])
        a(f"v_permlane16_swap_b32 v{t1}, v{t3}\nv_add_f32 v{t1}, v{t1}, v{t3}\nv_mov_b32 v{t3}, v{t1}")
        for c in cvt[2:4]:
            a(c)
        a(f"v_permlane32_swap_b32 v{t1}, v{t3}\nv_add_f32 v{t1}, v{t1}, v{t3}")
        a(f"ds_write_b64 v{aMW}, {vr(t0, 2)} offset:{L_MX}")
        for c in cvt[4:]:
            a(c)
        self.stamp(5)
        npair = 2 * nt

        def mf(t, half):
            d = vr(RO + 4 * t, 4)
            if nt == 1:
                return f"v_mfma_f32_16x16x16_bf16 {d}, {vr(RP, 2)}, {vr(RB + 2 * t, 2)}, 0"
            if half == 0:
                return f"v_mfma_f32_16x16x32_bf16 {d}, {vr(RP, 4)}, {vr(RB + 4 * t, 4)}, 0"
            if nt == 3:
                return f"v_mfma_f32_16x16x16_bf16 {d}, {vr(RP + 4, 2)}, {vr(RV + 2 * t, 2)}, {d}"
            return f"v_mfma_f32_16x16x32_bf16 {d}, {vr(RP + 4, 4)}, {vr(RV + 4 * t, 4)}, {d}"

        def wait_pair(p, ml):
            a(f"s_waitcnt vmcnt({ns - 1 - (2 * p + 1) + younger + ml})")
        first = 4 if nt > 1 else 1
        for p in range(done, first):
            wait_pair(p, 0)
            self.fstamp(10)
            self.vperm(p, nt)
        done = max(done, first)
        early = [mf(t, 0) for t in range(8)] if nt > 1 else [""] * 8
        a(f"""{early[0]}
        {early[1]}
        s_waitcnt lgkmcnt(0)
        s_barrier
        ds_read_b128 {vr(RX, 4)}, v{aMR} offset:{L_MX}
        ds_read_b128 {vr(RX + 4, 4)}, v{aMR} offset:{L_MX + 16}
        {early[2]}
        {early[3]}
        {early[4]}
        s_waitcnt lgkmcnt(0)
        v_max3_f32 v{t0}, v{RX}, v{RX + 2}, v{RX + 4}
        v_max_f32 v{t0}, v{t0}, v{RX + 6}
        {early[5]}
        v_mul_f32 v{t3}, 0xbfb8aa3b, v{t0}
        v_fma_f32 v{vF}, v{RX}, s{sT2}, v{t3}
        {early[6]}
        v_fma_f32 v{vF + 1}, v{RX + 2}, s{sT2}, v{t3}
        v_fma_f32 v{vF + 2}, v{RX + 4}, s{sT2}, v{t3}
        {early[7]}
        v_fma_f32 v{vF + 3}, v{RX + 6}, s{sT2}, v{t3}""")
        for i in range(4):
            a(f"v_exp_f32 v{vF + i}, v{vF + i}")
        a(f"v_mov_b32 v{t1}, s{sE}\nv_mul_f32 v{t2}, v{vF}, v{RX + 1}\nv_mov_b32 v{t3}, s{sE}")
        for i in range(1, 4):
            a(f"v_fmac_f32 v{t2}, v{vF + i}, v{RX + 2 * i + 1}")
        self.pub("ml" + role, f"global_store_dwordx4 v{aML}, {vr(t0, 4)}, {sp(WS)}")
        for p in range(done, npair - 1):
            wait_pair(p, 1)
            self.fstamp(11)
            self.vperm(p, nt)
        last = npair - 1
        if done <= last:
            wait_pair(last, 1)
        self.stamp(6)
        s0, s1 = RV + 8 * last, RV + 8 * last + 4

        def pm(t):
            dst = {1: RB + 2 * t + 1, 3: RV + 2 * t + 1, 4: RV + 4 * t + 3}[nt]
            if done <= last:
                a(f"v_perm_b32 v{dst}, v{s1 + t // 2}, v{s0 + t // 2}, s{sPHI if t % 2 else sPLO}")

        def wr(k):
            base = aOW if k < 2 else aOX
            a(f"ds_write2_b32 v{base}, v{RO + 8 * k}, v{RO + 8 * k + 4} offset0:{2 * (k % 2) * OR_PLANE} offset1:{(2 * (k % 2) + 1) * OR_PLANE}")
        pm(0); pm(1); pm(2)
        for t in range(8):
            a(mf(t, 1))
            if t + 3 < 8:
                pm(t + 3)
        for k in range(4):
            wr(k)
        a("s_waitcnt lgkmcnt(0)\ns_barrier")
        for w in range(4):
            a(f"ds_read2_b32 {vr(RD + 2 * w, 2)}, v{RD + 12 + w if w else aOR} offset0:0 offset1:{OR_PLANE}")
        self.pub_cmp()
        a(f"""s_waitcnt lgkmcnt(2)
        v_pk_mul_f32 {vr(RD, 2)}, {vr(RD, 2)}, {vr(vF, 2)} op_sel_hi:[1,0]
        v_pk_fma_f32 {vr(RD, 2)}, {vr(RD + 2, 2)}, {vr(vF, 2)}, {vr(RD, 2)} op_sel:[0,1,0] op_sel_hi:[1,1,1]
        s_waitcnt lgkmcnt(0)
        v_pk_fma_f32 {vr(RD, 2)}, {vr(RD + 4, 2)}, {vr(vF + 2, 2)}, {vr(RD, 2)} op_sel_hi:[1,0,1]
        v_pk_fma_f32 {vr(RD, 2)}, {vr(RD + 6, 2)}, {vr(vF + 2, 2)}, {vr(RD, 2)} op_sel:[0,1,0] op_sel_hi:[1,1,1]""")
        self.tag(RD, RD, sTA4)
        self.tag(RD + 1, RD + 1, sTA4)
        self.pub("a1" + role, f"global_store_dwordx2 v{aA1}, {vr(RD, 2)}, {sp(WS)}", cmp=False)
        if role == "h" or self.lw < 8:
            a("s_barrier")
        self.stamp(7)

    def notice(self):
        self.a(f"""s_lshl_b32 s{sT0}, s{sJ}, 2
        s_add_u32 s{sT0}, s{sT0}, s{sW}
        s_cmp_lg_u32 s{sT0}, 3
        s_cbranch_scc1 L_no_notice
        s_mov_b64 exec, 3
        global_store_dword v{vA}, v{vB}, {sp(WS)} sc1
        s_mov_b64 exec, -1
        L_no_notice:""")

    def w_tail(self):
        a = self.a
        if self.flag:
            a(f"""s_lshl_b32 s{sT0}, s{sG}, 7
            s_add_u32 s{sT0}, s{sT0}, {WS_FL}
            v_lshlrev_b32 v{vA}, 13, v{vL}
            v_and_b32 v{vA}, 0x2000, v{vA}
            v_add_u32 v{vA}, s{sT0}, v{vA}
            v_mov_b32 v{vB}, s{sE}
            s_lshr_b32 s{sT0}, s{sG}, 2
            s_lshl_b32 s{sT0}, s{sT0}, 13
            s_add_u32 s{sT0}, s{sT0}, {WS_FL}
            v_and_b32 v{vC}, 7, v{vL}
            v_lshlrev_b32 v{vC}, 7, v{vC}
            v_add_u32 v{vC}, s{sT0}, v{vC}""")
        for jj in range(self.lw, 8):
            self.wo_load(jj)
        a(f"v_lshlrev_b32 v{vXH}, 16, v{vXH}\nv_cmp_gt_u32 {sp(sM[0])}, 48, v{vL}")
        WT = RX + 4
        if self.wprime:
            ml_load = f"global_load_dwordx4 {vr(RX, 4)}, v{aMG}, {sp(WS)} sc1"
            a1_load = f"global_load_dwordx4 {vr(RA, 4)}, v{aAG}, {sp(WS)} sc1"
            ml_check = f"""v_mov_b32 v{t2}, v{RX}
        v_xor_b32 v{t0}, s{sE}, v{RX + 1}
        v_xor_b32 v{t1}, s{sE}, v{RX + 3}
        v_or_b32 v{t0}, v{t0}, v{t1}
        v_cmp_ne_u32 vcc, 0, v{t0}"""
            for p in range(4):
                last = 2 * p + 1
                a(f"s_waitcnt vmcnt({7 - last + (2 if last < self.lw else 0)})")
                if p == 3:
                    a(ml_load)
                    a(a1_load)
                    self.census_load(64)
                self.perm_pair(RW + 8 * p, RW + 8 * p + 4, RWB, 4, p)
            self.stamp(8)
            a(f"s_waitcnt vmcnt(2)\n{ml_check}\ns_cbranch_vccz L_mlok\nL_mlpoll:\n{ml_load}")
            self.spin()
            a(f"s_waitcnt vmcnt(0)\n{ml_check}\ns_cbranch_vccnz L_mlpoll\n{a1_load}\nL_mlok:")
        else:
            for p in range(4):
                last = 2 * p + 1
                extra = 2 if p == 3 else 0
                a(f"s_waitcnt vmcnt({7 - last + (2 if last < self.lw else 0) + extra})")
                self.perm_pair(RW + 8 * p, RW + 8 * p + 4, RWB, 4, p)
                if p == 2:
                    self.census_load(64)
                    a(f"global_load_dwordx4 {vr(RX, 4)}, v{aMG}, {sp(WS)} sc1")
            self.stamp(8)
            a(f"s_branch L_mlwait\nL_mlpoll:\nglobal_load_dwordx4 {vr(RX, 4)}, v{aMG}, {sp(WS)} sc1")
            self.spin()
            a("L_mlwait:\ns_waitcnt vmcnt(0)")
            a(f"""v_xor_b32 v{t0}, s{sE}, v{RX + 1}
        v_xor_b32 v{t1}, s{sE}, v{RX + 3}
        v_or_b32 v{t0}, v{t0}, v{t1}
        v_cmp_ne_u32 vcc, 0, v{t0}
        v_mov_b32 v{t2}, v{RX}
        s_cbranch_vccnz L_mlpoll""")
            a(f"global_load_dwordx4 {vr(RA, 4)}, v{aAG}, {sp(WS)} sc1")
        self.allred(t2, "v_max_f32", rors=(8, 4, 2))
        a(f"""v_sub_f32 v{WT}, v{RX}, v{t2}
        v_mul_f32 v{WT}, {LOG2E}, v{WT}
        v_exp_f32 v{WT}, v{WT}
        v_mul_f32 v{t2}, v{WT}, v{RX + 2}""")
        self.allred(t2, "v_add_f32", rors=(8, 4, 2))
        a(f"v_rcp_f32 v{t2}, v{t2}\nv_mul_f32 v{WT}, v{WT}, v{t2}")
        self.poll("a1poll", [f"global_load_dwordx4 {{}}, v{aAG}, {sp(WS)} sc1"], sTA4, RD, 1, [RA], primed=True)
        self.stamp(9)
        if self.flag == 1:
            self.notice()
        for i in range(4):
            a(f"v_mul_f32 v{RD + i}, v{RD + i}, v{WT}")
        self.rs4(RD)
        for k in (8, 4, 2):
            a(f"v_add_f32_dpp v{RD}, v{RD}, v{RD} row_ror:{k} {DPP}")
        a(f"""v_cvt_pk_bf16_f32 v{RD}, v{RD}, v{RD}
        ds_write_b16 v{aVW}, v{RD} offset:{L_OV}
        s_waitcnt lgkmcnt(0)
        s_barrier
        ds_read_b128 {vr(RX, 4)}, v{aVR} offset:{L_OV}""")
        self.pub_cmp()
        a("s_waitcnt lgkmcnt(0)")
        self.matvec8(lambda t: f"v_mfma_f32_16x16x32_bf16 {vr(RWD + 4 * t, 4)}, {vr(RX, 4)}, {vr(RWB + 4 * t, 4)}, 0", RWD, RD, sTB4)
        self.pub("b1", f"global_store_dwordx4 v{aB1}, {vr(RD, 4)}, {sp(WS)}", cmp=False)
        if self.flag == 2:
            self.notice()
        self.stamp(10)
        a(f"""s_cmp_ge_u32 s{sW}, 2
        s_cbranch_scc1 L_exit
        s_cmp_eq_u32 s{sW}, 1
        s_cbranch_scc1 L_final""")
        self.sleep(self.d_b1)
        self.poll("b1poll", [f"global_load_dwordx4 {{}}, v{aBG}, {sp(WS)} sc1", f"global_load_dwordx4 {{}}, v{aBG}, {sp(WS)} offset:1024 sc1"],
                  sTB4, RV, 1, [RA])
        self.stamp(11)
        a(f"""v_pk_add_f32 {vr(RV, 2)}, {vr(RV, 2)}, {vr(RV + 4, 2)}
        v_pk_add_f32 {vr(RV + 2, 2)}, {vr(RV + 2, 2)}, {vr(RV + 6, 2)}""")
        self.rs4(RV)
        a(f"v_add_f32_dpp v{RV}, v{RV}, v{RV} row_ror:8 {DPP}")
        self.tag(RV, RV, sTA4)
        a(f"global_store_dword v{aB2}, v{RV}, {sp(WS)} sc1")
        self.census_eval(keep=True)
        if self.d_cl:
            a(f"s_sub_u32 s{sQN}, s{sSPIN}, 1")
        if self.flag:
            a(f"L_notices:\nglobal_load_dword v{t2}, v{vC}, {sp(WS)} sc1")
            self.spin()
            a(f"s_waitcnt vmcnt(0)\nv_cmp_ne_u32 vcc, s{sE}, v{t2}\ns_cbranch_vccnz L_notices")
            self.sleep(self.d_fl)
        else:
            self.sleep(self.d_b2a)
        self.poll("b2poll", [f"global_load_dwordx4 {{}}, v{aHG}, {sp(WS)} sc1"], sTA4, RV, 1, [RA])
        self.stamp(12)
        self.rs4(RV)
        self.pub_cmp()
        a(f"v_add_f32_dpp v{RV}, v{RV}, v{RV} row_ror:8 {DPP}")
        self.bf16r(RV, RV)
        a(f"""v_add_f32 v{RV}, v{RV}, v{vXH}
        v_cvt_pk_bf16_f32 v{RV}, 0, v{RV}""")
        self.tag(RV + 1, RV, sTH4)
        self.pub("b2b", f"global_store_dword v{aHB}, v{RV + 1}, {sp(WS)}", cmp=False)
        if self.d_cl:
            a(f"""s_sub_u32 s{sQN}, s{sQN}, s{sSPIN}
            v_mov_b32 v{t0}, 0
            v_mov_b32 v{t1}, s{sQN}
            ds_write_b32 v{t0}, v{t1} offset:{L_HV + 128}""")
        a(f"""ds_write_b32 v{aHW}, v{RV} offset:{L_HV}
        L_final:
        s_cmp_ge_u32 s{sG}, 4
        s_cbranch_scc1 L_exit
        s_waitcnt lgkmcnt(0)
        s_barrier
        ds_read_b32 v{vXH}, v{aHR} offset:{L_HV}
        s_lshl_b32 s{sT0}, s2, 1
        s_add_u32 s{sT0}, s{sT0}, s{sW}
        s_cmp_lg_u32 s{sT0}, 1
        s_cbranch_scc1 L_epoch_done
        s_mov_b64 exec, 1
        v_mov_b32 v{t0}, 0
        v_mov_b32 v{t1}, s{sE}
        global_store_dword v{t0}, v{t1}, {sp(WS)} sc1
        s_mov_b64 exec, -1
        L_epoch_done:""")
        if True:
            a(f"""s_add_u32 s{sT0}, s{sA1G}, {16 * 2048}
            v_lshl_add_u32 v{aBG}, v{vL}, 4, s{sT0}""")
            self.poll("hseen", [f"global_load_dwordx4 {{}}, v{aBG}, {sp(WS)} sc1", f"global_load_dwordx4 {{}}, v{aBG}, {sp(WS)} offset:1024 sc1"],
                      sTH4, RV, 1, [RA])
        if self.d_cl:
            a(f"""v_mov_b32 v{t0}, 0
            ds_read_b32 v{t1}, v{t0} offset:{L_HV + 128}
            s_waitcnt lgkmcnt(0)
            v_readfirstlane_b32 s{sT0}, v{t1}
            s_cmp_lg_u32 s{sT0}, 0
            s_cbranch_scc1 L_not_last""")
            self.sleep(self.d_cl)
            a("L_not_last:")
        if self.out_pw:
            a(f"global_load_ushort v{t2}, v{aOut}, {sp(OUT)}")
        a("s_waitcnt lgkmcnt(0)")
        self.sleep(self.d_c)
        self.poll("cpoll", [f"global_load_dwordx4 {{}}, v{aC0}, {sp(WS)} sc1", f"global_load_dwordx4 {{}}, v{aC1}, {sp(WS)} sc1"],
                  sTA4, RV, 1, [RA])
        self.stamp(13)
        a(f"""s_mov_b64 exec, {sp(sM[0])}
        v_pk_add_f32 {vr(RV, 2)}, {vr(RV, 2)}, {vr(RV + 4, 2)}
        v_pk_add_f32 {vr(RV + 2, 2)}, {vr(RV + 2, 2)}, {vr(RV + 6, 2)}
        s_mov_b64 exec, -1""")
        self.rs4(RV)
        for k in (8, 4, 2, 1):
            a(f"v_add_f32_dpp v{RV}, v{RV}, v{RV} row_ror:{k} {DPP}")
        self.bf16r(RV, RV)
        a(f"""v_add_f32 v{RV}, v{RV}, v{vXH}
        {"s_mov_b32 exec_lo, 0x10001" if self.out_sc else ""}
        {"s_mov_b32 exec_hi, 0x10001" if self.out_sc else ""}
        v_cvt_pk_bf16_f32 v{RV}, v{RV}, v{RV}
        global_store_short v{aOut}, v{RV}, {sp(OUT)}
        s_branch L_exit""")

    def f_tail(self):
        a = self.a
        BG, BU, DW, BD, DR = RK, RK + 16, RV, RV + 16, RB
        ONES, CSG, CSU = RX + 8, RX + 9, RX + 10
        H0, H1, HA = DW, DW + 4, RX
        a(f"""s_cmp_eq_u32 s{sG}, 7
        s_cbranch_scc1 L_exit
        s_lshl_b32 s{sT2}, s{sW}, 12""")
        for i in range(4):
            for base, ptr in ((L_G, GA), (L_U, UP)):
                a(f"s_add_u32 m0, s{sT2}, {base + 1024 * i}\nglobal_load_lds_dwordx4 v{aFG}, {sp(ptr)}{self.nt}")
            if i < 3:
                a(f"v_add_u32 v{aFG}, {8 * 3584}, v{aFG}")
        for jj in range(4):
            a(f"global_load_dwordx4 {vr(DW + 4 * jj, 4)}, v{aFD}, {sp(DN)} offset:{1024 * jj}{self.nt}")
        a(f"global_load_dwordx4 {vr(DR + 8, 4)}, v{aEG}, {sp(WS)} sc1")
        self.census_load(64)
        a(f"""v_mov_b32 v{ONES}, 0x3f803f80
        v_mov_b32 v{RX}, 0x3f803f80
        v_mov_b32 v{RX + 1}, 0x3f803f80
        v_mov_b32 v{RX + 2}, 0x3f803f80
        v_mov_b32 v{RX + 3}, 0x3f803f80
        s_waitcnt vmcnt(6)
        s_barrier""")
        for base, B in ((L_G, BG), (L_U, BU)):
            for s in range(4):
                for hf in range(2):
                    a(f"ds_read_b64_tr_b16 {vr(B + 4 * s + 2 * hf, 2)}, v{aTR} offset:{base + 8192 * hf + 512 * s}")
        a("s_waitcnt lgkmcnt(0)")
        for s in range(4):
            for B, D in ((BG, DR), (BU, DR + 4)):
                a(f"v_mfma_f32_16x16x32_bf16 {vr(D, 4)}, {vr(RX, 4)}, {vr(B + 4 * s, 4)}, {'0' if s == 0 else vr(D, 4)}")
        a("s_waitcnt vmcnt(0)")
        self.stamp(8)
        for dd in range(4):
            rows = ((0, 1), (2, 3)) if dd < 2 else ((1, 2), (3, 0))
            for p, (lo, hi) in enumerate(rows):
                a(f"v_perm_b32 v{BD + 2 * (2 * dd) + p}, v{DW + 4 * hi + dd}, v{DW + 4 * lo + dd}, s{sPLO}")
                a(f"v_perm_b32 v{BD + 2 * (2 * dd + 1) + p}, v{DW + 4 * hi + dd}, v{DW + 4 * lo + dd}, s{sPHI}")
        a(f"v_mov_b32 v{CSG}, v{DR}\nv_mov_b32 v{CSU}, v{DR + 4}")
        self.census_eval()
        a(f"""L_hpoll:
        global_load_dwordx4 {vr(H0, 4)}, v{aHP}, {sp(WS)} sc1
        global_load_dwordx4 {vr(H1, 4)}, v{aHP}, {sp(WS)} offset:256 sc1""")
        self.spin()
        a("s_waitcnt vmcnt(1)")
        self.check4(H0, sTH4, sp(sT2))
        a(f"""v_perm_b32 v{HA}, v{H0 + 1}, v{H0}, s{sPHI}
        v_perm_b32 v{HA + 1}, v{H0 + 3}, v{H0 + 2}, s{sPHI}
        s_waitcnt vmcnt(0)
        v_perm_b32 v{HA + 2}, v{H1 + 1}, v{H1}, s{sPHI}
        v_perm_b32 v{HA + 3}, v{H1 + 3}, v{H1 + 2}, s{sPHI}""")
        self.check4(H1, sTH4)
        a(f"s_or_b64 vcc, vcc, {sp(sT2)}\ns_cbranch_vccnz L_hpoll")
        self.stamp(9)
        SA, SB = RX + 4, RX + 5
        mf = [f"v_mfma_f32_16x16x32_bf16 {vr(D + 4 * s, 4)}, {vr(HA, 4)}, {vr(B + 4 * s, 4)}, 0" for s in range(4) for B, D in ((BG, DR), (BU, DR + 16))]
        a(f"v_dot2_f32_bf16 v{SA}, v{HA}, v{ONES}, 0\nv_dot2_f32_bf16 v{SB}, v{HA}, v{HA}, 0")
        for i in range(1, 4):
            a(f"v_dot2_f32_bf16 v{SA}, v{HA + i}, v{ONES}, v{SA}\nv_dot2_f32_bf16 v{SB}, v{HA + i}, v{HA + i}, v{SB}")
        a(mf[0]); a(mf[1])
        a(f"v_permlane16_swap_b32 v{SA}, v{SB}\nv_add_f32 v{SA}, v{SA}, v{SB}")
        for k, m in zip((8, 4, 2, 1), mf[2:6]):
            a(m)
            a(f"v_add_f32_dpp v{SA}, v{SA}, v{SA} row_ror:{k} {DPP}")
        a(f"v_mov_b32 v{SB}, v{SA}")
        a(mf[6])
        a(f"v_permlane32_swap_b32 v{SA}, v{SB}\nv_add_f32 v{SA}, v{SA}, v{SB}\nv_mul_f32 v{t0}, 0x3b000000, v{SA}\nv_mul_f32 v{t1}, 0x3b000000, v{SA}")
        a(mf[7])
        a(f"""v_permlane16_swap_b32 v{t0}, v{t1}
        v_fma_f32 v{t1}, -v{t0}, v{t0}, v{t1}
        v_add_f32 v{SA}, v{DR}, v{DR + 5}
        v_max_f32 v{t1}, 0, v{t1}
        v_add_f32 v{SB}, v{DR + 16}, v{DR + 21}""")
        self.ln_scale(t0, t1, t2)
        a(f"""v_add_f32 v{SA}, v{SA}, v{DR + 10}
        v_rcp_f32 v{t1}, v{t1}
        v_add_f32 v{SB}, v{SB}, v{DR + 26}
        v_add_f32 v{SA}, v{SA}, v{DR + 15}
        v_add_f32 v{SB}, v{SB}, v{DR + 31}
        s_cmp_eq_u32 s{sFAST}, 0
        v_fma_f32 v{SA}, -v{t0}, v{CSG}, v{SA}
        v_fma_f32 v{SB}, -v{t0}, v{CSU}, v{SB}
        s_mov_b64 exec, {sp(sKM)}
        v_mul_f32 v{SA}, v{SA}, v{t1}
        v_mul_f32 v{SB}, v{SB}, v{t1}""")
        self.tag(SA, SA, sTA4)
        self.tag(SB, SB, sTA4)
        self.pub("e", f"global_store_dwordx2 v{aES}, {vr(SA, 2)}, {sp(WS)}", cmp=False)
        a("s_mov_b64 exec, -1")
        self.stamp(11)
        self.sleep(self.d_e)
        self.poll("epoll", [f"global_load_dwordx4 {{}}, v{aEG}, {sp(WS)} sc1"], sTA4, H0, 1, [RA])
        self.stamp(12)
        a(f"""v_pk_add_f32 {vr(t2, 2)}, {vr(H0, 2)}, {vr(H0 + 2, 2)}
        v_add_f32_dpp v{t2}, v{t2}, v{t2} quad_perm:[1,0,3,2] {DPP}
        v_add_f32_dpp v{t3}, v{t3}, v{t3} quad_perm:[1,0,3,2] {DPP}
        v_cvt_pk_bf16_f32 v{t3}, v{t2}, v{t3}
        v_lshlrev_b32 v{t2}, 16, v{t3}
        v_and_b32 v{t3}, 0xffff0000, v{t3}
        v_mul_f32 v{t0}, 0xbfb8aa3b, v{t2}
        v_exp_f32 v{t0}, v{t0}
        v_add_f32 v{t0}, 1.0, v{t0}
        v_rcp_f32 v{t0}, v{t0}
        v_mul_f32 v{t2}, v{t2}, v{t0}""")
        self.bf16r(t2, t2)
        a(f"""v_mul_f32 v{t2}, v{t2}, v{t3}
        v_cvt_pk_bf16_f32 v{t2}, v{t2}, v{t2}
        v_mov_b32_dpp v{t3}, v{t2} row_ror:12 {DPP}
        v_perm_b32 v{HA}, v{t3}, v{t2}, s{sPHI}
        v_mov_b32_dpp v{HA + 1}, v{HA} row_ror:8 {DPP}""")
        self.matvec8(lambda t: f"v_mfma_f32_16x16x16_bf16 {vr(DR + 4 * t, 4)}, {vr(HA, 2)}, {vr(BD + 2 * t, 2)}, 0", DR, H0, sTA4,
                     after="s_mov_b32 exec_hi, 0")
        a(f"global_store_dwordx4 v{aCS}, {vr(H0, 4)}, {sp(WS)} sc1\ns_mov_b64 exec, -1")
        self.stamp(10)
        a("s_branch L_exit")

    def helper(self):
        a = self.a
        per_wg = self.code_bytes // 32
        a(f"""L_helper:
        s_getpc_b64 {sp(sCODE)}
        L_pc:
        s_sub_u32 s{sCODE}, s{sCODE}, L_pc-{NAME}_kernel
        s_subb_u32 s{sCODE + 1}, s{sCODE + 1}, 0
        s_mul_i32 s{sT0}, s{sJ}, {per_wg}
        v_lshl_add_u32 v{t2}, v{vL}, {(per_wg // 64).bit_length() - 1}, s{sT0}
        v_min_u32 v{t2}, L_code_end-{NAME}_kernel-4, v{t2}""")
        if self.codepf:
            a(f"global_load_dword v{RK}, v{t2}, {sp(sCODE)}")
        a(f"""s_waitcnt lgkmcnt(0)
        s_cmp_lt_u32 s{sJ}, 16
        s_cbranch_scc1 L_helper_l
        s_lshl_b32 s{sT0}, s{sG}, 7
        s_add_u32 s{sT0}, s{sT0}, {WS_HI}
        v_and_b32 v{t0}, 31, v{vL}
        v_lshl_add_u32 v{vB}, v{t0}, 2, s{sT0}
        s_and_b32 s{sJ}, s{sJ}, 15
        s_lshl_b32 s{sT0}, s{sG}, 13
        s_lshl_b32 s{sT1}, s{sJ}, 9
        s_add_u32 s{sT0}, s{sT0}, s{sT1}
        s_add_u32 s{sT0}, s{sT0}, {WS_QA}
        v_lshl_add_u32 v{t0}, v{vL}, 3, s{sT0}
        s_lshl_b32 s{sT1}, s{sJ}, 7
        s_lshl_b32 s{sT0}, s{sG}, 16
        s_add_u32 s{sT0}, s{sT0}, s{sT1}
        s_add_u32 s{sT0}, s{sT0}, {WS_A1}
        v_lshrrev_b32 v{t1}, 3, v{vL}
        v_lshlrev_b32 v{t1}, 11, v{t1}
        v_and_b32 v{t2}, 7, v{vL}
        v_lshl_add_u32 v{t1}, v{t2}, 4, v{t1}
        v_add_u32 v{t1}, s{sT0}, v{t1}
        s_lshl_b32 s{sT0}, s{sG}, 11
        s_lshl_b32 s{sT1}, s{sJ}, 7
        s_add_u32 s{sT0}, s{sT0}, s{sT1}
        s_add_u32 s{sT0}, s{sT0}, {WS_ML}
        v_lshl_add_u32 v{t2}, v{vN}, 3, s{sT0}
        s_barrier
        global_load_dword v{RK + 21}, v{vB}, {sp(WS)}
        global_load_dword v{RK + 1}, v{t0}, {sp(WS)}""")
        for i in range(4):
            a(f"global_load_dwordx4 {vr(RK + 4 + 4 * i, 4)}, v{t1}, {sp(WS)}")
            if i < 3:
                a(f"v_add_u32 v{t1}, 0x4000, v{t1}")
        a(f"""global_load_dword v{RK + 2}, v{t2}, {sp(WS)}
        s_endpgm
        L_helper_l:
        v_mov_b32 v{t0}, {WS_QB}
        s_barrier""")
        if self.qtouch:
            a(f"""s_lshl_b32 s{sT0}, s{sG}, 24
            s_add_u32 s{sT0}, s{sT0}, 0xF00000
            v_mov_b32 v{t3}, s{sT0}
            global_load_dword v{RK + 8}, v{t3}, {sp(KP)}{self.nt}
            global_load_dword v{RK + 1}, v{t0}, {sp(WS)} sc1
            global_load_dword v{RK + 9}, v{t3}, {sp(VP)}{self.nt}""")
        a("s_endpgm")

    def exit(self):
        a = self.a
        a("L_exit:")
        if self.leak[0] >= 0:
            self.stamp(14)
            a(f"""s_lshl_b32 s{sT0}, s2, 2
            s_add_u32 s{sT0}, s{sT0}, s{sW}
            s_cmp_lg_u32 s{sT0}, {self.leak[0] * 4}
            s_cbranch_scc1 L_end
            s_memrealtime {sp(ST0 + 4)}
            s_waitcnt lgkmcnt(0)
            s_sub_u32 s{sT0}, s{ST0 + 2}, s{ST0}""")
            if self.leak[3] == 1:
                a(f"s_mul_i32 s{sT0}, s{sT0}, 2731\ns_lshr_b32 s{sT0}, s{sT0}, 16")
            if self.leak[3] >= 2:
                a(f"""s_mov_b64 exec, -1
                v_and_b32 v{t0}, 7, v{vL}
                v_lshlrev_b32 v{t0}, 7, v{t0}
                v_add_u32 v{t0}, {WS_ST}, v{t0}
                global_load_dword v{t1}, v{t0}, {sp(WS)} sc1
                s_waitcnt vmcnt(0)
                v_subrev_u32 v{t1}, s{ST0}, v{t1}
                v_add_u32 v{t1}, 1000, v{t1}
                s_nop 1
                v_readlane_b32 s{sT0}, v{t1}, 0
                s_mov_b32 s{sT1}, s{sT0}""")
                for i in range(1, 8):
                    a(f"v_readlane_b32 s{sT2}, v{t1}, {i}\ns_nop 1\ns_max_u32 s{sT0}, s{sT0}, s{sT2}\ns_min_u32 s{sT1}, s{sT1}, s{sT2}")
                a(f"s_sub_u32 s{sT0}, s{sT0}, s{sT1}" if self.leak[3] == 2 else f"s_sub_u32 s{sT0}, 1000, s{sT1}")
            a(f"""s_min_u32 s{sT0}, s{sT0}, 5000
            s_mul_i32 s{sT0}, s{sT0}, 10
            s_add_u32 s{sT0}, s{sT0}, 2000
            L_leak:
            s_memrealtime {sp(ST0 + 6)}
            s_waitcnt lgkmcnt(0)
            s_sub_u32 s{sT1}, s{ST0 + 6}, s{ST0 + 4}
            s_cmp_lt_u32 s{sT1}, s{sT0}
            s_cbranch_scc1 L_leak""")
        if self.prof:
            self.stamp(14)
            a(f"""s_memrealtime {sp(ST0 + 32)}
            s_mov_b64 exec, 1
            s_lshl_b32 s{sT0}, s2, 2
            s_add_u32 s{sT0}, s{sT0}, s{sW}
            s_lshl_b32 s{sT0}, s{sT0}, 7
            s_add_u32 s{sT0}, s{sT0}, {WS_ST}
            v_mov_b32 v{t0}, s{sT0}
            s_waitcnt lgkmcnt(0)""")
            for k in (range(17) if self.prof == 1 else (15, 16)):
                a(f"v_mov_b32 v{t1}, s{ST0 + 2 * k}\nglobal_store_dword v{t0}, v{t1}, {sp(WS)} offset:{4 * k}")
            a(f"v_mov_b32 v{t1}, s{sFAST}\nglobal_store_dword v{t0}, v{t1}, {sp(WS)} offset:68")
            a(f"v_mov_b32 v{t1}, s{sQN}\nglobal_store_dword v{t0}, v{t1}, {sp(WS)} offset:72")
            a(f"v_mov_b32 v{t1}, s{sSPIN}\nglobal_store_dword v{t0}, v{t1}, {sp(WS)} offset:76")
        a("L_end:\ns_endpgm")

    def build(self):
        head = open("cdna_kernels/" + NAME + ".s.ref").read().split("; Override launch")[0]
        if self.prof == 1:
            for k in range(17):
                self.a(f"s_mov_b32 s{ST0 + 2 * k}, 0")
        self.prologue()
        self.h_issue()
        self.l_issue()
        self.l_rest()
        self.attention("l", self.nl, 0, self.lw - self.lp, self.ul)
        self.w_tail()
        done = self.h_rest()
        self.attention("h", self.nh, done, 0, self.uh - 4 * self.nh + 4)
        self.f_tail()
        self.exit()
        self.helper()
        for c in self.cold:
            self.a(c)
        self.a("L_code_end:")
        padded = pad(self.L)
        for p in check_branches(padded):
            print("HAZARD", p, file=sys.stderr)
        body = "\n".join(padded)
        doc = """; One launch, 256 workgroups of 4 + 1 waves, all resident. Group g = id & 7 owns kv head g; inside it the
"""
        return f"""{head}{doc}; @launch grid=(256,1,1) block=(320,1,1) lds={LDS_BASE + 16384 * self.nh}
.amdgcn_target "amdgcn-amd-amdhsa--gfx950"
.text
.globl {NAME}_kernel
.p2align 8
.type {NAME}_kernel,@function
{NAME}_kernel:
{body}
.section .rodata,"a"
.p2align 6
.amdhsa_kernel {NAME}_kernel
  .amdhsa_next_free_vgpr {NVGPR}
  .amdhsa_next_free_sgpr 102
  .amdhsa_accum_offset {NVGPR}
  .amdhsa_group_segment_fixed_size 0
  .amdhsa_kernarg_size 96
  .amdhsa_user_sgpr_count 2
  .amdhsa_user_sgpr_kernarg_segment_ptr 1
  .amdhsa_system_sgpr_workgroup_id_x 1
.end_amdhsa_kernel
"""


if __name__ == "__main__":
    out = sys.argv[1]
    kw = {}
    for arg in sys.argv[2:]:
        k, v = arg.split("=")
        kw[k] = int(v)
    open(out, "w").write(Gen(**kw).build())
```

```python
import sys
from asmlib import check_branches, pad

NAME = "sequential_preLN__sliding_block_cached__swiglu_ffn__decode"

WS_HI, WS_ML, WS_B2A, WS_A1, WS_C, WS_QA, WS_QB, WS_E, WS_ST = 0x1000, 0x2000, 0x8000, 0x10000, 0x100000, 0xD0000, 0xE0000, 0xF0000, 0x180000
WS_FL = 0xC8000
L_QS, L_MX, L_OK, L_OV, L_HV, L_QP = 0, 1024, 1536, 1664, 1792, 4096
L_OR, OR_PLANE = 4096, 68
OR_STRIDE = 8 * 4 * OR_PLANE
L_G, L_U, L_K = 16384, 32768, 16384
LDS_BASE = 16384

sW, sG, sJ, sE, sXCC, sHX, sFAST = 3, 28, 29, 30, 31, 32, 33
sTA4, sTA2, sTB4, sTH4 = 34, 35, 36, 37
sSLO, sSHI, sPLO, sPHI = 38, 39, 40, 41
sM = [42, 44, 46, 48]
sG1 = 50
sQP = 52
sT0, sT1, sT2, sT3 = 54, 55, 56, 57
sQN, sSPIN = 59, 60
sA1G, sF, sKQ, sKM = 58, 58, 61, 98
sCM = 24
sCODE = 62
ST0 = 64
X, KP, VP, WQ, WO, GA, UP, DN, OUT, DBG, WS = 4, 6, 8, 10, 12, 16, 18, 20, 22, 24, 26
KB, VB = [KP, 0, 14, 10], [VP, 62, 100, 12]
REGION = 1 << 16

vL, vK, vV, vN, vGp, vSEL, vQ = 0, 1, 2, 3, 4, 5, 6
vA, vB, vC, vD, vXH = 7, 8, 9, 10, 11
t0, t1, t2, t3 = 12, 13, 14, 15
RK, RV, RB, RA, RD, RP, RX = 16, 80, 144, 176, 192, 208, 216
RW, RWB, RWD = RV + 16, RK + 16, RB
RDN = RV + 48
vKD, vF, vHI, vHA, aOX, aMR = 228, 232, 236, 237, 253, 254
aKR, aQW, aQR, aMW, aOW, aOR, aA1, aML, aFG, aFD, aTR, aHP, aES, aEG, aCS = range(238, 253)
aWO, aMG, aAG, aVW, aVR, aB1, aBG, aB2, aHG, aHB, aHW, aC0, aC1, aHR, aOut = range(RV + 48, RV + 63)
NVGPR = 256
LOG2E = "0x3fb8aa3b"
DPP = "row_mask:0xf bank_mask:0xf"
TILE = 4 << 16


def sp(r):
    return f"s[{r}:{r + 1}]"


def vr(r, n):
    return f"v[{r}:{r + n - 1}]"


class Gen:
    def __init__(self, prof=0, nt=1, qa_tries=24, d_b1=0, d_b2a=12, d_c=19, d_e=0, force_slow=0, code_bytes=16384,
                 codepf=1, qtouch=1, fine=0, leak_wg=-1, leak_a=0, leak_b=14, leak_clk=0,
                 uh=12, depth=8, d0=8, hq_at=8, hq_wait=5, lw=8, lp=2, ciod=1, biod=1, lfast=0, d_q=2, d_cl=0, wprime=1, flag=0, d_fl=0, qb_late=1, out_pw=0, out_sc=0, ctrig=2, only=0, b2pw=0, b2mask=0, align=0, jitter=0, dn_early=0):
        self.L, self.cold = [], []
        self.prof, self.fine, self.nt = prof, fine, " nt" if nt else ""
        self.qa_tries, self.force_slow = qa_tries, force_slow
        self.d_b1, self.d_b2a, self.d_c, self.d_e = d_b1, d_b2a, d_c, d_e
        self.code_bytes, self.codepf, self.qtouch = code_bytes, codepf, qtouch
        self.leak = (leak_wg, leak_a, leak_b, leak_clk)
        assert uh == 12
        self.uh, self.ul, self.nh, self.nl = uh, 16 - uh, (uh + 3) // 4, 1
        self.depth, self.hq_at, self.hq_wait, self.lw = depth, hq_at, hq_wait, lw
        self.gap, self.d0, self.lp = 0, d0, lp
        self.ciod, self.biod, self.lfast, self.d_q = ciod, biod, lfast, d_q
        self.align, self.jitter, self.nj, self.dn_early = align, jitter, 0, dn_early
        self.ctrig, self.only, self.b2pw, self.b2mask = ctrig, only, b2pw, b2mask
        self.qb_late, self.out_pw, self.out_sc = qb_late, out_pw, out_sc
        self.d_cl, self.wprime, self.flag, self.d_fl = d_cl, wprime, flag, d_fl

    def a(self, s):
        for ln in s.strip("\n").split("\n"):
            ln = ln.strip()
            if ln:
                self.L.append(ln if ln.endswith(":") or ln.startswith(".") or ln.startswith(";") else "  " + ln)

    def stamp(self, k, early=False):
        if k in (0, 1, 3, 4, 5, 6, 7, 8, 9, 10, 11, 12) and not early:
            self.shake()
        if self.fine and 8 <= k <= 13 and not early:
            return
        if self.prof == 1 and (not self.only or self.only >> k & 1 or k in (0, 14)):
            self.a(f"s_memtime {sp(ST0 + 2 * k)}")
        if self.leak[0] >= 0 and k in self.leak[1:3]:
            self.a(f"{'s_memtime' if self.leak[3] == 1 else 's_memrealtime'} {sp(ST0 + (0 if k == self.leak[1] else 2))}")

    def shake(self):
        if not self.jitter:
            return
        self.nj += 1
        self.a(f"""s_memtime s[90:91]
        s_waitcnt lgkmcnt(0)
        s_lshr_b32 s91, s90, 3
        s_xor_b32 s90, s90, s91
        s_lshr_b32 s91, s90, 7
        s_xor_b32 s90, s90, s91
        s_and_b32 s91, s90, {self.jitter - 1}
        s_cmp_lg_u32 s91, 0
        s_cbranch_scc1 L_shake{self.nj}
        s_sleep 127
        s_bitcmp1_b32 s90, 9
        s_cbranch_scc1 L_shake{self.nj}
        s_sleep 127
        s_sleep 127
        L_shake{self.nj}:""")

    def fstamp(self, k):
        if self.fine:
            self.stamp(k, True)

    def sleep(self, n):
        if n:
            self.a(f"s_sleep {n}")

    def spin(self):
        self.a(f"s_sub_u32 s{sSPIN}, s{sSPIN}, 1\ns_cbranch_scc1 L_exit")

    def check4(self, r, tag, dst="vcc"):
        self.a(f"""v_perm_b32 v{t0}, v{r + 1}, v{r}, s{sSLO}
        v_perm_b32 v{t1}, v{r + 3}, v{r + 2}, s{sSHI}
        v_or_b32 v{t0}, v{t0}, v{t1}
        v_cmp_ne_u32 {dst}, s{tag}, v{t0}""")

    def tag(self, dst, src, tag):
        self.a(f"v_perm_b32 v{dst}, v{src}, s{tag}, v{vSEL}")

    def pub_cmp(self):
        self.a(f"s_cmp_eq_u32 s{sFAST}, 0")

    def pub(self, name, store, cmp=True):
        if cmp:
            self.pub_cmp()
        self.a(f"s_cbranch_scc1 L_slow_{name}\n{store}\nL_back_{name}:")
        self.cold.append(f"L_slow_{name}:\n{store} sc1\ns_branch L_back_{name}")

    def poll(self, name, loads, tag, dst, depth, slots, primed=False):
        a, n = self.a, len(loads)

        def issue(k):
            for i, ld in enumerate(loads):
                a(ld.format(vr(slots[k] + 4 * i, 4)))

        def test(k, younger):
            for i in range(n):
                a(f"s_waitcnt vmcnt({younger + n - 1 - i})")
                self.check4(slots[k] + 4 * i, tag, "vcc" if i == n - 1 else sp(sT2))
                for e in range(4):
                    a(f"v_and_b32 v{dst + 4 * i + e}, 0xffffff00, v{slots[k] + 4 * i + e}")
            if n > 1:
                a(f"s_or_b64 vcc, vcc, {sp(sT2)}")
        if depth == 1:
            if primed:
                a(f"s_branch L_{name}_w")
            a(f"L_{name}:")
            issue(0)
            self.spin()
            if primed:
                a(f"L_{name}_w:")
            test(0, 0)
            a(f"s_cbranch_vccnz L_{name}")
            return
        for k in range(1 if primed else 0, depth - 1):
            issue(k)
            self.sleep(self.gap)
        a(f"L_{name}:")
        for k in range(depth):
            issue((k + depth - 1) % depth)
            if k == 0:
                self.spin()
            test(k, (depth - 1) * n)
            a(f"s_cbranch_vccz L_{name}_ok" if k < depth - 1 else f"s_cbranch_vccnz L_{name}")
        a(f"L_{name}_ok:")

    def bf16r(self, dst, src):
        self.a(f"v_cvt_pk_bf16_f32 v{dst}, v{src}, v{src}\nv_and_b32 v{dst}, 0xffff0000, v{dst}")

    def allred(self, r, op, rors=(8, 4, 2, 1), tmp=t3):
        for k in rors:
            self.a(f"{op}_dpp v{r}, v{r}, v{r} row_ror:{k} {DPP}")
        for sw in ("v_permlane16_swap_b32", "v_permlane32_swap_b32"):
            self.a(f"v_mov_b32 v{tmp}, v{r}\n{sw} v{r}, v{tmp}\n{op} v{r}, v{r}, v{tmp}")

    def rs4(self, r):
        self.a(f"""v_permlane32_swap_b32 v{r}, v{r + 2}
        v_permlane32_swap_b32 v{r + 1}, v{r + 3}
        v_add_f32 v{r}, v{r}, v{r + 2}
        v_add_f32 v{r + 1}, v{r + 1}, v{r + 3}
        v_permlane16_swap_b32 v{r}, v{r + 1}
        v_add_f32 v{r}, v{r}, v{r + 1}""")

    def matvec8(self, mf, D, out, tag, after=None):
        order = [0, 4, 1, 5, 2, 6, 3, 7]
        sel = [f"v_cndmask_b32 v{out + i}, v{D + 4 * i}, v{D + 16 + 4 * i}, {sp(sG1)}" for i in range(4)]
        for t in order:
            self.a(mf(t))
        if after:
            self.a(after)
        for i in range(4):
            self.a(sel[i])
            if i:
                self.tag(out + i - 1, out + i - 1, tag)
        self.tag(out + 3, out + 3, tag)

    def ln_scale(self, mean, var, tmp):
        self.a(f"v_cvt_pk_bf16_f32 v{tmp}, v{mean}, v{var}")
        self.a(f"v_lshlrev_b32 v{mean}, 16, v{tmp}\nv_and_b32 v{var}, 0xffff0000, v{tmp}")
        self.a(f"v_add_f32 v{var}, 0x3727c5ac, v{var}")
        self.bf16r(var, var)
        self.a(f"v_sqrt_f32 v{var}, v{var}")
        self.bf16r(var, var)

    def perm_pair(self, src0, src1, dst, stride, slot):
        for dd in range(4):
            self.a(f"v_perm_b32 v{dst + stride * (2 * dd) + slot}, v{src1 + dd}, v{src0 + dd}, s{sPLO}")
            self.a(f"v_perm_b32 v{dst + stride * (2 * dd + 1) + slot}, v{src1 + dd}, v{src0 + dd}, s{sPHI}")

    def consts(self):
        self.a('; constants: byte selectors for tag checks and bf16 packing, poll bound, census and query addresses')
        self.a(f"""s_mov_b32 s{sSLO}, 0x0c0c0400
        s_mov_b32 s{sSHI}, 0x04000c0c
        s_mov_b32 s{sPLO}, 0x05040100
        s_mov_b32 s{sPHI}, 0x07060302
        s_mov_b32 s{sG1}, 0xffff0000
        s_mov_b32 s{sG1 + 1}, 0xffff0000
        s_mov_b32 s{sSPIN}, 0x20000
        s_mov_b32 s{sQN}, 0
        s_mov_b32 s{sCM}, 2
        v_mov_b32 v{vSEL}, 0x07060500
        s_getreg_b32 s{sXCC}, hwreg(HW_REG_XCC_ID, 0, 4)
        s_lshl_b32 s{sT0}, s{sG}, 7
        s_add_u32 s{sT0}, s{sT0}, {WS_HI}
        v_lshl_add_u32 v{vHA}, v{vN}, 2, s{sT0}
        s_lshl_b32 s{sT0}, s{sG}, 13
        s_lshl_b32 s{sT1}, s{sW}, 10
        s_add_u32 s{sT0}, s{sT0}, s{sT1}
        s_add_u32 s{sT0}, s{sT0}, {WS_QA + 2048}
        v_lshl_add_u32 v{vQ}, v{vL}, 4, s{sT0}
        s_mov_b64 {sp(sQP)}, {sp(WS)}""")

    def addr_att(self, nt):
        self.a('; addresses of the attention stage (LDS images, (max,sum) record, partial-output record)')
        self.a(f"""v_xor_b32 v{t0}, v{vN}, v{vGp}
        v_lshlrev_b32 v{t0}, 4, v{t0}
        v_lshl_add_u32 v{t0}, v{vN}, 8, v{t0}
        s_mul_i32 s{sT0}, s{sW}, {4096 * nt}
        v_add_u32 v{aKR}, s{sT0}, v{t0}
        s_lshl_b32 s{sT0}, s{sW}, 8
        v_lshl_add_u32 v{aQW}, v{vL}, 2, s{sT0}
        v_lshrrev_b32 v{t0}, 2, v{vN}
        v_lshlrev_b32 v{t1}, 8, v{t0}
        v_lshl_add_u32 v{aQR}, v{vGp}, 4, v{t1}
        s_lshl_b32 s{sT1}, s{sW}, 3
        v_lshl_add_u32 v{aMW}, v{t0}, 5, s{sT1}
        s_mul_i32 s{sT1}, s{sW}, {OR_STRIDE}
        s_add_u32 s{sT1}, s{sT1}, {L_OR}
        v_lshl_add_u32 v{aOW}, v{vL}, 2, s{sT1}
        v_add_u32 v{aOX}, {16 * OR_PLANE}, v{aOW}
        s_lshl_b32 s{sT1}, s{sW}, 5
        v_mov_b32 v{aMR}, s{sT1}
        s_lshl_b32 s{sT1}, s{sW}, 6
        s_add_u32 s{sT1}, s{sT1}, {L_OR}
        v_and_b32 v{t0}, 0x3c, v{vL}
        v_add_u32 v{aOR}, s{sT1}, v{t0}
        v_and_b32 v{t0}, 3, v{vL}
        v_mul_u32_u24 v{t0}, {8 * OR_PLANE}, v{t0}
        v_add_u32 v{aOR}, v{t0}, v{aOR}
        v_add_u32 v{RD + 13}, {OR_STRIDE}, v{aOR}
        v_add_u32 v{RD + 14}, {2 * OR_STRIDE}, v{aOR}
        v_add_u32 v{RD + 15}, {3 * OR_STRIDE}, v{aOR}
        s_lshl_b32 s{sT0}, s{sG}, 16
        s_lshl_b32 s{sT1}, s{sJ}, 11
        s_add_u32 s{sT0}, s{sT0}, s{sT1}
        s_lshl_b32 s{sT1}, s{sW}, 9
        s_add_u32 s{sT0}, s{sT0}, s{sT1}
        s_add_u32 s{sT0}, s{sT0}, {WS_A1}
        v_lshl_add_u32 v{aA1}, v{vL}, 3, s{sT0}
        s_lshl_b32 s{sT0}, s{sG}, 11
        s_lshl_b32 s{sT1}, s{sJ}, 6
        s_add_u32 s{sT0}, s{sT0}, s{sT1}
        s_lshl_b32 s{sT1}, s{sW}, 4
        s_add_u32 s{sT0}, s{sT0}, s{sT1}
        s_add_u32 s{sT0}, s{sT0}, {WS_ML}
        v_mov_b32 v{aML}, s{sT0}""")

    def addr_w(self):
        self.a('; addresses of the output projection, the two reductions of its result and the final stage')
        self.a(f"""s_lshl_b32 s{sT0}, s{sG}, 19
        s_lshl_b32 s{sT1}, s{sJ}, 15
        s_add_u32 s{sT0}, s{sT0}, s{sT1}
        s_lshl_b32 s{sT1}, s{sW}, 8
        s_add_u32 s{sT0}, s{sT0}, s{sT1}
        s_add_u32 s{sT0}, s{sT0}, 4096
        v_lshlrev_b32 v{t0}, 13, v{vGp}
        v_lshl_add_u32 v{t0}, v{vN}, 4, v{t0}
        v_add_u32 v{aWO}, s{sT0}, v{t0}
        v_lshrrev_b32 v{t0}, 1, v{vL}
        s_lshl_b32 s{sT0}, s{sG}, 11
        s_lshr_b32 s{sT1}, s{sJ}, 2
        s_lshl_b32 s{sT1}, s{sT1}, 4
        s_add_u32 s{sT0}, s{sT0}, s{sT1}
        s_add_u32 s{sT0}, s{sT0}, {WS_ML}
        v_lshl_add_u32 v{aMG}, v{t0}, 6, s{sT0}
        s_lshl_b32 s{sA1G}, s{sG}, 16
        s_add_u32 s{sA1G}, s{sA1G}, {WS_A1}
        s_lshl_b32 s{sT1}, s{sJ}, 7
        s_add_u32 s{sT2}, s{sA1G}, s{sT1}
        s_lshl_b32 s{sT1}, s{sW}, 5
        s_add_u32 s{sT0}, s{sT2}, s{sT1}
        v_lshlrev_b32 v{aAG}, 11, v{t0}
        v_and_b32 v{t1}, 1, v{vL}
        v_lshl_add_u32 v{aAG}, v{t1}, 4, v{aAG}
        v_add_u32 v{aAG}, s{sT0}, v{aAG}
        v_lshlrev_b32 v{aVW}, 3, v{t1}
        v_lshl_add_u32 v{aVW}, v{vGp}, 1, v{aVW}
        s_lshl_b32 s{sT1}, s{sW}, 4
        v_add_u32 v{aVW}, s{sT1}, v{aVW}
        v_lshlrev_b32 v{aVR}, 4, v{vGp}
        v_lshrrev_b32 v{t0}, 2, v{vN}
        v_lshlrev_b32 v{aB1}, 11, v{t0}
        v_and_b32 v{t0}, 3, v{vN}
        v_lshl_add_u32 v{aB1}, v{t0}, 5, v{aB1}
        v_and_b32 v{t0}, 1, v{vGp}
        v_lshl_add_u32 v{aB1}, v{t0}, 4, v{aB1}
        s_lshl_b32 s{sT1}, s{sW}, 13
        s_add_u32 s{sT0}, s{sT2}, s{sT1}
        v_add_u32 v{aB1}, s{sT0}, v{aB1}
        s_add_u32 s{sT2}, s{sT2}, {16 * 2048}
        v_lshl_add_u32 v{aHB}, v{vD}, 2, s{sT2}
        v_lshlrev_b32 v{aHW}, 2, v{vD}
        s_lshl_b32 s{sT1}, s{sJ}, 11
        s_add_u32 s{sT0}, s{sA1G}, s{sT1}
        v_lshl_add_u32 v{aBG}, v{vL}, 4, s{sT0}
        v_and_b32 v{t0}, 7, v{vL}
        v_lshlrev_b32 v{aB2}, 2, v{t0}
        v_lshl_add_u32 v{aB2}, v{vGp}, 5, v{aB2}
        v_bfe_u32 v{t1}, v{vL}, 3, {1 if self.biod else 0}
        v_lshl_add_u32 v{aB2}, v{t1}, 13, v{aB2}
        s_and_b32 s{sT0}, s{sG}, 4
        s_add_u32 s{sT0}, s{sT0}, s{sG}
        s_lshl_b32 s{sT0}, s{sT0}, 11
        s_lshl_b32 s{sT1}, s{sJ}, 7
        s_add_u32 s{sT1}, s{sT1}, {WS_B2A}
        s_add_u32 s{sT0}, s{sT0}, s{sT1}
        v_add_u32 v{aB2}, s{sT0}, v{aB2}
        v_lshrrev_b32 v{aHG}, 3, v{vL}
        v_and_b32 v{t1}, 4, v{aHG}
        v_add_u32 v{aHG}, v{t1}, v{aHG}
        v_lshlrev_b32 v{aHG}, 11, v{aHG}
        v_lshl_add_u32 v{aHG}, v{t0}, 4, v{aHG}
        s_lshr_b32 s{sT0}, s{sG}, 2
        s_mul_i32 s{sT0}, s{sT0}, {0x2000 if self.biod else 0}
        s_add_u32 s{sT1}, s{sT1}, s{sT0}
        v_add_u32 v{aHG}, s{sT1}, v{aHG}
        s_lshl_b32 s{sT0}, s{sG}, 9
        s_lshl_b32 s{sT1}, s{sJ}, 5
        s_add_u32 s{sT0}, s{sT0}, s{sT1}
        s_lshl_b32 s{sT1}, s{sW}, 4
        s_add_u32 s{sT0}, s{sT0}, s{sT1}
        s_add_u32 s{sT0}, s{sT0}, {WS_C}
        v_min_u32 v{aC1}, 47, v{vL}""")
        for r, src in ((aC0, vL), (aC1, aC1)):
            if self.ciod:
                self.a(f"""v_and_b32 v{t0}, 0x3c, v{src}
                v_add_u32 v{r}, v{t0}, v{src}
                v_lshlrev_b32 v{r}, 11, v{r}""")
            else:
                self.a(f"v_lshlrev_b32 v{r}, 11, v{src}")
        self.a(f"""v_add_u32 v{aC0}, s{sT0}, v{aC0}
        s_add_u32 s{sT0}, s{sT0}, {64 * 2048 * (2 if self.ciod else 1)}
        v_add_u32 v{aC1}, s{sT0}, v{aC1}
        s_lshl_b32 s{sT0}, s{sG}, 3
        s_lshl_b32 s{sT1}, s{sW}, 2
        s_add_u32 s{sT0}, s{sT0}, s{sT1}
        v_add_u32 v{t2}, s{sT0}, v{vGp}
        v_lshlrev_b32 v{aHR}, 2, v{t2}
        s_lshl_b32 s{sT1}, s{sJ}, 6
        v_lshl_add_u32 v{aOut}, v{t2}, 1, s{sT1}""")

    def addr_f(self):
        self.a('; addresses of the feed-forward stage: f = 16g + j - 16 owns hidden columns 16f..16f+15 and,')
        self.a(f"""s_lshl_b32 s{sF}, s{sG}, 4
        s_add_u32 s{sF}, s{sF}, s{sJ}
        s_sub_u32 s{sF}, s{sF}, 16
        s_and_b32 s{sKQ}, s{sF}, 3
        s_lshl_b32 s{sT0}, s{sKQ}, 2
        s_add_u32 s{sT0}, s{sT0}, s{sW}
        s_mul_i32 s{sT0}, s{sT0}, {32 * 3584}
        s_lshr_b32 s{sT1}, s{sF}, 2
        s_lshl_b32 s{sT1}, s{sT1}, 7
        s_add_u32 s{sT0}, s{sT0}, s{sT1}
        v_lshrrev_b32 v{t0}, 3, v{vL}
        v_mul_u32_u24 v{t0}, 3584, v{t0}
        v_and_b32 v{t1}, 7, v{vL}
        v_lshl_add_u32 v{t0}, v{t1}, 4, v{t0}
        v_add_u32 v{aFG}, s{sT0}, v{t0}
        s_lshl_b32 s{sT0}, s{sF}, 14
        s_lshl_b32 s{sT1}, s{sW}, 8
        s_add_u32 s{sT0}, s{sT0}, s{sT1}
        v_lshlrev_b32 v{t0}, 12, v{vGp}
        v_lshl_add_u32 v{t0}, v{vN}, 4, v{t0}
        v_add_u32 v{aFD}, s{sT0}, v{t0}
        v_lshrrev_b32 v{t0}, 2, v{vN}
        v_and_b32 v{t1}, 3, v{vL}
        v_lshlrev_b32 v{aTR}, 11, v{vGp}
        v_lshl_add_u32 v{aTR}, v{t0}, 7, v{aTR}
        v_lshl_add_u32 v{aTR}, v{t1}, 3, v{aTR}
        s_lshl_b32 s{sT0}, s{sW}, 5
        v_add_u32 v{aTR}, s{sT0}, v{aTR}
        v_lshlrev_b32 v{aHP}, 9, v{t0}
        v_lshl_add_u32 v{aHP}, v{vGp}, 6, v{aHP}
        v_lshl_add_u32 v{aHP}, v{t1}, 4, v{aHP}
        s_lshl_b32 s{sT0}, s{sG}, 16
        s_add_u32 s{sT0}, s{sT0}, {WS_A1 + 16 * 2048}
        v_add_u32 v{aHP}, s{sT0}, v{aHP}
        s_and_b32 s{sT0}, s{sF}, 0xfc
        s_add_u32 s{sT0}, s{sT0}, s{sW}
        s_lshl_b32 s{sT0}, s{sT0}, 9
        s_lshl_b32 s{sT1}, s{sKQ}, 3
        s_add_u32 s{sT0}, s{sT0}, s{sT1}
        s_add_u32 s{sT0}, s{sT0}, {WS_E}
        v_lshl_add_u32 v{aES}, v{vN}, 5, s{sT0}
        s_lshl_b32 s{sT0}, s{sF}, 9
        s_add_u32 s{sT0}, s{sT0}, {WS_E}
        v_lshrrev_b32 v{t2}, 2, v{vL}
        v_lshl_add_u32 v{aEG}, v{t2}, 5, s{sT0}
        v_and_b32 v{t2}, 1, v{vL}
        v_lshl_add_u32 v{aEG}, v{t2}, 4, v{aEG}
        v_lshlrev_b32 v{aCS}, 9, v{t1}
        v_lshl_add_u32 v{aCS}, v{t0}, 5, v{aCS}
        v_and_b32 v{t1}, 1, v{vGp}
        v_lshl_add_u32 v{aCS}, v{t1}, 4, v{aCS}
        s_and_b32 s{sT0}, s{sF}, {0xfc if self.ciod else 0}
        s_add_u32 s{sT0}, s{sT0}, s{sF}
        s_lshl_b32 s{sT0}, s{sT0}, 11
        s_lshl_b32 s{sT1}, s{sW}, 7
        s_add_u32 s{sT0}, s{sT0}, s{sT1}
        s_add_u32 s{sT0}, s{sT0}, {WS_C}
        v_add_u32 v{aCS}, s{sT0}, v{aCS}
        s_lshl_b32 s{sT0}, s{sKQ}, 4
        s_mov_b64 {sp(sKM)}, 0xffff
        s_lshl_b64 {sp(sKM)}, {sp(sKM)}, s{sT0}""")

    def tags(self):
        self.a("; this launch's tags: epoch word + 1 (full word, low byte and two variants of it, census word)")
        self.a(f"""s_add_u32 s{sE}, s{sE}, 1
        s_and_b32 s{sT0}, s{sE}, 0xff
        s_mul_i32 s{sTA4}, s{sT0}, 0x01010101
        s_xor_b32 s{sTB4}, s{sTA4}, 0x40404040
        s_xor_b32 s{sTH4}, s{sTA4}, 0x80808080
        s_lshl_b32 s{sHX}, s{sE}, 4
        s_or_b32 s{sHX}, s{sHX}, s{sXCC}""")

    def census_load(self, off):
        self.a(f"global_load_dword v{vHI}, v{vHA}, {sp(WS)} offset:{off} sc1")

    def census_eval(self, keep=False):
        if self.force_slow:
            self.a(f"s_mov_b32 s{sFAST}, 0")
        else:
            self.a(f"v_cmp_ne_u32 vcc, s{sHX}, v{vHI}\ns_cmp_eq_u64 vcc, 0\ns_cselect_b32 s{sFAST}, {f's{sFAST}' if keep else 1}, 0")

    def kload(self, i):
        self.a(f"s_add_u32 m0, s{sT3}, {L_K + 1024 * i}\nglobal_load_lds_dwordx4 v{vKD + i % 4}, {sp(KB[i // 4])}{self.nt}")

    def live(self, groups):
        m = (1 << 16 * groups) - 1
        self.a(f"s_mov_b32 exec_lo, {hex(m & 0xffffffff)}\ns_mov_b32 exec_hi, {hex(m >> 32)}")

    def vload(self, i):
        self.a(f"global_load_dwordx4 {vr(RV + 4 * i, 4)}, v{vV}, {sp(VB[i // 4])} offset:{256 * (i % 4)}{self.nt}")

    def vload_last(self, nt, groups):
        if groups < 4:
            self.live(groups)
        for i in range(4 * nt - 4, 4 * nt):
            self.vload(i)
        if groups < 4:
            self.a("s_mov_b64 exec, -1")

    def vzero(self, nt):
        if self.uh % 4 == 0:
            return
        for r in range(RV + 16 * nt - 16, RV + 16 * nt):
            self.a(f"v_mov_b32 v{r}, 0")

    def tile_bases(self, nt, ptrs):
        for tau in range(1, nt):
            self.a(f"s_add_u32 s{ptrs[tau]}, s{ptrs[0]}, {tau * TILE}\ns_addc_u32 s{ptrs[tau] + 1}, s{ptrs[0] + 1}, 0")

    def kreads(self, nt):
        for s in range(4):
            if s:
                self.a(f"v_xor_b32 v{t1}, {64 * s}, v{aKR}")
            for tau in range(nt):
                self.a(f"ds_read_b128 {vr(RK + 16 * tau + 4 * s, 4)}, v{t1 if s else aKR} offset:{L_K + 4096 * tau}")

    def vperm(self, p, nt):
        if nt == 1:
            self.perm_pair(RV + 8 * p, RV + 8 * p + 4, RB, 2, p)
        elif nt == 3 and p >= 4:
            self.perm_pair(RV + 8 * p, RV + 8 * p + 4, RV, 2, p - 4)
        else:
            self.perm_pair(RV + 8 * p, RV + 8 * p + 4, RB if p < 4 else RV, 4, p % 4)

    def wo_load(self, jj):
        self.a(f"global_load_dwordx4 {vr(RW + 4 * jj, 4)}, v{aWO}, {sp(WO)} offset:{1024 * jj - 4096}{self.nt}")

    def qloads(self, base):
        self.a(f"global_load_dwordx4 {vr(RX, 4)}, v{vQ}, {sp(base)} offset:-2048 sc1")
        self.a(f"global_load_dwordx4 {vr(RX + 4, 4)}, v{vQ}, {sp(base)} offset:2048 sc1")

    def qstage(self):
        self.a(f"""v_add_f32 v{t0}, v{RX}, v{RX + 4}
        v_add_f32 v{t1}, v{RX + 2}, v{RX + 6}
        v_cvt_pk_bf16_f32 v{t0}, v{t0}, v{t1}
        ds_write_b32 v{aQW}, v{t0} offset:{L_QS}""")

    def qreads(self):
        for s in range(4):
            self.a(f"ds_read_b128 {vr(RA + 4 * s, 4)}, v{aQR} offset:{L_QS + 64 * s}")

    def qcheck(self):
        self.a(f"""v_xor_b32 v{t0}, s{sE}, v{RX + 1}
        v_xor_b32 v{t1}, s{sE}, v{RX + 3}
        v_xor_b32 v{t2}, s{sE}, v{RX + 5}
        v_xor_b32 v{t3}, s{sE}, v{RX + 7}
        v_or3_b32 v{t0}, v{t0}, v{t1}, v{t2}
        v_xor_b32 v{t1}, s{sHX}, v{vHI}
        v_or_b32 v{t0}, v{t0}, v{t3}
        v_lshrrev_b32 v{t1}, s{sCM}, v{t1}
        v_lshrrev_b32 v{t1}, s{sCM}, v{t1}
        v_or_b32 v{t0}, v{t0}, v{t1}
        v_cmp_ne_u32 vcc, 0, v{t0}""")

    def prologue(self):
        a = self.a
        if self.align:
            a(f"""s_memrealtime s[54:55]
            s_waitcnt lgkmcnt(0)
            s_add_u32 s56, s54, 1224
            s_and_b32 s56, s56, 0xfffffc00
            s_and_b32 s57, s2, 7
            s_mul_i32 s57, s57, 5
            s_and_b32 s57, s57, 7
            s_mul_i32 s57, s57, {self.align - 1}
            s_add_u32 s56, s56, s57
            L_align:
            s_memrealtime s[54:55]
            s_waitcnt lgkmcnt(0)
            s_sub_u32 s54, s54, s56
            s_cmp_lt_i32 s54, 0
            s_cbranch_scc1 L_align""")
        if self.prof:
            a(f"s_memrealtime {sp(ST0 + 30)}")
        self.stamp(0)
        a(f"""s_cmpk_ge_u32 s2, 0x100
        s_cbranch_scc1 L_end
        s_load_dwordx16 s[4:19], s[0:1], 0
        s_load_dwordx8 s[20:27], s[0:1], 64
        v_lshrrev_b32 v{t0}, 6, v0
        v_and_b32 v{vL}, 63, v0
        v_readfirstlane_b32 s{sW}, v{t0}
        s_and_b32 s{sG}, s2, 7
        s_lshr_b32 s{sJ}, s2, 3
        v_and_b32 v{vN}, 15, v{vL}
        v_lshrrev_b32 v{vGp}, 4, v{vL}
        s_lshl_b32 s{sT0}, s{sG}, 24
        s_and_b32 s{sT1}, s{sJ}, 15
        s_lshl_b32 s{sT1}, s{sT1}, 12
        s_add_u32 s{sT0}, s{sT0}, s{sT1}
        s_lshl_b32 s{sT1}, s{sW}, 10
        s_add_u32 s{sT0}, s{sT0}, s{sT1}
        s_cmp_lt_u32 s{sJ}, 16
        s_cselect_b32 s{sT1}, {self.uh * REGION}, 0
        s_add_u32 s{sT0}, s{sT0}, s{sT1}
        s_add_u32 s{sT0}, s{sT0}, 0xF00000
        v_xor_b32 v{t0}, v{vN}, v{vGp}
        v_lshlrev_b32 v{t0}, 4, v{t0}
        v_lshl_add_u32 v{t0}, v{vGp}, 8, v{t0}
        v_add_u32 v{vKD}, s{sT0}, v{t0}""")
        for i in range(1, 4):
            a(f"v_xor_b32 v{vKD + i}, {64 * i + (i << 16) + 0x2000 * (i & 1)}, v{vKD}")
        a(f"""v_lshlrev_b32 v{vV}, 16, v{vGp}
        v_lshl_add_u32 v{vV}, v{vN}, 4, v{vV}
        v_add_u32 v{vV}, s{sT0}, v{vV}
        v_lshlrev_b32 v{t0}, 9, v{vL}
        v_and_b32 v{t0}, 0x2000, v{t0}
        v_xor_b32 v{vV}, v{t0}, v{vV}
        s_cmp_eq_u32 s{sW}, 4
        s_cbranch_scc1 L_helper
        s_cmp_lt_u32 s{sJ}, 16
        s_cbranch_scc1 L_l_start""")

    def h_issue(self):
        a = self.a
        a(f"s_mul_i32 s{sT3}, s{sW}, {4096 * self.nh}\ns_waitcnt lgkmcnt(0)")
        for i in range(self.d0):
            if i == 4:
                self.tile_bases(self.nh, KB)
            self.kload(i)
        if self.d0 <= 4:
            self.tile_bases(self.nh, KB)
        a(f"s_load_dword s{sE}, {sp(WS)}, 0\ns_branch L_h_rest")

    def h_rest(self):
        a, n, d, at = self.a, self.uh, self.depth, self.hq_at
        nv = 4 * self.nh
        assert at <= nv - 4
        a("L_h_rest:\ns_barrier")
        self.stamp(1)
        self.tile_bases(self.nh, VB)
        self.consts()
        self.addr_att(self.nh)
        self.addr_f()
        self.vzero(self.nh)
        done = 0
        for i in range(self.d0, d):
            a(f"s_waitcnt vmcnt({self.d0 - 1 + (i - self.d0 + 1) // 2})")
            self.kload(i)
        for i in range(d, n + at):
            a(f"s_waitcnt vmcnt({d - 1})")
            if i == d:
                self.fstamp(8)
            self.kload(i) if i < n else self.vload(i - n)
            if i == n - 1:
                a("s_waitcnt lgkmcnt(0)")
                self.tags()
                a(f"""s_cmp_lg_u32 s{sW}, 3
                s_cbranch_scc1 L_h_census
                s_lshl_b32 s{sT0}, s{sG}, 7
                s_lshl_b32 s{sT1}, s{sJ}, 2
                s_add_u32 s{sT0}, s{sT0}, s{sT1}
                s_add_u32 s{sT0}, s{sT0}, {WS_HI}
                v_mov_b32 v{t0}, s{sT0}
                v_mov_b32 v{t1}, s{sHX}
                global_store_dword v{t0}, v{t1}, {sp(WS)}
                L_h_census:""")
            if i == n + d - 1:
                self.stamp(2)
                self.kreads(self.nh)
            while 2 * done + 1 <= i - d - n:
                self.vperm(done, self.nh)
                done += 1
        a(f"s_waitcnt vmcnt({self.hq_wait})\ns_barrier")
        self.fstamp(9)
        self.qloads(WS)
        self.census_load(0)
        a("s_barrier")
        for i in range(at, nv - 4):
            self.vload(i)
        self.vload_last(self.nh, n - (nv - 4))
        rest = nv - at
        if self.dn_early:
            a(f"s_barrier\ns_min_u32 s{sT0}, s{sG}, 6\ns_sub_u32 s{sT0}, s{sG}, s{sT0}\ns_lshl_b32 s{sT0}, s{sT0}, 18\nv_subrev_u32 v{aFD}, s{sT0}, v{aFD}")
            for jj in range(4):
                a(f"global_load_dwordx4 {vr(RDN + 4 * jj, 4)}, v{aFD}, {sp(DN)} offset:{1024 * jj}{self.nt}")
            rest += 4
        if at < d:
            a(f"s_waitcnt vmcnt({at + 3 + rest})")
            self.stamp(2)
            self.kreads(self.nh)
        while 2 * done + 1 < at:
            a(f"s_waitcnt vmcnt({at - 1 - (2 * done + 1) + 3 + rest})")
            self.vperm(done, self.nh)
            done += 1
        a(f"s_waitcnt vmcnt({rest})")
        self.stamp(3)
        self.qcheck()
        a("s_cbranch_vccz L_qok_h")
        return done

    def l_issue(self):
        a = self.a
        XA, XB = RA, RA + 4
        a("L_l_start:")
        a(f"""v_lshlrev_b32 v{t0}, 4, v{vL}
        v_lshrrev_b32 v{t2}, 3, v{vL}
        s_and_b32 s{sT2}, s{sJ}, 1
        s_lshl_b32 s{sT2}, s{sT2}, 2
        s_add_u32 s{sT2}, s{sT2}, s{sW}
        s_lshl_b32 s{sT0}, s{sT2}, 7
        v_lshl_add_u32 v{t1}, v{t2}, 4, s{sT0}
        s_lshl_b32 s{sT0}, s{sT2}, 19
        s_lshl_b32 s{sT1}, s{sG}, 10
        s_add_u32 s{sT0}, s{sT0}, s{sT1}
        s_bfe_u32 s{sT1}, s{sJ}, 0x30001
        s_lshl_b32 s{sT1}, s{sT1}, 7
        s_add_u32 s{sT0}, s{sT0}, s{sT1}
        v_lshlrev_b32 v{t2}, 16, v{t2}
        v_and_b32 v{t3}, 7, v{vL}
        v_lshl_add_u32 v{t2}, v{t3}, 4, v{t2}
        v_add_u32 v{t2}, s{sT0}, v{t2}
        """)
        a(f"""v_and_b32 v{t3}, 1, v{vL}
        v_lshlrev_b32 v{vD}, 4, v{t3}
        v_lshl_add_u32 v{vD}, v{vGp}, 2, v{vD}
        v_bfe_u32 v{t3}, v{vL}, 1, 2
        v_add_u32 v{vD}, v{t3}, v{vD}""")
        a(f"""
        s_lshl_b32 s{sT0}, s{sJ}, 6
        v_lshl_add_u32 v{t3}, v{vD}, 1, s{sT0}
        s_waitcnt lgkmcnt(0)""")
        a(f"""global_load_dwordx4 {vr(XA, 4)}, v{t0}, {sp(X)}
        global_load_dwordx4 {vr(XB, 4)}, v{t1}, {sp(X)}
        global_load_ushort v{vXH}, v{t3}, {sp(X)}""")
        for i in range(8):
            a(f"global_load_dwordx4 {vr(RW + 4 * i, 4)}, v{t2}, {sp(WQ)}{self.nt}")
            if i < 7:
                a(f"v_add_u32 v{t2}, 0x2000, v{t2}")
        a(f"s_load_dword s{sE}, {sp(WS)}, 0\ns_branch L_l_rest")

    def l_rest(self):
        a = self.a
        XA, XB, XF, ACC, XN = RA, RA + 4, RA + 8, RK + 16, RD
        RV = RW
        a("L_l_rest:\ns_barrier")
        self.stamp(1)
        self.consts()
        self.addr_att(self.nl)
        self.addr_w()
        self.vzero(self.nl)
        a("s_waitcnt vmcnt(8)")
        for i in range(4):
            a(f"v_lshlrev_b32 v{XF + 2 * i}, 16, v{XA + i}\nv_and_b32 v{XF + 2 * i + 1}, 0xffff0000, v{XA + i}")
        a(f"v_add_f32 v{t0}, v{XF}, v{XF + 1}")
        for i in range(2, 8):
            a(f"v_add_f32 v{t0}, v{t0}, v{XF + i}")
        self.allred(t0, "v_add_f32")
        a(f"v_mul_f32 v{t0}, 0x3b000000, v{t0}")
        for i in range(8):
            a(f"v_sub_f32 v{XF + i}, v{XF + i}, v{t0}")
        a(f"v_mul_f32 v{t1}, v{XF}, v{XF}")
        for i in range(1, 8):
            a(f"v_fmac_f32 v{t1}, v{XF + i}, v{XF + i}")
        self.allred(t1, "v_add_f32")
        a(f"v_mul_f32 v{t1}, 0x3b000000, v{t1}")
        self.ln_scale(t0, t1, t2)
        a(f"""v_rcp_f32 v{t2}, v{t1}
        v_fma_f32 v{t3}, -v{t1}, v{t2}, 1.0
        v_fmac_f32 v{t2}, v{t3}, v{t2}""")
        for i in range(4):
            a(f"v_lshlrev_b32 v{XF + 2 * i}, 16, v{XB + i}\nv_and_b32 v{XF + 2 * i + 1}, 0xffff0000, v{XB + i}")
        for i in range(8):
            a(f"v_sub_f32 v{XF + i}, v{XF + i}, v{t0}")
        for i in range(4):
            a(f"v_cvt_pk_bf16_f32 v{XB + i}, v{XF + 2 * i}, v{XF + 2 * i + 1}")
        for i in range(4):
            a(f"v_lshlrev_b32 v{XF + 2 * i}, 16, v{XB + i}\nv_and_b32 v{XF + 2 * i + 1}, 0xffff0000, v{XB + i}")
        for i in range(8):
            a(f"""v_mul_f32 v{ACC + i}, v{XF + i}, v{t2}
            v_fma_f32 v{XF + i}, -v{ACC + i}, v{t1}, v{XF + i}
            v_fmac_f32 v{ACC + i}, v{XF + i}, v{t2}""")
        for i in range(4):
            a(f"v_cvt_pk_bf16_f32 v{XN + i}, v{ACC + 2 * i}, v{ACC + 2 * i + 1}")
        for i in range(8):
            a(f"v_mov_b32 v{ACC + i}, 0")
        a(f"""v_and_b32 v{t0}, 7, v{vL}
        v_lshlrev_b32 v{t0}, 7, v{t0}
        v_lshl_add_u32 v{t0}, v{vGp}, 5, v{t0}
        s_lshl_b32 s{sT0}, s{sW}, 2
        s_add_u32 s{sT0}, s{sT0}, {L_QP}
        v_add_u32 v{vA}, s{sT0}, v{t0}
        v_lshlrev_b32 v{vB}, 4, v{vL}
        s_lshl_b32 s{sT0}, s{sG}, 13
        s_and_b32 s{sT1}, s{sJ}, 1
        s_lshl_b32 s{sT1}, s{sT1}, 12
        s_add_u32 s{sT0}, s{sT0}, s{sT1}
        s_bfe_u32 s{sT1}, s{sJ}, 0x30001
        s_lshl_b32 s{sT1}, s{sT1}, 9
        s_add_u32 s{sT0}, s{sT0}, s{sT1}
        s_add_u32 s{sT0}, s{sT0}, {WS_QA}
        v_lshl_add_u32 v{vC}, v{vL}, 3, s{sT0}""")
        a("s_waitcnt lgkmcnt(0)")
        self.tags()
        PR = RK + 24
        for p in range(4):
            a(f"s_waitcnt vmcnt({6 - 2 * p})")
            if p == 3:
                self.stamp(2)
            self.perm_pair(RV + 8 * p, RV + 8 * p + 4, PR, 1, 0)
            for t in range(8):
                a(f"v_dot2c_f32_bf16 v{ACC + t}, v{PR + t}, v{XN + p}")
        for t in range(4):
            a(f"v_permlane32_swap_b32 v{ACC + t}, v{ACC + t + 4}")
        for t in range(4):
            a(f"v_add_f32 v{ACC + t}, v{ACC + t}, v{ACC + t + 4}")
        for t in range(2):
            a(f"v_permlane16_swap_b32 v{ACC + t}, v{ACC + t + 2}")
        for t in range(2):
            a(f"v_add_f32 v{ACC + t}, v{ACC + t}, v{ACC + t + 2}")
        for t in range(2):
            a(f"v_add_f32_dpp v{ACC + t}, v{ACC + t}, v{ACC + t} row_ror:8 {DPP}")
        a(f"""s_mov_b32 exec_lo, 0x00ff00ff
        s_mov_b32 exec_hi, 0x00ff00ff
        ds_write2_b32 v{vA}, v{ACC}, v{ACC + 1} offset0:0 offset1:4
        s_mov_b64 exec, -1
        s_waitcnt lgkmcnt(0)
        s_barrier
        s_cmp_lg_u32 s{sW}, 0
        s_cbranch_scc1 L_q_pubdone
        ds_read_b128 {vr(ACC, 4)}, v{vB} offset:{L_QP}
        s_lshl_b32 s{sT0}, s{sG}, 7
        s_lshl_b32 s{sT1}, s{sJ}, 2
        s_add_u32 s{sT0}, s{sT0}, s{sT1}
        s_add_u32 s{sT0}, s{sT0}, {WS_HI}
        v_mov_b32 v{t0}, s{sT0}
        v_mov_b32 v{t1}, s{sHX}
        global_store_dword v{t0}, v{t1}, {sp(WS)}
        s_waitcnt lgkmcnt(0)
        v_add_f32 v{ACC}, v{ACC}, v{ACC + 1}
        v_add_f32 v{ACC + 2}, v{ACC + 2}, v{ACC + 3}
        v_mov_b32 v{ACC + 1}, s{sE}
        v_add_f32 v{ACC}, v{ACC}, v{ACC + 2}
        global_store_dwordx2 v{vC}, {vr(ACC, 2)}, {sp(WS)}
        v_add_u32 v{vC}, {WS_QB - WS_QA}, v{vC}
        {"" if self.qb_late else f"global_store_dwordx2 v{vC}, {vr(ACC, 2)}, {sp(WS)} sc1"}
        L_q_pubdone:
        s_barrier""")
        self.stamp(3)
        n = self.ul
        a(f"s_lshl_b32 s{sT3}, s{sW}, 12")
        if self.lfast:
            self.sleep(self.d_q)
            self.qloads(WS)
            self.census_load(0)
            a("s_barrier")
        for i in range(n):
            self.kload(i)
        if self.lp:
            a("s_barrier")
        for jj in range(self.lp):
            self.wo_load(jj)
        if self.lfast:
            a(f"s_lshl_b32 s{sT0}, s{sW}, 2\nv_mov_b32 v{vA}, s{sT0}\nv_mov_b32 v{vB}, 0\ns_waitcnt vmcnt({n + self.lp})")
            self.qcheck()
            self.qstage()
            a(f"""s_cmp_lg_u64 vcc, 0
            s_cselect_b32 s{sT0}, 1, 0
            v_mov_b32 v{t1}, s{sT0}
            ds_write_b32 v{vA}, v{t1} offset:{L_OK}
            s_waitcnt lgkmcnt(0)
            s_barrier
            ds_read_b128 {vr(t0, 4)}, v{vB} offset:{L_OK}
            s_waitcnt lgkmcnt(0)
            v_or3_b32 v{t0}, v{t0}, v{t1}, v{t2}
            v_or_b32 v{t0}, v{t0}, v{t3}
            v_readfirstlane_b32 s{sT0}, v{t0}
            s_cmp_lg_u32 s{sT0}, 0
            s_cbranch_scc1 L_l_second""")
            self.vload_last(self.nl, n)
            a("s_barrier")
            self.qreads()
            for jj in range(self.lp, self.lw):
                self.wo_load(jj)
            self.census_eval()
            a(f"s_waitcnt vmcnt({4 + self.lw})")
            self.kreads(self.nl)
            a("s_waitcnt lgkmcnt(0)\ns_branch L_qk_l\nL_l_second:")
        a(f"s_cmp_lg_u32 s{sW}, 0\ns_cbranch_scc1 L_l_k0")
        if self.qb_late:
            a(f"global_store_dwordx2 v{vC}, {vr(ACC, 2)}, {sp(WS)} sc1")
        a(f"s_waitcnt vmcnt({n - 1 + self.lp + self.qb_late})\nL_l_k0:\ns_barrier")
        self.fstamp(8)
        self.qloads(WS)
        self.census_load(0)
        a("s_barrier")
        self.vload_last(self.nl, n)
        a(f"s_waitcnt vmcnt({3 + 4 + self.lp})")
        self.fstamp(9)
        self.kreads(self.nl)
        a("s_waitcnt vmcnt(4)")
        self.qcheck()
        a("s_cbranch_vccz L_qok_l")

    def attention(self, role, nt, done, younger, groups):
        a = self.a
        ns = 4 * nt
        RO = RK + 32 if nt == 1 else RK
        a(f"L_qpoll_{role}:")
        self.qloads(sQP)
        self.census_load(0)
        self.spin()
        a(f"""s_add_u32 s{sQN}, s{sQN}, 1
        s_cmp_eq_u32 s{sQN}, {self.qa_tries}
        s_cselect_b32 s{sT0}, {WS_QB - WS_QA}, 0
        s_cselect_b32 s{sCM}, 16, s{sCM}
        s_add_u32 s{sQP}, s{sQP}, s{sT0}
        s_addc_u32 s{sQP + 1}, s{sQP + 1}, 0
        s_waitcnt vmcnt(0)""")
        self.qcheck()
        a(f"s_cbranch_vccnz L_qpoll_{role}\nL_qok_{role}:")
        self.stamp(4)
        self.qstage()
        a("s_waitcnt lgkmcnt(0)\ns_barrier")
        self.qreads()
        for jj in range(younger if role == "l" else 0):
            self.wo_load(self.lp + jj)
        self.census_eval()
        a(f"L_qk_{role}:")
        for s in range(4):
            a(f"s_waitcnt lgkmcnt({3 - s})")
            for tau in range(nt):
                c = "0" if s == 0 else vr(RD + 4 * tau, 4)
                a(f"v_mfma_f32_16x16x32_bf16 {vr(RD + 4 * tau, 4)}, {vr(RK + 16 * tau + 4 * s, 4)}, {vr(RA + 4 * s, 4)}, {c}")
        a(f"s_mov_b32 s{sT2}, 0x3db504f3\ns_mov_b32 s{sT3}, 0x3db504f3")
        for rnd in range(2):
            for i in range(ns // 2):
                a(f"v_cvt_pk_bf16_f32 v{RP + i}, v{RD + 2 * i}, v{RD + 2 * i + 1}")
            for i in range(ns // 2):
                a(f"v_lshlrev_b32 v{RD + 2 * i}, 16, v{RP + i}\nv_and_b32 v{RD + 2 * i + 1}, 0xffff0000, v{RP + i}")
            if rnd == 0:
                for i in range(ns // 2):
                    a(f"v_pk_mul_f32 {vr(RD + 2 * i, 2)}, {vr(RD + 2 * i, 2)}, {sp(sT2)}")
        if groups < 4:
            m = ((1 << 64) - 1) ^ ((1 << 16 * groups) - 1)
            a(f"s_mov_b32 exec_lo, {hex(m & 0xffffffff)}\ns_mov_b32 exec_hi, {hex(m >> 32)}")
            for i in range(ns - 4, ns):
                a(f"v_mov_b32 v{RD + i}, 0xff7f0000")
            a("s_mov_b64 exec, -1")
        a(f"v_max3_f32 v{t0}, v{RD}, v{RD + 1}, v{RD + 2}")
        for i in range(3, ns - 1, 2):
            a(f"v_max3_f32 v{t0}, v{t0}, v{RD + i}, v{RD + i + 1}")
        a(f"v_max_f32 v{t0}, v{t0}, v{RD + ns - 1}\ns_mov_b32 s{sT2}, {LOG2E}\ns_mov_b32 s{sT3}, {LOG2E}")
        self.allred(t0, "v_max_f32", rors=())
        a(f"v_mul_f32 v{t2}, 0xbfb8aa3b, v{t0}")
        for i in range(ns // 2):
            a(f"v_pk_fma_f32 {vr(RD + 2 * i, 2)}, {vr(RD + 2 * i, 2)}, {sp(sT2)}, {vr(t2, 2)} op_sel_hi:[1,1,0]")
        for i in range(ns):
            a(f"v_exp_f32 v{RD + i}, v{RD + i}")
        a(f"v_pk_add_f32 {vr(RX, 2)}, {vr(RD, 2)}, {vr(RD + 2, 2)}")
        for i in range(4, ns, 2):
            a(f"v_pk_add_f32 {vr(RX, 2)}, {vr(RX, 2)}, {vr(RD + i, 2)}")
        cvt = [f"v_cvt_pk_bf16_f32 v{RP + i}, v{RD + 2 * i}, v{RD + 2 * i + 1}" for i in range(ns // 2)]
        a(f"v_add_f32 v{t1}, v{RX}, v{RX + 1}\nv_mov_b32 v{t3}, v{t1}")
        a(cvt[0]); a(cvt[1])
        a(f"v_permlane16_swap_b32 v{t1}, v{t3}\nv_add_f32 v{t1}, v{t1}, v{t3}\nv_mov_b32 v{t3}, v{t1}")
        for c in cvt[2:4]:
            a(c)
        a(f"v_permlane32_swap_b32 v{t1}, v{t3}\nv_add_f32 v{t1}, v{t1}, v{t3}")
        a(f"ds_write_b64 v{aMW}, {vr(t0, 2)} offset:{L_MX}")
        for c in cvt[4:]:
            a(c)
        self.stamp(5)
        npair = 2 * nt

        def mf(t, half):
            d = vr(RO + 4 * t, 4)
            if nt == 1:
                return f"v_mfma_f32_16x16x16_bf16 {d}, {vr(RP, 2)}, {vr(RB + 2 * t, 2)}, 0"
            if half == 0:
                return f"v_mfma_f32_16x16x32_bf16 {d}, {vr(RP, 4)}, {vr(RB + 4 * t, 4)}, 0"
            if nt == 3:
                return f"v_mfma_f32_16x16x16_bf16 {d}, {vr(RP + 4, 2)}, {vr(RV + 2 * t, 2)}, {d}"
            return f"v_mfma_f32_16x16x32_bf16 {d}, {vr(RP + 4, 4)}, {vr(RV + 4 * t, 4)}, {d}"

        def wait_pair(p, ml):
            a(f"s_waitcnt vmcnt({ns - 1 - (2 * p + 1) + younger + ml})")
        first = 4 if nt > 1 else 1
        for p in range(done, first):
            wait_pair(p, 0)
            self.fstamp(10)
            self.vperm(p, nt)
        done = max(done, first)
        early = [mf(t, 0) for t in range(8)] if nt > 1 else [""] * 8
        a(f"""{early[0]}
        {early[1]}
        s_waitcnt lgkmcnt(0)
        s_barrier
        ds_read_b128 {vr(RX, 4)}, v{aMR} offset:{L_MX}
        ds_read_b128 {vr(RX + 4, 4)}, v{aMR} offset:{L_MX + 16}
        {early[2]}
        {early[3]}
        {early[4]}
        s_waitcnt lgkmcnt(0)
        v_max3_f32 v{t0}, v{RX}, v{RX + 2}, v{RX + 4}
        v_max_f32 v{t0}, v{t0}, v{RX + 6}
        {early[5]}
        v_mul_f32 v{t3}, 0xbfb8aa3b, v{t0}
        v_fma_f32 v{vF}, v{RX}, s{sT2}, v{t3}
        {early[6]}
        v_fma_f32 v{vF + 1}, v{RX + 2}, s{sT2}, v{t3}
        v_fma_f32 v{vF + 2}, v{RX + 4}, s{sT2}, v{t3}
        {early[7]}
        v_fma_f32 v{vF + 3}, v{RX + 6}, s{sT2}, v{t3}""")
        for i in range(4):
            a(f"v_exp_f32 v{vF + i}, v{vF + i}")
        a(f"v_mov_b32 v{t1}, s{sE}\nv_mul_f32 v{t2}, v{vF}, v{RX + 1}\nv_mov_b32 v{t3}, s{sE}")
        for i in range(1, 4):
            a(f"v_fmac_f32 v{t2}, v{vF + i}, v{RX + 2 * i + 1}")
        self.pub("ml" + role, f"global_store_dwordx4 v{aML}, {vr(t0, 4)}, {sp(WS)}")
        for p in range(done, npair - 1):
            wait_pair(p, 1)
            self.fstamp(11)
            self.vperm(p, nt)
        last = npair - 1
        if done <= last:
            wait_pair(last, 1)
        self.stamp(6)
        s0, s1 = RV + 8 * last, RV + 8 * last + 4

        def pm(t):
            dst = {1: RB + 2 * t + 1, 3: RV + 2 * t + 1, 4: RV + 4 * t + 3}[nt]
            if done <= last:
                a(f"v_perm_b32 v{dst}, v{s1 + t // 2}, v{s0 + t // 2}, s{sPHI if t % 2 else sPLO}")

        def wr(k):
            base = aOW if k < 2 else aOX
            a(f"ds_write2_b32 v{base}, v{RO + 8 * k}, v{RO + 8 * k + 4} offset0:{2 * (k % 2) * OR_PLANE} offset1:{(2 * (k % 2) + 1) * OR_PLANE}")
        pm(0); pm(1); pm(2)
        for t in range(8):
            a(mf(t, 1))
            if t + 3 < 8:
                pm(t + 3)
        for k in range(4):
            wr(k)
        a("s_waitcnt lgkmcnt(0)\ns_barrier")
        for w in range(4):
            a(f"ds_read2_b32 {vr(RD + 2 * w, 2)}, v{RD + 12 + w if w else aOR} offset0:0 offset1:{OR_PLANE}")
        self.pub_cmp()
        a(f"""s_waitcnt lgkmcnt(2)
        v_pk_mul_f32 {vr(RD, 2)}, {vr(RD, 2)}, {vr(vF, 2)} op_sel_hi:[1,0]
        v_pk_fma_f32 {vr(RD, 2)}, {vr(RD + 2, 2)}, {vr(vF, 2)}, {vr(RD, 2)} op_sel:[0,1,0] op_sel_hi:[1,1,1]
        s_waitcnt lgkmcnt(0)
        v_pk_fma_f32 {vr(RD, 2)}, {vr(RD + 4, 2)}, {vr(vF + 2, 2)}, {vr(RD, 2)} op_sel_hi:[1,0,1]
        v_pk_fma_f32 {vr(RD, 2)}, {vr(RD + 6, 2)}, {vr(vF + 2, 2)}, {vr(RD, 2)} op_sel:[0,1,0] op_sel_hi:[1,1,1]""")
        self.tag(RD, RD, sTA4)
        self.tag(RD + 1, RD + 1, sTA4)
        self.pub("a1" + role, f"global_store_dwordx2 v{aA1}, {vr(RD, 2)}, {sp(WS)}", cmp=False)
        if role == "h" or self.lw < 8:
            a("s_barrier")
        self.stamp(7)

    def notice(self):
        self.a(f"""s_lshl_b32 s{sT0}, s{sJ}, 2
        s_add_u32 s{sT0}, s{sT0}, s{sW}
        s_cmp_lg_u32 s{sT0}, 3
        s_cbranch_scc1 L_no_notice
        s_mov_b64 exec, 3
        global_store_dword v{vA}, v{vB}, {sp(WS)} sc1
        s_mov_b64 exec, -1
        L_no_notice:""")

    def w_tail(self):
        a = self.a
        if self.flag:
            a(f"""s_lshl_b32 s{sT0}, s{sG}, 7
            s_add_u32 s{sT0}, s{sT0}, {WS_FL}
            v_lshlrev_b32 v{vA}, 13, v{vL}
            v_and_b32 v{vA}, 0x2000, v{vA}
            v_add_u32 v{vA}, s{sT0}, v{vA}
            v_mov_b32 v{vB}, s{sE}
            s_lshr_b32 s{sT0}, s{sG}, 2
            s_lshl_b32 s{sT0}, s{sT0}, 13
            s_add_u32 s{sT0}, s{sT0}, {WS_FL}
            v_and_b32 v{vC}, 7, v{vL}
            v_lshlrev_b32 v{vC}, 7, v{vC}
            v_add_u32 v{vC}, s{sT0}, v{vC}""")
        for jj in range(self.lw, 8):
            self.wo_load(jj)
        a(f"v_lshlrev_b32 v{vXH}, 16, v{vXH}\nv_cmp_gt_u32 {sp(sM[0])}, 48, v{vL}")
        WT = RX + 4
        if self.wprime:
            ml_load = f"global_load_dwordx4 {vr(RX, 4)}, v{aMG}, {sp(WS)} sc1"
            a1_load = f"global_load_dwordx4 {vr(RA, 4)}, v{aAG}, {sp(WS)} sc1"
            ml_check = f"""v_mov_b32 v{t2}, v{RX}
        v_xor_b32 v{t0}, s{sE}, v{RX + 1}
        v_xor_b32 v{t1}, s{sE}, v{RX + 3}
        v_or_b32 v{t0}, v{t0}, v{t1}
        v_cmp_ne_u32 vcc, 0, v{t0}"""
            for p in range(4):
                last = 2 * p + 1
                a(f"s_waitcnt vmcnt({7 - last + (2 if last < self.lw else 0)})")
                if p == 3:
                    a(ml_load)
                    a(a1_load)
                    self.census_load(64)
                self.perm_pair(RW + 8 * p, RW + 8 * p + 4, RWB, 4, p)
            self.stamp(8)
            a(f"s_waitcnt vmcnt(2)\n{ml_check}\ns_cbranch_vccz L_mlok\nL_mlpoll:\n{ml_load}")
            self.spin()
            a(f"s_waitcnt vmcnt(0)\n{ml_check}\ns_cbranch_vccnz L_mlpoll\n{a1_load}\nL_mlok:")
        else:
            for p in range(4):
                last = 2 * p + 1
                extra = 2 if p == 3 else 0
                a(f"s_waitcnt vmcnt({7 - last + (2 if last < self.lw else 0) + extra})")
                self.perm_pair(RW + 8 * p, RW + 8 * p + 4, RWB, 4, p)
                if p == 2:
                    self.census_load(64)
                    a(f"global_load_dwordx4 {vr(RX, 4)}, v{aMG}, {sp(WS)} sc1")
            self.stamp(8)
            a(f"s_branch L_mlwait\nL_mlpoll:\nglobal_load_dwordx4 {vr(RX, 4)}, v{aMG}, {sp(WS)} sc1")
            self.spin()
            a("L_mlwait:\ns_waitcnt vmcnt(0)")
            a(f"""v_xor_b32 v{t0}, s{sE}, v{RX + 1}
        v_xor_b32 v{t1}, s{sE}, v{RX + 3}
        v_or_b32 v{t0}, v{t0}, v{t1}
        v_cmp_ne_u32 vcc, 0, v{t0}
        v_mov_b32 v{t2}, v{RX}
        s_cbranch_vccnz L_mlpoll""")
            a(f"global_load_dwordx4 {vr(RA, 4)}, v{aAG}, {sp(WS)} sc1")
        self.allred(t2, "v_max_f32", rors=(8, 4, 2))
        a(f"""v_sub_f32 v{WT}, v{RX}, v{t2}
        v_mul_f32 v{WT}, {LOG2E}, v{WT}
        v_exp_f32 v{WT}, v{WT}
        v_mul_f32 v{t2}, v{WT}, v{RX + 2}""")
        self.allred(t2, "v_add_f32", rors=(8, 4, 2))
        a(f"v_rcp_f32 v{t2}, v{t2}\nv_mul_f32 v{WT}, v{WT}, v{t2}")
        self.poll("a1poll", [f"global_load_dwordx4 {{}}, v{aAG}, {sp(WS)} sc1"], sTA4, RD, 1, [RA], primed=True)
        self.stamp(9)
        if self.flag == 1:
            self.notice()
        for i in (0, 2):
            a(f"v_pk_mul_f32 {vr(RD + i, 2)}, {vr(RD + i, 2)}, {vr(WT, 2)} op_sel_hi:[1,0]")
        self.rs4(RD)
        for k in (8, 4, 2):
            a(f"v_add_f32_dpp v{RD}, v{RD}, v{RD} row_ror:{k} {DPP}")
        a(f"""v_cvt_pk_bf16_f32 v{RD}, v{RD}, v{RD}
        ds_write_b16 v{aVW}, v{RD} offset:{L_OV}
        s_waitcnt lgkmcnt(0)
        s_barrier
        ds_read_b128 {vr(RX, 4)}, v{aVR} offset:{L_OV}""")
        self.pub_cmp()
        a("s_waitcnt lgkmcnt(0)")
        self.matvec8(lambda t: f"v_mfma_f32_16x16x32_bf16 {vr(RWD + 4 * t, 4)}, {vr(RX, 4)}, {vr(RWB + 4 * t, 4)}, 0", RWD, RD, sTB4)
        self.pub("b1", f"global_store_dwordx4 v{aB1}, {vr(RD, 4)}, {sp(WS)}", cmp=False)
        if self.flag == 2:
            self.notice()
        self.stamp(10)
        a(f"""s_cmp_ge_u32 s{sW}, 2
        s_cbranch_scc1 L_exit
        s_cmp_eq_u32 s{sW}, 1
        s_cbranch_scc1 L_final""")
        self.sleep(self.d_b1)
        self.poll("b1poll", [f"global_load_dwordx4 {{}}, v{aBG}, {sp(WS)} sc1", f"global_load_dwordx4 {{}}, v{aBG}, {sp(WS)} offset:1024 sc1"],
                  sTB4, RV, 1, [RA])
        self.stamp(11)
        a(f"""v_pk_add_f32 {vr(RV, 2)}, {vr(RV, 2)}, {vr(RV + 4, 2)}
        v_pk_add_f32 {vr(RV + 2, 2)}, {vr(RV + 2, 2)}, {vr(RV + 6, 2)}""")
        self.rs4(RV)
        a(f"v_add_f32_dpp v{RV}, v{RV}, v{RV} row_ror:8 {DPP}")
        self.tag(RV, RV, sTA4)
        a(f"global_store_dword v{aB2}, v{RV}, {sp(WS)} sc1")
        self.census_eval(keep=True)
        if self.d_cl:
            a(f"s_sub_u32 s{sQN}, s{sSPIN}, 1")
        if self.flag:
            a(f"L_notices:\nglobal_load_dword v{t2}, v{vC}, {sp(WS)} sc1")
            self.spin()
            a(f"s_waitcnt vmcnt(0)\nv_cmp_ne_u32 vcc, s{sE}, v{t2}\ns_cbranch_vccnz L_notices")
            self.sleep(self.d_fl)
        else:
            self.sleep(self.d_b2a)
        if self.b2mask:
            a(f"L_b2poll:\nglobal_load_dwordx4 {vr(RA, 4)}, v{aHG}, {sp(WS)} sc1")
            self.spin()
            a("s_waitcnt vmcnt(0)")
            self.check4(RA, sTA4)
            for e in range(4):
                a(f"v_and_b32 v{RV + e}, 0xffffff00, v{RA + e}")
            a("s_mov_b64 exec, vcc\ns_cbranch_execnz L_b2poll\ns_mov_b64 exec, -1")
        else:
            self.poll("b2poll", [f"global_load_dwordx4 {{}}, v{aHG}, {sp(WS)} sc1"], sTA4, RV, 1, [RA])
        self.stamp(12)
        self.rs4(RV)
        self.pub_cmp()
        a(f"v_add_f32_dpp v{RV}, v{RV}, v{RV} row_ror:8 {DPP}")
        self.bf16r(RV, RV)
        a(f"""v_add_f32 v{RV}, v{RV}, v{vXH}
        v_cvt_pk_bf16_f32 v{RV}, 0, v{RV}""")
        self.tag(RV + 1, RV, sTH4)
        self.pub("b2b", f"global_store_dword v{aHB}, v{RV + 1}, {sp(WS)}", cmp=False)
        if self.d_cl:
            a(f"""s_sub_u32 s{sQN}, s{sQN}, s{sSPIN}
            v_mov_b32 v{t0}, 0
            v_mov_b32 v{t1}, s{sQN}
            ds_write_b32 v{t0}, v{t1} offset:{L_HV + 128}""")
        a(f"""ds_write_b32 v{aHW}, v{RV} offset:{L_HV}
        L_final:
        s_cmp_ge_u32 s{sG}, 4
        s_cbranch_scc1 L_exit
        s_waitcnt lgkmcnt(0)
        s_barrier
        ds_read_b32 v{vXH}, v{aHR} offset:{L_HV}
        s_lshl_b32 s{sT0}, s2, 1
        s_add_u32 s{sT0}, s{sT0}, s{sW}
        s_cmp_lg_u32 s{sT0}, 1
        s_cbranch_scc1 L_epoch_done
        s_mov_b64 exec, 1
        v_mov_b32 v{t0}, 0
        v_mov_b32 v{t1}, s{sE}
        global_store_dword v{t0}, v{t1}, {sp(WS)} sc1
        s_mov_b64 exec, -1
        L_epoch_done:""")
        if self.ctrig == 1:
            a(f"""s_add_u32 s{sT0}, s{sA1G}, {16 * 2048}
            v_lshl_add_u32 v{aBG}, v{vL}, 4, s{sT0}""")
            self.poll("hseen", [f"global_load_dwordx4 {{}}, v{aBG}, {sp(WS)} sc1", f"global_load_dwordx4 {{}}, v{aBG}, {sp(WS)} offset:1024 sc1"],
                      sTH4, RV, 1, [RA])
        else:
            a(f"""s_lshl_b32 s{sT0}, s{sG}, 13
            s_lshl_b32 s{sT1}, s{sJ}, 9
            s_add_u32 s{sT0}, s{sT0}, s{sT1}
            s_add_u32 s{sT0}, s{sT0}, {WS_E}
            v_and_b32 v{aBG}, 31, v{vL}
            v_lshl_add_u32 v{aBG}, v{aBG}, 4, s{sT0}""")
            self.poll("eseen", [f"global_load_dwordx4 {{}}, v{aBG}, {sp(WS)} sc1"], sTA4, RV, 1, [RA])
        if self.d_cl:
            a(f"""v_mov_b32 v{t0}, 0
            ds_read_b32 v{t1}, v{t0} offset:{L_HV + 128}
            s_waitcnt lgkmcnt(0)
            v_readfirstlane_b32 s{sT0}, v{t1}
            s_cmp_lg_u32 s{sT0}, 0
            s_cbranch_scc1 L_not_last""")
            self.sleep(self.d_cl)
            a("L_not_last:")
        if self.out_pw:
            a(f"global_load_ushort v{t2}, v{aOut}, {sp(OUT)}")
        a("s_waitcnt lgkmcnt(0)")
        self.sleep(self.d_c)
        self.poll("cpoll", [f"global_load_dwordx4 {{}}, v{aC0}, {sp(WS)} sc1", f"global_load_dwordx4 {{}}, v{aC1}, {sp(WS)} sc1"],
                  sTA4, RV, 1, [RA])
        self.stamp(13)
        a(f"""s_mov_b64 exec, {sp(sM[0])}
        v_pk_add_f32 {vr(RV, 2)}, {vr(RV, 2)}, {vr(RV + 4, 2)}
        v_pk_add_f32 {vr(RV + 2, 2)}, {vr(RV + 2, 2)}, {vr(RV + 6, 2)}
        s_mov_b64 exec, -1""")
        self.rs4(RV)
        for k in (8, 4, 2, 1):
            a(f"v_add_f32_dpp v{RV}, v{RV}, v{RV} row_ror:{k} {DPP}")
        self.bf16r(RV, RV)
        a(f"""v_add_f32 v{RV}, v{RV}, v{vXH}
        {"s_mov_b32 exec_lo, 0x10001" if self.out_sc else ""}
        {"s_mov_b32 exec_hi, 0x10001" if self.out_sc else ""}
        v_cvt_pk_bf16_f32 v{RV}, v{RV}, v{RV}
        global_store_short v{aOut}, v{RV}, {sp(OUT)}
        s_branch L_exit""")

    def f_tail(self):
        a = self.a
        BG, BU, DW, BD, DR = RK, RK + 16, RV, RV + 16, RB
        ONES, CSG, CSU = RX + 8, RX + 9, RX + 10
        H0, H1, HA = DW, DW + 4, RX
        a(f"""s_cmp_eq_u32 s{sG}, 7
        s_cbranch_scc1 L_exit
        s_lshl_b32 s{sT2}, s{sW}, 12""")
        for i in range(4):
            for base, ptr in ((L_G, GA), (L_U, UP)):
                a(f"s_add_u32 m0, s{sT2}, {base + 1024 * i}\nglobal_load_lds_dwordx4 v{aFG}, {sp(ptr)}{self.nt}")
            if i < 3:
                a(f"v_add_u32 v{aFG}, {8 * 3584}, v{aFG}")
        if self.dn_early:
            DW = RDN
        for jj in range(0 if self.dn_early else 4):
            a(f"global_load_dwordx4 {vr(DW + 4 * jj, 4)}, v{aFD}, {sp(DN)} offset:{1024 * jj}{self.nt}")
        a(f"global_load_dwordx4 {vr(DR + 8, 4)}, v{aEG}, {sp(WS)} sc1")
        self.census_load(64)
        a(f"""v_mov_b32 v{ONES}, 0x3f803f80
        v_mov_b32 v{RX}, 0x3f803f80
        v_mov_b32 v{RX + 1}, 0x3f803f80
        v_mov_b32 v{RX + 2}, 0x3f803f80
        v_mov_b32 v{RX + 3}, 0x3f803f80
        s_waitcnt vmcnt({2 if self.dn_early else 6})
        s_barrier""")
        for base, B in ((L_G, BG), (L_U, BU)):
            for s in range(4):
                for hf in range(2):
                    a(f"ds_read_b64_tr_b16 {vr(B + 4 * s + 2 * hf, 2)}, v{aTR} offset:{base + 8192 * hf + 512 * s}")
        a("s_waitcnt lgkmcnt(0)")
        for s in range(4):
            for B, D in ((BG, DR), (BU, DR + 4)):
                a(f"v_mfma_f32_16x16x32_bf16 {vr(D, 4)}, {vr(RX, 4)}, {vr(B + 4 * s, 4)}, {'0' if s == 0 else vr(D, 4)}")
        a("s_waitcnt vmcnt(0)")
        self.stamp(8)
        for dd in range(4):
            rows = ((0, 1), (2, 3)) if dd < 2 else ((1, 2), (3, 0))
            for p, (lo, hi) in enumerate(rows):
                a(f"v_perm_b32 v{BD + 2 * (2 * dd) + p}, v{DW + 4 * hi + dd}, v{DW + 4 * lo + dd}, s{sPLO}")
                a(f"v_perm_b32 v{BD + 2 * (2 * dd + 1) + p}, v{DW + 4 * hi + dd}, v{DW + 4 * lo + dd}, s{sPHI}")
        a(f"v_mov_b32 v{CSG}, v{DR}\nv_mov_b32 v{CSU}, v{DR + 4}")
        self.census_eval(keep=True)
        a(f"""L_hpoll:
        global_load_dwordx4 {vr(H0, 4)}, v{aHP}, {sp(WS)} sc1
        global_load_dwordx4 {vr(H1, 4)}, v{aHP}, {sp(WS)} offset:256 sc1""")
        self.spin()
        a("s_waitcnt vmcnt(1)")
        self.check4(H0, sTH4, sp(sT2))
        a(f"""v_perm_b32 v{HA}, v{H0 + 1}, v{H0}, s{sPHI}
        v_perm_b32 v{HA + 1}, v{H0 + 3}, v{H0 + 2}, s{sPHI}
        s_waitcnt vmcnt(0)
        v_perm_b32 v{HA + 2}, v{H1 + 1}, v{H1}, s{sPHI}
        v_perm_b32 v{HA + 3}, v{H1 + 3}, v{H1 + 2}, s{sPHI}""")
        self.check4(H1, sTH4)
        a(f"s_or_b64 vcc, vcc, {sp(sT2)}\ns_cbranch_vccnz L_hpoll")
        self.stamp(9)
        SA, SB = RX + 4, RX + 5
        mf = [f"v_mfma_f32_16x16x32_bf16 {vr(D + 4 * s, 4)}, {vr(HA, 4)}, {vr(B + 4 * s, 4)}, 0" for s in range(4) for B, D in ((BG, DR), (BU, DR + 16))]
        a(f"v_dot2_f32_bf16 v{SA}, v{HA}, v{ONES}, 0\nv_dot2_f32_bf16 v{SB}, v{HA}, v{HA}, 0")
        for i in range(1, 4):
            a(f"v_dot2_f32_bf16 v{SA}, v{HA + i}, v{ONES}, v{SA}\nv_dot2_f32_bf16 v{SB}, v{HA + i}, v{HA + i}, v{SB}")
        a(mf[0]); a(mf[1])
        a(f"v_permlane16_swap_b32 v{SA}, v{SB}\nv_add_f32 v{SA}, v{SA}, v{SB}")
        for k, m in zip((8, 4, 2, 1), mf[2:6]):
            a(m)
            a(f"v_add_f32_dpp v{SA}, v{SA}, v{SA} row_ror:{k} {DPP}")
        a(f"v_mov_b32 v{SB}, v{SA}")
        a(mf[6])
        a(f"v_permlane32_swap_b32 v{SA}, v{SB}\nv_add_f32 v{SA}, v{SA}, v{SB}\nv_mul_f32 v{t0}, 0x3b000000, v{SA}\nv_mul_f32 v{t1}, 0x3b000000, v{SA}")
        a(mf[7])
        RS = RX + 6
        a(f"""v_add_f32 v{SA}, v{DR}, v{DR + 5}
        v_permlane16_swap_b32 v{t0}, v{t1}
        v_add_f32 v{SB}, v{DR + 16}, v{DR + 21}
        v_cvt_pk_bf16_f32 v{t2}, v{t0}, v{t0}
        v_add_f32 v{SA}, v{SA}, v{DR + 10}
        v_and_b32 v{t2}, 0xffff0000, v{t2}
        v_add_f32 v{SB}, v{SB}, v{DR + 26}
        v_add_f32 v{SA}, v{SA}, v{DR + 15}
        s_cmp_eq_u32 s{sFAST}, 0
        v_fma_f32 v{SA}, -v{t2}, v{CSG}, v{SA}
        v_fma_f32 v{SB}, -v{t2}, v{CSU}, v{SB}
        v_add_f32 v{SB}, v{SB}, v{DR + 31}
        s_mov_b64 exec, {sp(sKM)}""")
        self.tag(SA, SA, sTA4)
        self.tag(SB, SB, sTA4)
        self.pub("e", f"global_store_dwordx2 v{aES}, {vr(SA, 2)}, {sp(WS)}", cmp=False)
        a("s_mov_b64 exec, -1")
        self.stamp(11)
        a(f"v_fma_f32 v{t1}, -v{t0}, v{t0}, v{t1}\nv_max_f32 v{t1}, 0, v{t1}")
        self.ln_scale(t0, t1, t2)
        a(f"v_rcp_f32 v{RS}, v{t1}")
        self.sleep(self.d_e)
        self.poll("epoll", [f"global_load_dwordx4 {{}}, v{aEG}, {sp(WS)} sc1"], sTA4, H0, 1, [RA])
        self.stamp(12)
        a(f"""v_pk_add_f32 {vr(t2, 2)}, {vr(H0, 2)}, {vr(H0 + 2, 2)}
        v_add_f32_dpp v{t2}, v{t2}, v{t2} quad_perm:[1,0,3,2] {DPP}
        v_add_f32_dpp v{t3}, v{t3}, v{t3} quad_perm:[1,0,3,2] {DPP}
        v_pk_mul_f32 {vr(t2, 2)}, {vr(t2, 2)}, {vr(RS, 2)} op_sel_hi:[1,0]
        v_cvt_pk_bf16_f32 v{t3}, v{t2}, v{t3}
        v_lshlrev_b32 v{t2}, 16, v{t3}
        v_and_b32 v{t3}, 0xffff0000, v{t3}
        v_mul_f32 v{t0}, 0xbfb8aa3b, v{t2}
        v_exp_f32 v{t0}, v{t0}
        v_add_f32 v{t0}, 1.0, v{t0}
        v_rcp_f32 v{t0}, v{t0}
        v_mul_f32 v{t2}, v{t2}, v{t0}""")
        self.bf16r(t2, t2)
        a(f"""v_mul_f32 v{t2}, v{t2}, v{t3}
        v_cvt_pk_bf16_f32 v{t2}, v{t2}, v{t2}
        v_mov_b32_dpp v{t3}, v{t2} row_ror:12 {DPP}
        v_perm_b32 v{HA}, v{t3}, v{t2}, s{sPHI}
        v_mov_b32_dpp v{HA + 1}, v{HA} row_ror:8 {DPP}""")
        self.matvec8(lambda t: f"v_mfma_f32_16x16x16_bf16 {vr(DR + 4 * t, 4)}, {vr(HA, 2)}, {vr(BD + 2 * t, 2)}, 0", DR, H0, sTA4,
                     after="s_mov_b32 exec_hi, 0")
        a(f"global_store_dwordx4 v{aCS}, {vr(H0, 4)}, {sp(WS)} sc1\ns_mov_b64 exec, -1")
        self.stamp(10)
        a("s_branch L_exit")

    def helper(self):
        a = self.a
        per_wg = self.code_bytes // 32
        a(f"""L_helper:
        s_getpc_b64 {sp(sCODE)}
        L_pc:
        s_sub_u32 s{sCODE}, s{sCODE}, L_pc-{NAME}_kernel
        s_subb_u32 s{sCODE + 1}, s{sCODE + 1}, 0
        s_mul_i32 s{sT0}, s{sJ}, {per_wg}
        v_lshl_add_u32 v{t2}, v{vL}, {(per_wg // 64).bit_length() - 1}, s{sT0}
        v_min_u32 v{t2}, L_code_end-{NAME}_kernel-4, v{t2}""")
        if self.codepf:
            a(f"global_load_dword v{RK}, v{t2}, {sp(sCODE)}")
        a(f"""s_waitcnt lgkmcnt(0)
        s_cmp_lt_u32 s{sJ}, 16
        s_cbranch_scc1 L_helper_l
        s_lshl_b32 s{sT0}, s{sG}, 7
        s_add_u32 s{sT0}, s{sT0}, {WS_HI}
        v_and_b32 v{t0}, 31, v{vL}
        v_lshl_add_u32 v{vB}, v{t0}, 2, s{sT0}
        s_and_b32 s{sJ}, s{sJ}, 15
        s_lshl_b32 s{sT0}, s{sG}, 13
        s_lshl_b32 s{sT1}, s{sJ}, 9
        s_add_u32 s{sT0}, s{sT0}, s{sT1}
        s_add_u32 s{sT0}, s{sT0}, {WS_QA}
        v_lshl_add_u32 v{t0}, v{vL}, 3, s{sT0}
        s_lshl_b32 s{sT1}, s{sJ}, 7
        s_lshl_b32 s{sT0}, s{sG}, 16
        s_add_u32 s{sT0}, s{sT0}, s{sT1}
        s_add_u32 s{sT0}, s{sT0}, {WS_A1}
        v_lshrrev_b32 v{t1}, 3, v{vL}
        v_lshlrev_b32 v{t1}, 11, v{t1}
        v_and_b32 v{t2}, 7, v{vL}
        v_lshl_add_u32 v{t1}, v{t2}, 4, v{t1}
        v_add_u32 v{t1}, s{sT0}, v{t1}
        s_lshl_b32 s{sT0}, s{sG}, 11
        s_lshl_b32 s{sT1}, s{sJ}, 7
        s_add_u32 s{sT0}, s{sT0}, s{sT1}
        s_add_u32 s{sT0}, s{sT0}, {WS_ML}
        v_lshl_add_u32 v{t2}, v{vN}, 3, s{sT0}
        s_barrier
        global_load_dword v{RK + 21}, v{vB}, {sp(WS)}
        global_load_dword v{RK + 1}, v{t0}, {sp(WS)}""")
        for i in range(4):
            a(f"global_load_dwordx4 {vr(RK + 4 + 4 * i, 4)}, v{t1}, {sp(WS)}")
            if i < 3:
                a(f"v_add_u32 v{t1}, 0x4000, v{t1}")
        a(f"""global_load_dword v{RK + 2}, v{t2}, {sp(WS)}
        s_endpgm
        L_helper_l:
        v_mov_b32 v{t0}, {WS_QB}
        s_barrier""")
        if self.b2pw:
            a(f"""v_lshrrev_b32 v{t1}, 3, v{vL}
            v_and_b32 v{t2}, 4, v{t1}
            v_add_u32 v{t1}, v{t2}, v{t1}
            v_lshlrev_b32 v{t1}, 11, v{t1}
            v_and_b32 v{t2}, 7, v{vL}
            v_lshl_add_u32 v{t1}, v{t2}, 4, v{t1}
            s_lshr_b32 s{sT0}, s{sG}, 2
            s_lshl_b32 s{sT0}, s{sT0}, 13
            s_lshl_b32 s{sT1}, s{sJ}, 7
            s_add_u32 s{sT0}, s{sT0}, s{sT1}
            s_add_u32 s{sT0}, s{sT0}, {WS_B2A}
            v_add_u32 v{t1}, s{sT0}, v{t1}
            global_load_dword v{RK + 10}, v{t1}, {sp(WS)} sc1""")
        if self.qtouch:
            a(f"""s_lshl_b32 s{sT0}, s{sG}, 24
            s_add_u32 s{sT0}, s{sT0}, 0xF00000
            v_mov_b32 v{t3}, s{sT0}
            global_load_dword v{RK + 8}, v{t3}, {sp(KP)}{self.nt}
            global_load_dword v{RK + 1}, v{t0}, {sp(WS)} sc1
            global_load_dword v{RK + 9}, v{t3}, {sp(VP)}{self.nt}""")
        a("s_endpgm")

    def exit(self):
        a = self.a
        a("L_exit:")
        if self.leak[0] >= 0:
            self.stamp(14)
            a(f"""s_lshl_b32 s{sT0}, s2, 2
            s_add_u32 s{sT0}, s{sT0}, s{sW}
            s_cmp_lg_u32 s{sT0}, {self.leak[0] * 4}
            s_cbranch_scc1 L_end
            s_memrealtime {sp(ST0 + 4)}
            s_waitcnt lgkmcnt(0)
            s_sub_u32 s{sT0}, s{ST0 + 2}, s{ST0}""")
            if self.leak[3] == 1:
                a(f"s_mul_i32 s{sT0}, s{sT0}, 2731\ns_lshr_b32 s{sT0}, s{sT0}, 16")
            if self.leak[3] >= 2:
                a(f"""s_mov_b64 exec, -1
                v_and_b32 v{t0}, 7, v{vL}
                v_lshlrev_b32 v{t0}, 7, v{t0}
                v_add_u32 v{t0}, {WS_ST}, v{t0}
                global_load_dword v{t1}, v{t0}, {sp(WS)} sc1
                s_waitcnt vmcnt(0)
                v_subrev_u32 v{t1}, s{ST0}, v{t1}
                v_add_u32 v{t1}, 1000, v{t1}
                s_nop 1
                v_readlane_b32 s{sT0}, v{t1}, 0
                s_mov_b32 s{sT1}, s{sT0}""")
                for i in range(1, 8):
                    a(f"v_readlane_b32 s{sT2}, v{t1}, {i}\ns_nop 1\ns_max_u32 s{sT0}, s{sT0}, s{sT2}\ns_min_u32 s{sT1}, s{sT1}, s{sT2}")
                a(f"s_sub_u32 s{sT0}, s{sT0}, s{sT1}" if self.leak[3] == 2 else f"s_sub_u32 s{sT0}, 1000, s{sT1}")
            a(f"""s_min_u32 s{sT0}, s{sT0}, 5000
            s_mul_i32 s{sT0}, s{sT0}, 10
            s_add_u32 s{sT0}, s{sT0}, 2000
            L_leak:
            s_memrealtime {sp(ST0 + 6)}
            s_waitcnt lgkmcnt(0)
            s_sub_u32 s{sT1}, s{ST0 + 6}, s{ST0 + 4}
            s_cmp_lt_u32 s{sT1}, s{sT0}
            s_cbranch_scc1 L_leak""")
        if self.prof:
            self.stamp(14)
            a(f"""s_memrealtime {sp(ST0 + 32)}
            s_mov_b64 exec, 1
            s_lshl_b32 s{sT0}, s2, 2
            s_add_u32 s{sT0}, s{sT0}, s{sW}
            s_lshl_b32 s{sT0}, s{sT0}, 7
            s_add_u32 s{sT0}, s{sT0}, {WS_ST}
            v_mov_b32 v{t0}, s{sT0}
            s_waitcnt lgkmcnt(0)""")
            for k in (range(17) if self.prof == 1 else (15, 16)):
                a(f"v_mov_b32 v{t1}, s{ST0 + 2 * k}\nglobal_store_dword v{t0}, v{t1}, {sp(WS)} offset:{4 * k}")
            a(f"v_mov_b32 v{t1}, s{sFAST}\nglobal_store_dword v{t0}, v{t1}, {sp(WS)} offset:68")
            a(f"v_mov_b32 v{t1}, s{sQN}\nglobal_store_dword v{t0}, v{t1}, {sp(WS)} offset:72")
            a(f"v_mov_b32 v{t1}, s{sSPIN}\nglobal_store_dword v{t0}, v{t1}, {sp(WS)} offset:76")
        a("L_end:\ns_endpgm")

    def build(self):
        head = open("cdna_kernels/" + NAME + ".s.ref").read().split("; Override launch")[0]
        if self.prof == 1:
            for k in range(17):
                self.a(f"s_mov_b32 s{ST0 + 2 * k}, 0")
        self.prologue()
        self.h_issue()
        self.l_issue()
        self.l_rest()
        self.attention("l", self.nl, 0, self.lw - self.lp, self.ul)
        self.w_tail()
        done = self.h_rest()
        self.attention("h", self.nh, done, 4 if self.dn_early else 0, self.uh - 4 * self.nh + 4)
        self.f_tail()
        self.exit()
        self.helper()
        for c in self.cold:
            self.a(c)
        self.a("L_code_end:")
        padded = pad(self.L)
        for p in check_branches(padded):
            print("HAZARD", p, file=sys.stderr)
        body = "\n".join(padded)
        doc = """; One launch, 256 workgroups of 4 + 1 waves, all resident. Group g = id & 7 owns kv head g; inside it the
"""
        return f"""{head}{doc}; @launch grid=(256,1,1) block=(320,1,1) lds={LDS_BASE + 16384 * self.nh}
.amdgcn_target "amdgcn-amd-amdhsa--gfx950"
.text
.globl {NAME}_kernel
.p2align 8
.type {NAME}_kernel,@function
{NAME}_kernel:
{body}
.section .rodata,"a"
.p2align 6
.amdhsa_kernel {NAME}_kernel
  .amdhsa_next_free_vgpr {NVGPR}
  .amdhsa_next_free_sgpr 102
  .amdhsa_accum_offset {NVGPR}
  .amdhsa_group_segment_fixed_size 0
  .amdhsa_kernarg_size 96
  .amdhsa_user_sgpr_count 2
  .amdhsa_user_sgpr_kernarg_segment_ptr 1
  .amdhsa_system_sgpr_workgroup_id_x 1
.end_amdhsa_kernel
"""


if __name__ == "__main__":
    out = sys.argv[1]
    kw = {}
    for arg in sys.argv[2:]:
        k, v = arg.split("=")
        kw[k] = int(v)
    open(out, "w").write(Gen(**kw).build())
```

```python
import sys
from asmlib import check_branches, pad

NAME = "sequential_preLN__sliding_block_cached__swiglu_ffn__decode"

WS_HI, WS_ML, WS_B2A, WS_A1, WS_C, WS_QA, WS_QB, WS_E, WS_ST = 0x1000, 0x2000, 0x8000, 0x10000, 0x100000, 0xD0000, 0xE0000, 0xF0000, 0x180000
WS_FL = 0xC8000
L_QS, L_MX, L_OK, L_OV, L_HV, L_QP = 0, 1024, 1536, 1664, 1792, 4096
L_OR, OR_PLANE = 4096, 68
OR_STRIDE = 8 * 4 * OR_PLANE
L_G, L_U, L_K = 16384, 32768, 16384
LDS_BASE = 16384

sW, sG, sJ, sE, sXCC, sHX, sFAST = 3, 28, 29, 30, 31, 32, 33
sTA4, sTA2, sTB4, sTH4 = 34, 35, 36, 37
sSLO, sSHI, sPLO, sPHI = 38, 39, 40, 41
sM = [42, 44, 46, 48]
sG1 = 50
sQP = 52
sT0, sT1, sT2, sT3 = 54, 55, 56, 57
sQN, sSPIN = 59, 60
sA1G, sF, sKQ, sKM = 58, 58, 61, 98
sCM = 24
sCODE = 62
ST0 = 64
X, KP, VP, WQ, WO, GA, UP, DN, OUT, DBG, WS = 4, 6, 8, 10, 12, 16, 18, 20, 22, 24, 26
KB, VB = [KP, 0, 14, 10], [VP, 62, 100, 12]
REGION = 1 << 16

vL, vK, vV, vN, vGp, vSEL, vQ = 0, 1, 2, 3, 4, 5, 6
vA, vB, vC, vD, vXH = 7, 8, 9, 10, 11
t0, t1, t2, t3 = 12, 13, 14, 15
RK, RV, RB, RA, RD, RP, RX = 16, 80, 144, 176, 192, 208, 216
RW, RWB, RWD = RV + 16, RK + 16, RB
RDN = RV + 48
vKD, vF, vHI, vHA, aOX, aMR = 228, 232, 236, 237, 253, 254
aKR, aQW, aQR, aMW, aOW, aOR, aA1, aML, aFG, aFD, aTR, aHP, aES, aEG, aCS = range(238, 253)
aWO, aMG, aAG, aVW, aVR, aB1, aBG, aB2, aHG, aHB, aHW, aC0, aC1, aHR, aOut = range(RV + 48, RV + 63)
NVGPR = 256
LOG2E = "0x3fb8aa3b"
DPP = "row_mask:0xf bank_mask:0xf"
TILE = 4 << 16


def sp(r):
    return f"s[{r}:{r + 1}]"


def vr(r, n):
    return f"v[{r}:{r + n - 1}]"


class Gen:
    def __init__(self, prof=0, nt=1, qa_tries=24, d_b1=0, d_b2a=11, d_c=20, d_e=0, force_slow=0, code_bytes=16384,
                 codepf=1, qtouch=1, fine=0, leak_wg=-1, leak_a=0, leak_b=14, leak_clk=0,
                 uh=12, depth=10, d0=8, hq_at=8, hq_wait=3, lw=8, lp=1, ciod=1, biod=1, lfast=0, d_q=2, d_cl=0, wprime=1, flag=0, d_fl=0, qb_late=1, out_pw=0, out_sc=0, ctrig=2, only=0, b2pw=0, b2mask=0, align=0, jitter=0, dn_early=0, lv=0, lq=2, lr=2):
        self.L, self.cold = [], []
        self.prof, self.fine, self.nt = prof, fine, " nt" if nt else ""
        self.qa_tries, self.force_slow = qa_tries, force_slow
        self.d_b1, self.d_b2a, self.d_c, self.d_e = d_b1, d_b2a, d_c, d_e
        self.code_bytes, self.codepf, self.qtouch = code_bytes, codepf, qtouch
        self.leak = (leak_wg, leak_a, leak_b, leak_clk)
        assert uh in (12, 14)
        self.uh, self.ul, self.nh, self.nl = uh, 16 - uh, (uh + 3) // 4, 1
        self.depth, self.hq_at, self.hq_wait, self.lw = depth, hq_at, hq_wait, lw
        self.gap, self.d0, self.lp = 0, d0, lp
        self.ciod, self.biod, self.lfast, self.d_q = ciod, biod, lfast, d_q
        self.lv, self.lq, self.lr = lv, lq, lr
        self.align, self.jitter, self.nj, self.dn_early = align, jitter, 0, dn_early
        self.ctrig, self.only, self.b2pw, self.b2mask = ctrig, only, b2pw, b2mask
        self.qb_late, self.out_pw, self.out_sc = qb_late, out_pw, out_sc
        self.d_cl, self.wprime, self.flag, self.d_fl = d_cl, wprime, flag, d_fl

    def a(self, s):
        for ln in s.strip("\n").split("\n"):
            ln = ln.strip()
            if ln:
                self.L.append(ln if ln.endswith(":") or ln.startswith(".") or ln.startswith(";") else "  " + ln)

    def stamp(self, k, early=False):
        if k in (0, 1, 3, 4, 5, 6, 7, 8, 9, 10, 11, 12) and not early:
            self.shake()
        if self.fine and 8 <= k <= 13 and not early:
            return
        if self.prof == 1 and (not self.only or self.only >> k & 1 or k in (0, 14)):
            self.a(f"s_memtime {sp(ST0 + 2 * k)}")
        if self.leak[0] >= 0 and k in self.leak[1:3]:
            self.a(f"{'s_memtime' if self.leak[3] == 1 else 's_memrealtime'} {sp(ST0 + (0 if k == self.leak[1] else 2))}")

    def shake(self):
        if not self.jitter:
            return
        self.nj += 1
        self.a(f"""s_memtime s[90:91]
        s_waitcnt lgkmcnt(0)
        s_lshr_b32 s91, s90, 3
        s_xor_b32 s90, s90, s91
        s_lshr_b32 s91, s90, 7
        s_xor_b32 s90, s90, s91
        s_and_b32 s91, s90, {self.jitter - 1}
        s_cmp_lg_u32 s91, 0
        s_cbranch_scc1 L_shake{self.nj}
        s_sleep 127
        s_bitcmp1_b32 s90, 9
        s_cbranch_scc1 L_shake{self.nj}
        s_sleep 127
        s_sleep 127
        L_shake{self.nj}:""")

    def fstamp(self, k):
        if self.fine:
            self.stamp(k, True)

    def sleep(self, n):
        if n:
            self.a(f"s_sleep {n}")

    def spin(self):
        self.a(f"s_sub_u32 s{sSPIN}, s{sSPIN}, 1\ns_cbranch_scc1 L_exit")

    def check4(self, r, tag, dst="vcc"):
        self.a(f"""v_perm_b32 v{t0}, v{r + 1}, v{r}, s{sSLO}
        v_perm_b32 v{t1}, v{r + 3}, v{r + 2}, s{sSHI}
        v_or_b32 v{t0}, v{t0}, v{t1}
        v_cmp_ne_u32 {dst}, s{tag}, v{t0}""")

    def tag(self, dst, src, tag):
        self.a(f"v_perm_b32 v{dst}, v{src}, s{tag}, v{vSEL}")

    def pub_cmp(self):
        self.a(f"s_cmp_eq_u32 s{sFAST}, 0")

    def pub(self, name, store, cmp=True):
        if cmp:
            self.pub_cmp()
        self.a(f"s_cbranch_scc1 L_slow_{name}\n{store}\nL_back_{name}:")
        self.cold.append(f"L_slow_{name}:\n{store} sc1\ns_branch L_back_{name}")

    def poll(self, name, loads, tag, dst, depth, slots, primed=False):
        a, n = self.a, len(loads)

        def issue(k):
            for i, ld in enumerate(loads):
                a(ld.format(vr(slots[k] + 4 * i, 4)))

        def test(k, younger):
            for i in range(n):
                a(f"s_waitcnt vmcnt({younger + n - 1 - i})")
                self.check4(slots[k] + 4 * i, tag, "vcc" if i == n - 1 else sp(sT2))
                for e in range(4):
                    a(f"v_and_b32 v{dst + 4 * i + e}, 0xffffff00, v{slots[k] + 4 * i + e}")
            if n > 1:
                a(f"s_or_b64 vcc, vcc, {sp(sT2)}")
        if depth == 1:
            if primed:
                a(f"s_branch L_{name}_w")
            a(f"L_{name}:")
            issue(0)
            self.spin()
            if primed:
                a(f"L_{name}_w:")
            test(0, 0)
            a(f"s_cbranch_vccnz L_{name}")
            return
        for k in range(1 if primed else 0, depth - 1):
            issue(k)
            self.sleep(self.gap)
        a(f"L_{name}:")
        for k in range(depth):
            issue((k + depth - 1) % depth)
            if k == 0:
                self.spin()
            test(k, (depth - 1) * n)
            a(f"s_cbranch_vccz L_{name}_ok" if k < depth - 1 else f"s_cbranch_vccnz L_{name}")
        a(f"L_{name}_ok:")

    def bf16r(self, dst, src):
        self.a(f"v_cvt_pk_bf16_f32 v{dst}, v{src}, v{src}\nv_and_b32 v{dst}, 0xffff0000, v{dst}")

    def allred(self, r, op, rors=(8, 4, 2, 1), tmp=t3):
        for k in rors:
            self.a(f"{op}_dpp v{r}, v{r}, v{r} row_ror:{k} {DPP}")
        for sw in ("v_permlane16_swap_b32", "v_permlane32_swap_b32"):
            self.a(f"v_mov_b32 v{tmp}, v{r}\n{sw} v{r}, v{tmp}\n{op} v{r}, v{r}, v{tmp}")

    def rs4(self, r):
        self.a(f"""v_permlane32_swap_b32 v{r}, v{r + 2}
        v_permlane32_swap_b32 v{r + 1}, v{r + 3}
        v_add_f32 v{r}, v{r}, v{r + 2}
        v_add_f32 v{r + 1}, v{r + 1}, v{r + 3}
        v_permlane16_swap_b32 v{r}, v{r + 1}
        v_add_f32 v{r}, v{r}, v{r + 1}""")

    def matvec8(self, mf, D, out, tag, after=None):
        order = [0, 4, 1, 5, 2, 6, 3, 7]
        sel = [f"v_cndmask_b32 v{out + i}, v{D + 4 * i}, v{D + 16 + 4 * i}, {sp(sG1)}" for i in range(4)]
        for t in order:
            self.a(mf(t))
        if after:
            self.a(after)
        for i in range(4):
            self.a(sel[i])
            if i:
                self.tag(out + i - 1, out + i - 1, tag)
        self.tag(out + 3, out + 3, tag)

    def ln_scale(self, mean, var, tmp):
        self.a(f"v_cvt_pk_bf16_f32 v{tmp}, v{mean}, v{var}")
        self.a(f"v_lshlrev_b32 v{mean}, 16, v{tmp}\nv_and_b32 v{var}, 0xffff0000, v{tmp}")
        self.a(f"v_add_f32 v{var}, 0x3727c5ac, v{var}")
        self.bf16r(var, var)
        self.a(f"v_sqrt_f32 v{var}, v{var}")
        self.bf16r(var, var)

    def perm_pair(self, src0, src1, dst, stride, slot):
        for dd in range(4):
            self.a(f"v_perm_b32 v{dst + stride * (2 * dd) + slot}, v{src1 + dd}, v{src0 + dd}, s{sPLO}")
            self.a(f"v_perm_b32 v{dst + stride * (2 * dd + 1) + slot}, v{src1 + dd}, v{src0 + dd}, s{sPHI}")

    def consts(self):
        self.a('; constants: byte selectors for tag checks and bf16 packing, poll bound, census and query addresses')
        self.a(f"""s_mov_b32 s{sSLO}, 0x0c0c0400
        s_mov_b32 s{sSHI}, 0x04000c0c
        s_mov_b32 s{sPLO}, 0x05040100
        s_mov_b32 s{sPHI}, 0x07060302
        s_mov_b32 s{sG1}, 0xffff0000
        s_mov_b32 s{sG1 + 1}, 0xffff0000
        s_mov_b32 s{sSPIN}, 0x20000
        s_mov_b32 s{sQN}, 0
        s_mov_b32 s{sCM}, 2
        v_mov_b32 v{vSEL}, 0x07060500
        s_getreg_b32 s{sXCC}, hwreg(HW_REG_XCC_ID, 0, 4)
        s_lshl_b32 s{sT0}, s{sG}, 7
        s_add_u32 s{sT0}, s{sT0}, {WS_HI}
        v_lshl_add_u32 v{vHA}, v{vN}, 2, s{sT0}
        s_lshl_b32 s{sT0}, s{sG}, 13
        s_lshl_b32 s{sT1}, s{sW}, 10
        s_add_u32 s{sT0}, s{sT0}, s{sT1}
        s_add_u32 s{sT0}, s{sT0}, {WS_QA + 2048}
        v_lshl_add_u32 v{vQ}, v{vL}, 4, s{sT0}
        s_mov_b64 {sp(sQP)}, {sp(WS)}""")

    def a_or(self, nt):
        return vA - 1 if nt == 4 else RD + 12

    def addr_att(self, nt):
        self.a('; addresses of the attention stage (LDS images, (max,sum) record, partial-output record)')
        self.a(f"""v_xor_b32 v{t0}, v{vN}, v{vGp}
        v_lshlrev_b32 v{t0}, 4, v{t0}
        v_lshl_add_u32 v{t0}, v{vN}, 8, v{t0}
        s_mul_i32 s{sT0}, s{sW}, {4096 * nt}
        v_add_u32 v{aKR}, s{sT0}, v{t0}
        s_lshl_b32 s{sT0}, s{sW}, 8
        v_lshl_add_u32 v{aQW}, v{vL}, 2, s{sT0}
        v_lshrrev_b32 v{t0}, 2, v{vN}
        v_lshlrev_b32 v{t1}, 8, v{t0}
        v_lshl_add_u32 v{aQR}, v{vGp}, 4, v{t1}
        s_lshl_b32 s{sT1}, s{sW}, 3
        v_lshl_add_u32 v{aMW}, v{t0}, 5, s{sT1}
        s_mul_i32 s{sT1}, s{sW}, {OR_STRIDE}
        s_add_u32 s{sT1}, s{sT1}, {L_OR}
        v_lshl_add_u32 v{aOW}, v{vL}, 2, s{sT1}
        v_add_u32 v{aOX}, {16 * OR_PLANE}, v{aOW}
        s_lshl_b32 s{sT1}, s{sW}, 5
        v_mov_b32 v{aMR}, s{sT1}
        s_lshl_b32 s{sT1}, s{sW}, 6
        s_add_u32 s{sT1}, s{sT1}, {L_OR}
        v_and_b32 v{t0}, 0x3c, v{vL}
        v_add_u32 v{aOR}, s{sT1}, v{t0}
        v_and_b32 v{t0}, 3, v{vL}
        v_mul_u32_u24 v{t0}, {8 * OR_PLANE}, v{t0}
        v_add_u32 v{aOR}, v{t0}, v{aOR}
        v_add_u32 v{self.a_or(nt) + 1}, {OR_STRIDE}, v{aOR}
        v_add_u32 v{self.a_or(nt) + 2}, {2 * OR_STRIDE}, v{aOR}
        v_add_u32 v{self.a_or(nt) + 3}, {3 * OR_STRIDE}, v{aOR}
        s_lshl_b32 s{sT0}, s{sG}, 16
        s_lshl_b32 s{sT1}, s{sJ}, 11
        s_add_u32 s{sT0}, s{sT0}, s{sT1}
        s_lshl_b32 s{sT1}, s{sW}, 9
        s_add_u32 s{sT0}, s{sT0}, s{sT1}
        s_add_u32 s{sT0}, s{sT0}, {WS_A1}
        v_lshl_add_u32 v{aA1}, v{vL}, 3, s{sT0}
        s_lshl_b32 s{sT0}, s{sG}, 11
        s_lshl_b32 s{sT1}, s{sJ}, 6
        s_add_u32 s{sT0}, s{sT0}, s{sT1}
        s_lshl_b32 s{sT1}, s{sW}, 4
        s_add_u32 s{sT0}, s{sT0}, s{sT1}
        s_add_u32 s{sT0}, s{sT0}, {WS_ML}
        v_mov_b32 v{aML}, s{sT0}""")

    def addr_w(self):
        self.a('; addresses of the output projection, the two reductions of its result and the final stage')
        self.a(f"""s_lshl_b32 s{sT0}, s{sG}, 19
        s_lshl_b32 s{sT1}, s{sJ}, 15
        s_add_u32 s{sT0}, s{sT0}, s{sT1}
        s_lshl_b32 s{sT1}, s{sW}, 8
        s_add_u32 s{sT0}, s{sT0}, s{sT1}
        s_add_u32 s{sT0}, s{sT0}, 4096
        v_lshlrev_b32 v{t0}, 13, v{vGp}
        v_lshl_add_u32 v{t0}, v{vN}, 4, v{t0}
        v_add_u32 v{aWO}, s{sT0}, v{t0}
        v_lshrrev_b32 v{t0}, 1, v{vL}
        s_lshl_b32 s{sT0}, s{sG}, 11
        s_lshr_b32 s{sT1}, s{sJ}, 2
        s_lshl_b32 s{sT1}, s{sT1}, 4
        s_add_u32 s{sT0}, s{sT0}, s{sT1}
        s_add_u32 s{sT0}, s{sT0}, {WS_ML}
        v_lshl_add_u32 v{aMG}, v{t0}, 6, s{sT0}
        s_lshl_b32 s{sA1G}, s{sG}, 16
        s_add_u32 s{sA1G}, s{sA1G}, {WS_A1}
        s_lshl_b32 s{sT1}, s{sJ}, 7
        s_add_u32 s{sT2}, s{sA1G}, s{sT1}
        s_lshl_b32 s{sT1}, s{sW}, 5
        s_add_u32 s{sT0}, s{sT2}, s{sT1}
        v_lshlrev_b32 v{aAG}, 11, v{t0}
        v_and_b32 v{t1}, 1, v{vL}
        v_lshl_add_u32 v{aAG}, v{t1}, 4, v{aAG}
        v_add_u32 v{aAG}, s{sT0}, v{aAG}
        v_lshlrev_b32 v{aVW}, 3, v{t1}
        v_lshl_add_u32 v{aVW}, v{vGp}, 1, v{aVW}
        s_lshl_b32 s{sT1}, s{sW}, 4
        v_add_u32 v{aVW}, s{sT1}, v{aVW}
        v_lshlrev_b32 v{aVR}, 4, v{vGp}
        v_lshrrev_b32 v{t0}, 2, v{vN}
        v_lshlrev_b32 v{aB1}, 11, v{t0}
        v_and_b32 v{t0}, 3, v{vN}
        v_lshl_add_u32 v{aB1}, v{t0}, 5, v{aB1}
        v_and_b32 v{t0}, 1, v{vGp}
        v_lshl_add_u32 v{aB1}, v{t0}, 4, v{aB1}
        s_lshl_b32 s{sT1}, s{sW}, 13
        s_add_u32 s{sT0}, s{sT2}, s{sT1}
        v_add_u32 v{aB1}, s{sT0}, v{aB1}
        s_add_u32 s{sT2}, s{sT2}, {16 * 2048}
        v_lshl_add_u32 v{aHB}, v{vD}, 2, s{sT2}
        v_lshlrev_b32 v{aHW}, 2, v{vD}
        s_lshl_b32 s{sT1}, s{sJ}, 11
        s_add_u32 s{sT0}, s{sA1G}, s{sT1}
        v_lshl_add_u32 v{aBG}, v{vL}, 4, s{sT0}
        v_and_b32 v{t0}, 7, v{vL}
        v_lshlrev_b32 v{aB2}, 2, v{t0}
        v_lshl_add_u32 v{aB2}, v{vGp}, 5, v{aB2}
        v_bfe_u32 v{t1}, v{vL}, 3, {1 if self.biod else 0}
        v_lshl_add_u32 v{aB2}, v{t1}, 13, v{aB2}
        s_and_b32 s{sT0}, s{sG}, 4
        s_add_u32 s{sT0}, s{sT0}, s{sG}
        s_lshl_b32 s{sT0}, s{sT0}, 11
        s_lshl_b32 s{sT1}, s{sJ}, 7
        s_add_u32 s{sT1}, s{sT1}, {WS_B2A}
        s_add_u32 s{sT0}, s{sT0}, s{sT1}
        v_add_u32 v{aB2}, s{sT0}, v{aB2}
        v_lshrrev_b32 v{aHG}, 3, v{vL}
        v_and_b32 v{t1}, 4, v{aHG}
        v_add_u32 v{aHG}, v{t1}, v{aHG}
        v_lshlrev_b32 v{aHG}, 11, v{aHG}
        v_lshl_add_u32 v{aHG}, v{t0}, 4, v{aHG}
        s_lshr_b32 s{sT0}, s{sG}, 2
        s_mul_i32 s{sT0}, s{sT0}, {0x2000 if self.biod else 0}
        s_add_u32 s{sT1}, s{sT1}, s{sT0}
        v_add_u32 v{aHG}, s{sT1}, v{aHG}
        s_lshl_b32 s{sT0}, s{sG}, 9
        s_lshl_b32 s{sT1}, s{sJ}, 5
        s_add_u32 s{sT0}, s{sT0}, s{sT1}
        s_lshl_b32 s{sT1}, s{sW}, 4
        s_add_u32 s{sT0}, s{sT0}, s{sT1}
        s_add_u32 s{sT0}, s{sT0}, {WS_C}
        v_min_u32 v{aC1}, 47, v{vL}""")
        for r, src in ((aC0, vL), (aC1, aC1)):
            if self.ciod:
                self.a(f"""v_and_b32 v{t0}, 0x3c, v{src}
                v_add_u32 v{r}, v{t0}, v{src}
                v_lshlrev_b32 v{r}, 11, v{r}""")
            else:
                self.a(f"v_lshlrev_b32 v{r}, 11, v{src}")
        self.a(f"""v_add_u32 v{aC0}, s{sT0}, v{aC0}
        s_add_u32 s{sT0}, s{sT0}, {64 * 2048 * (2 if self.ciod else 1)}
        v_add_u32 v{aC1}, s{sT0}, v{aC1}
        s_lshl_b32 s{sT0}, s{sG}, 3
        s_lshl_b32 s{sT1}, s{sW}, 2
        s_add_u32 s{sT0}, s{sT0}, s{sT1}
        v_add_u32 v{t2}, s{sT0}, v{vGp}
        v_lshlrev_b32 v{aHR}, 2, v{t2}
        s_lshl_b32 s{sT1}, s{sJ}, 6
        v_lshl_add_u32 v{aOut}, v{t2}, 1, s{sT1}""")

    def addr_f(self):
        self.a('; addresses of the feed-forward stage: f = 16g + j - 16 owns hidden columns 16f..16f+15 and,')
        self.a(f"""s_lshl_b32 s{sF}, s{sG}, 4
        s_add_u32 s{sF}, s{sF}, s{sJ}
        s_sub_u32 s{sF}, s{sF}, 16
        s_and_b32 s{sKQ}, s{sF}, 3
        s_lshl_b32 s{sT0}, s{sKQ}, 2
        s_add_u32 s{sT0}, s{sT0}, s{sW}
        s_mul_i32 s{sT0}, s{sT0}, {32 * 3584}
        s_lshr_b32 s{sT1}, s{sF}, 2
        s_lshl_b32 s{sT1}, s{sT1}, 7
        s_add_u32 s{sT0}, s{sT0}, s{sT1}
        v_lshrrev_b32 v{t0}, 3, v{vL}
        v_mul_u32_u24 v{t0}, 3584, v{t0}
        v_and_b32 v{t1}, 7, v{vL}
        v_lshl_add_u32 v{t0}, v{t1}, 4, v{t0}
        v_add_u32 v{aFG}, s{sT0}, v{t0}
        s_lshl_b32 s{sT0}, s{sF}, 14
        s_lshl_b32 s{sT1}, s{sW}, 8
        s_add_u32 s{sT0}, s{sT0}, s{sT1}
        v_lshlrev_b32 v{t0}, 12, v{vGp}
        v_lshl_add_u32 v{t0}, v{vN}, 4, v{t0}
        v_add_u32 v{aFD}, s{sT0}, v{t0}
        v_lshrrev_b32 v{t0}, 2, v{vN}
        v_and_b32 v{t1}, 3, v{vL}
        v_lshlrev_b32 v{aTR}, 11, v{vGp}
        v_lshl_add_u32 v{aTR}, v{t0}, 7, v{aTR}
        v_lshl_add_u32 v{aTR}, v{t1}, 3, v{aTR}
        s_lshl_b32 s{sT0}, s{sW}, 5
        v_add_u32 v{aTR}, s{sT0}, v{aTR}
        v_lshlrev_b32 v{aHP}, 9, v{t0}
        v_lshl_add_u32 v{aHP}, v{vGp}, 6, v{aHP}
        v_lshl_add_u32 v{aHP}, v{t1}, 4, v{aHP}
        s_lshl_b32 s{sT0}, s{sG}, 16
        s_add_u32 s{sT0}, s{sT0}, {WS_A1 + 16 * 2048}
        v_add_u32 v{aHP}, s{sT0}, v{aHP}
        s_and_b32 s{sT0}, s{sF}, 0xfc
        s_add_u32 s{sT0}, s{sT0}, s{sW}
        s_lshl_b32 s{sT0}, s{sT0}, 9
        s_lshl_b32 s{sT1}, s{sKQ}, 3
        s_add_u32 s{sT0}, s{sT0}, s{sT1}
        s_add_u32 s{sT0}, s{sT0}, {WS_E}
        v_lshl_add_u32 v{aES}, v{vN}, 5, s{sT0}
        s_lshl_b32 s{sT0}, s{sF}, 9
        s_add_u32 s{sT0}, s{sT0}, {WS_E}
        v_lshrrev_b32 v{t2}, 2, v{vL}
        v_lshl_add_u32 v{aEG}, v{t2}, 5, s{sT0}
        v_and_b32 v{t2}, 1, v{vL}
        v_lshl_add_u32 v{aEG}, v{t2}, 4, v{aEG}
        v_lshlrev_b32 v{aCS}, 9, v{t1}
        v_lshl_add_u32 v{aCS}, v{t0}, 5, v{aCS}
        v_and_b32 v{t1}, 1, v{vGp}
        v_lshl_add_u32 v{aCS}, v{t1}, 4, v{aCS}
        s_and_b32 s{sT0}, s{sF}, {0xfc if self.ciod else 0}
        s_add_u32 s{sT0}, s{sT0}, s{sF}
        s_lshl_b32 s{sT0}, s{sT0}, 11
        s_lshl_b32 s{sT1}, s{sW}, 7
        s_add_u32 s{sT0}, s{sT0}, s{sT1}
        s_add_u32 s{sT0}, s{sT0}, {WS_C}
        v_add_u32 v{aCS}, s{sT0}, v{aCS}
        s_lshl_b32 s{sT0}, s{sKQ}, 4
        s_mov_b64 {sp(sKM)}, 0xffff
        s_lshl_b64 {sp(sKM)}, {sp(sKM)}, s{sT0}""")

    def tags(self):
        self.a("; this launch's tags: epoch word + 1 (full word, low byte and two variants of it, census word)")
        self.a(f"""s_add_u32 s{sE}, s{sE}, 1
        s_and_b32 s{sT0}, s{sE}, 0xff
        s_mul_i32 s{sTA4}, s{sT0}, 0x01010101
        s_xor_b32 s{sTB4}, s{sTA4}, 0x40404040
        s_xor_b32 s{sTH4}, s{sTA4}, 0x80808080
        s_lshl_b32 s{sHX}, s{sE}, 4
        s_or_b32 s{sHX}, s{sHX}, s{sXCC}""")

    def census_load(self, off):
        self.a(f"global_load_dword v{vHI}, v{vHA}, {sp(WS)} offset:{off} sc1")

    def census_eval(self, keep=False):
        if self.force_slow:
            self.a(f"s_mov_b32 s{sFAST}, 0")
        else:
            self.a(f"v_cmp_ne_u32 vcc, s{sHX}, v{vHI}\ns_cmp_eq_u64 vcc, 0\ns_cselect_b32 s{sFAST}, {f's{sFAST}' if keep else 1}, 0")

    def kload(self, i):
        self.a(f"s_add_u32 m0, s{sT3}, {L_K + 1024 * i}\nglobal_load_lds_dwordx4 v{vKD + i % 4}, {sp(KB[i // 4])}{self.nt}")

    def live(self, groups):
        m = (1 << 16 * groups) - 1
        self.a(f"s_mov_b32 exec_lo, {hex(m & 0xffffffff)}\ns_mov_b32 exec_hi, {hex(m >> 32)}")

    def vload(self, i):
        self.a(f"global_load_dwordx4 {vr(RV + 4 * i, 4)}, v{vV}, {sp(VB[i // 4])} offset:{256 * (i % 4)}{self.nt}")

    def vload_last(self, nt, groups):
        if groups < 4:
            self.live(groups)
        for i in range(4 * nt - 4, 4 * nt):
            self.vload(i)
        if groups < 4:
            self.a("s_mov_b64 exec, -1")

    def vzero(self, nt):
        if self.uh % 4 == 0:
            return
        for r in range(RV + 16 * nt - 16, RV + 16 * nt):
            self.a(f"v_mov_b32 v{r}, 0")

    def tile_bases(self, nt, ptrs):
        for tau in range(1, nt):
            self.a(f"s_add_u32 s{ptrs[tau]}, s{ptrs[0]}, {tau * TILE}\ns_addc_u32 s{ptrs[tau] + 1}, s{ptrs[0] + 1}, 0")

    def kreads(self, nt):
        for s in range(4):
            if s:
                self.a(f"v_xor_b32 v{t1}, {64 * s}, v{aKR}")
            for tau in range(nt):
                self.a(f"ds_read_b128 {vr(RK + 16 * tau + 4 * s, 4)}, v{t1 if s else aKR} offset:{L_K + 4096 * tau}")

    def vperm(self, p, nt):
        if nt == 1:
            self.perm_pair(RV + 8 * p, RV + 8 * p + 4, RB, 2, p)
        elif nt == 3 and p >= 4:
            self.perm_pair(RV + 8 * p, RV + 8 * p + 4, RV, 2, p - 4)
        else:
            self.perm_pair(RV + 8 * p, RV + 8 * p + 4, RB if p < 4 else RV, 4, p % 4)

    def wo_load(self, jj):
        self.a(f"global_load_dwordx4 {vr(RW + 4 * jj, 4)}, v{aWO}, {sp(WO)} offset:{1024 * jj - 4096}{self.nt}")

    def qloads(self, base):
        self.a(f"global_load_dwordx4 {vr(RX, 4)}, v{vQ}, {sp(base)} offset:-2048 sc1")
        self.a(f"global_load_dwordx4 {vr(RX + 4, 4)}, v{vQ}, {sp(base)} offset:2048 sc1")

    def qstage(self):
        self.a(f"""v_add_f32 v{t0}, v{RX}, v{RX + 4}
        v_add_f32 v{t1}, v{RX + 2}, v{RX + 6}
        v_cvt_pk_bf16_f32 v{t0}, v{t0}, v{t1}
        ds_write_b32 v{aQW}, v{t0} offset:{L_QS}""")

    def qreads(self):
        for s in range(4):
            self.a(f"ds_read_b128 {vr(RA + 4 * s, 4)}, v{aQR} offset:{L_QS + 64 * s}")

    def qcheck(self):
        self.a(f"""v_xor_b32 v{t0}, s{sE}, v{RX + 1}
        v_xor_b32 v{t1}, s{sE}, v{RX + 3}
        v_xor_b32 v{t2}, s{sE}, v{RX + 5}
        v_xor_b32 v{t3}, s{sE}, v{RX + 7}
        v_or3_b32 v{t0}, v{t0}, v{t1}, v{t2}
        v_xor_b32 v{t1}, s{sHX}, v{vHI}
        v_or_b32 v{t0}, v{t0}, v{t3}
        v_lshrrev_b32 v{t1}, s{sCM}, v{t1}
        v_lshrrev_b32 v{t1}, s{sCM}, v{t1}
        v_or_b32 v{t0}, v{t0}, v{t1}
        v_cmp_ne_u32 vcc, 0, v{t0}""")

    def prologue(self):
        a = self.a
        if self.align:
            a(f"""s_memrealtime s[54:55]
            s_waitcnt lgkmcnt(0)
            s_add_u32 s56, s54, 1224
            s_and_b32 s56, s56, 0xfffffc00
            s_and_b32 s57, s2, 7
            s_mul_i32 s57, s57, 5
            s_and_b32 s57, s57, 7
            s_mul_i32 s57, s57, {self.align - 1}
            s_add_u32 s56, s56, s57
            L_align:
            s_memrealtime s[54:55]
            s_waitcnt lgkmcnt(0)
            s_sub_u32 s54, s54, s56
            s_cmp_lt_i32 s54, 0
            s_cbranch_scc1 L_align""")
        if self.prof:
            a(f"s_memrealtime {sp(ST0 + 30)}")
        self.stamp(0)
        a(f"""s_cmpk_ge_u32 s2, 0x100
        s_cbranch_scc1 L_end
        s_load_dwordx16 s[4:19], s[0:1], 0
        s_load_dwordx8 s[20:27], s[0:1], 64
        v_lshrrev_b32 v{t0}, 6, v0
        v_and_b32 v{vL}, 63, v0
        v_readfirstlane_b32 s{sW}, v{t0}
        s_and_b32 s{sG}, s2, 7
        s_lshr_b32 s{sJ}, s2, 3
        v_and_b32 v{vN}, 15, v{vL}
        v_lshrrev_b32 v{vGp}, 4, v{vL}
        s_lshl_b32 s{sT0}, s{sG}, 24
        s_and_b32 s{sT1}, s{sJ}, 15
        s_lshl_b32 s{sT1}, s{sT1}, 12
        s_add_u32 s{sT0}, s{sT0}, s{sT1}
        s_lshl_b32 s{sT1}, s{sW}, 10
        s_add_u32 s{sT0}, s{sT0}, s{sT1}
        s_cmp_lt_u32 s{sJ}, 16
        s_cselect_b32 s{sT1}, {self.uh * REGION}, 0
        s_add_u32 s{sT0}, s{sT0}, s{sT1}
        s_add_u32 s{sT0}, s{sT0}, 0xF00000
        v_xor_b32 v{t0}, v{vN}, v{vGp}
        v_lshlrev_b32 v{t0}, 4, v{t0}
        v_lshl_add_u32 v{t0}, v{vGp}, 8, v{t0}
        v_add_u32 v{vKD}, s{sT0}, v{t0}""")
        for i in range(1, 4):
            a(f"v_xor_b32 v{vKD + i}, {64 * i + (i << 16) + 0x2000 * (i & 1)}, v{vKD}")
        a(f"""v_lshlrev_b32 v{vV}, 16, v{vGp}
        v_lshl_add_u32 v{vV}, v{vN}, 4, v{vV}
        v_add_u32 v{vV}, s{sT0}, v{vV}
        v_lshlrev_b32 v{t0}, 9, v{vL}
        v_and_b32 v{t0}, 0x2000, v{t0}
        v_xor_b32 v{vV}, v{t0}, v{vV}
        s_cmp_eq_u32 s{sW}, 4
        s_cbranch_scc1 L_helper
        s_cmp_lt_u32 s{sJ}, 16
        s_cbranch_scc1 L_l_start""")

    def h_issue(self):
        a = self.a
        a(f"s_mul_i32 s{sT3}, s{sW}, {4096 * self.nh}\ns_waitcnt lgkmcnt(0)")
        for i in range(self.d0):
            if i == 4:
                self.tile_bases(self.nh, KB)
            self.kload(i)
        if self.d0 <= 4:
            self.tile_bases(self.nh, KB)
        a(f"s_load_dword s{sE}, {sp(WS)}, 0\ns_branch L_h_rest")

    def h_rest(self):
        a, n, d, at = self.a, self.uh, self.depth, self.hq_at
        nv = 4 * self.nh
        assert at <= nv - 4
        a("L_h_rest:\ns_barrier")
        self.stamp(1)
        self.tile_bases(self.nh, VB)
        self.consts()
        self.addr_att(self.nh)
        self.addr_f()
        self.vzero(self.nh)
        done = 0
        for i in range(self.d0, d):
            a(f"s_waitcnt vmcnt({self.d0 - 1 + (i - self.d0 + 1) // 2})")
            self.kload(i)
        for i in range(d, n + at):
            a(f"s_waitcnt vmcnt({d - 1})")
            if i == d:
                self.fstamp(8)
            self.kload(i) if i < n else self.vload(i - n)
            if i == n - 1:
                a("s_waitcnt lgkmcnt(0)")
                self.tags()
                a(f"""s_cmp_lg_u32 s{sW}, 3
                s_cbranch_scc1 L_h_census
                s_lshl_b32 s{sT0}, s{sG}, 7
                s_lshl_b32 s{sT1}, s{sJ}, 2
                s_add_u32 s{sT0}, s{sT0}, s{sT1}
                s_add_u32 s{sT0}, s{sT0}, {WS_HI}
                v_mov_b32 v{t0}, s{sT0}
                v_mov_b32 v{t1}, s{sHX}
                global_store_dword v{t0}, v{t1}, {sp(WS)}
                L_h_census:""")
            if i == n + d - 1:
                self.stamp(2)
                self.kreads(self.nh)
            while 2 * done + 1 <= i - d - n:
                self.vperm(done, self.nh)
                done += 1
        a(f"s_waitcnt vmcnt({self.hq_wait})\ns_barrier")
        self.fstamp(9)
        self.qloads(WS)
        self.census_load(0)
        a("s_barrier")
        for i in range(at, nv - 4):
            self.vload(i)
        self.vload_last(self.nh, n - (nv - 4))
        rest = nv - at
        if self.dn_early:
            a(f"s_barrier\ns_min_u32 s{sT0}, s{sG}, 6\ns_sub_u32 s{sT0}, s{sG}, s{sT0}\ns_lshl_b32 s{sT0}, s{sT0}, 18\nv_subrev_u32 v{aFD}, s{sT0}, v{aFD}")
            for jj in range(4):
                a(f"global_load_dwordx4 {vr(RDN + 4 * jj, 4)}, v{aFD}, {sp(DN)} offset:{1024 * jj}{self.nt}")
            rest += 4
        if at < d:
            a(f"s_waitcnt vmcnt({at + 3 + rest})")
            self.stamp(2)
            self.kreads(self.nh)
        while 2 * done + 1 < at:
            a(f"s_waitcnt vmcnt({at - 1 - (2 * done + 1) + 3 + rest})")
            self.vperm(done, self.nh)
            done += 1
        a(f"s_waitcnt vmcnt({rest})")
        self.stamp(3)
        self.qcheck()
        a("s_cbranch_vccz L_qok_h")
        return done

    def l_issue(self):
        a = self.a
        XA, XB = RA, RA + 4
        a("L_l_start:")
        a(f"""v_lshlrev_b32 v{t0}, 4, v{vL}
        v_lshrrev_b32 v{t2}, 3, v{vL}
        s_and_b32 s{sT2}, s{sJ}, 1
        s_lshl_b32 s{sT2}, s{sT2}, 2
        s_add_u32 s{sT2}, s{sT2}, s{sW}
        s_lshl_b32 s{sT0}, s{sT2}, 7
        v_lshl_add_u32 v{t1}, v{t2}, 4, s{sT0}
        s_lshl_b32 s{sT0}, s{sT2}, 19
        s_lshl_b32 s{sT1}, s{sG}, 10
        s_add_u32 s{sT0}, s{sT0}, s{sT1}
        s_bfe_u32 s{sT1}, s{sJ}, 0x30001
        s_lshl_b32 s{sT1}, s{sT1}, 7
        s_add_u32 s{sT0}, s{sT0}, s{sT1}
        v_lshlrev_b32 v{t2}, 16, v{t2}
        v_and_b32 v{t3}, 7, v{vL}
        v_lshl_add_u32 v{t2}, v{t3}, 4, v{t2}
        v_add_u32 v{t2}, s{sT0}, v{t2}
        """)
        a(f"""v_and_b32 v{t3}, 1, v{vL}
        v_lshlrev_b32 v{vD}, 4, v{t3}
        v_lshl_add_u32 v{vD}, v{vGp}, 2, v{vD}
        v_bfe_u32 v{t3}, v{vL}, 1, 2
        v_add_u32 v{vD}, v{t3}, v{vD}""")
        a(f"""
        s_lshl_b32 s{sT0}, s{sJ}, 6
        v_lshl_add_u32 v{t3}, v{vD}, 1, s{sT0}
        s_waitcnt lgkmcnt(0)""")
        a(f"""global_load_dwordx4 {vr(XA, 4)}, v{t0}, {sp(X)}
        global_load_dwordx4 {vr(XB, 4)}, v{t1}, {sp(X)}
        global_load_ushort v{vXH}, v{t3}, {sp(X)}""")
        for i in range(8):
            a(f"global_load_dwordx4 {vr(RW + 4 * i, 4)}, v{t2}, {sp(WQ)}{self.nt}")
            if i < 7:
                a(f"v_add_u32 v{t2}, 0x2000, v{t2}")
        a(f"s_load_dword s{sE}, {sp(WS)}, 0\ns_branch L_l_rest")

    def l_rest(self):
        a = self.a
        XA, XB, XF, ACC, XN = RA, RA + 4, RA + 8, RK + 16, RD
        RV = RW
        a("L_l_rest:\ns_barrier")
        self.stamp(1)
        self.consts()
        self.addr_att(self.nl)
        self.addr_w()
        self.vzero(self.nl)
        a("s_waitcnt vmcnt(8)")
        for i in range(4):
            a(f"v_lshlrev_b32 v{XF + 2 * i}, 16, v{XA + i}\nv_and_b32 v{XF + 2 * i + 1}, 0xffff0000, v{XA + i}")
        a(f"v_add_f32 v{t0}, v{XF}, v{XF + 1}")
        for i in range(2, 8):
            a(f"v_add_f32 v{t0}, v{t0}, v{XF + i}")
        self.allred(t0, "v_add_f32")
        a(f"v_mul_f32 v{t0}, 0x3b000000, v{t0}")
        for i in range(8):
            a(f"v_sub_f32 v{XF + i}, v{XF + i}, v{t0}")
        a(f"v_mul_f32 v{t1}, v{XF}, v{XF}")
        for i in range(1, 8):
            a(f"v_fmac_f32 v{t1}, v{XF + i}, v{XF + i}")
        self.allred(t1, "v_add_f32")
        a(f"v_mul_f32 v{t1}, 0x3b000000, v{t1}")
        self.ln_scale(t0, t1, t2)
        a(f"""v_rcp_f32 v{t2}, v{t1}
        v_fma_f32 v{t3}, -v{t1}, v{t2}, 1.0
        v_fmac_f32 v{t2}, v{t3}, v{t2}""")
        for i in range(4):
            a(f"v_lshlrev_b32 v{XF + 2 * i}, 16, v{XB + i}\nv_and_b32 v{XF + 2 * i + 1}, 0xffff0000, v{XB + i}")
        for i in range(8):
            a(f"v_sub_f32 v{XF + i}, v{XF + i}, v{t0}")
        for i in range(4):
            a(f"v_cvt_pk_bf16_f32 v{XB + i}, v{XF + 2 * i}, v{XF + 2 * i + 1}")
        for i in range(4):
            a(f"v_lshlrev_b32 v{XF + 2 * i}, 16, v{XB + i}\nv_and_b32 v{XF + 2 * i + 1}, 0xffff0000, v{XB + i}")
        for i in range(8):
            a(f"""v_mul_f32 v{ACC + i}, v{XF + i}, v{t2}
            v_fma_f32 v{XF + i}, -v{ACC + i}, v{t1}, v{XF + i}
            v_fmac_f32 v{ACC + i}, v{XF + i}, v{t2}""")
        for i in range(4):
            a(f"v_cvt_pk_bf16_f32 v{XN + i}, v{ACC + 2 * i}, v{ACC + 2 * i + 1}")
        for i in range(8):
            a(f"v_mov_b32 v{ACC + i}, 0")
        a(f"""v_and_b32 v{t0}, 7, v{vL}
        v_lshlrev_b32 v{t0}, 7, v{t0}
        v_lshl_add_u32 v{t0}, v{vGp}, 5, v{t0}
        s_lshl_b32 s{sT0}, s{sW}, 2
        s_add_u32 s{sT0}, s{sT0}, {L_QP}
        v_add_u32 v{vA}, s{sT0}, v{t0}
        v_lshlrev_b32 v{vB}, 4, v{vL}
        s_lshl_b32 s{sT0}, s{sG}, 13
        s_and_b32 s{sT1}, s{sJ}, 1
        s_lshl_b32 s{sT1}, s{sT1}, 12
        s_add_u32 s{sT0}, s{sT0}, s{sT1}
        s_bfe_u32 s{sT1}, s{sJ}, 0x30001
        s_lshl_b32 s{sT1}, s{sT1}, 9
        s_add_u32 s{sT0}, s{sT0}, s{sT1}
        s_add_u32 s{sT0}, s{sT0}, {WS_QA}
        v_lshl_add_u32 v{vC}, v{vL}, 3, s{sT0}""")
        a("s_waitcnt lgkmcnt(0)")
        self.tags()
        PR = RK + 24
        for p in range(4):
            a(f"s_waitcnt vmcnt({6 - 2 * p})")
            if p == 3:
                self.stamp(2)
            self.perm_pair(RV + 8 * p, RV + 8 * p + 4, PR, 1, 0)
            for t in range(8):
                a(f"v_dot2c_f32_bf16 v{ACC + t}, v{PR + t}, v{XN + p}")
        for t in range(4):
            a(f"v_permlane32_swap_b32 v{ACC + t}, v{ACC + t + 4}")
        for t in range(4):
            a(f"v_add_f32 v{ACC + t}, v{ACC + t}, v{ACC + t + 4}")
        for t in range(2):
            a(f"v_permlane16_swap_b32 v{ACC + t}, v{ACC + t + 2}")
        for t in range(2):
            a(f"v_add_f32 v{ACC + t}, v{ACC + t}, v{ACC + t + 2}")
        for t in range(2):
            a(f"v_add_f32_dpp v{ACC + t}, v{ACC + t}, v{ACC + t} row_ror:8 {DPP}")
        a(f"""s_mov_b32 exec_lo, 0x00ff00ff
        s_mov_b32 exec_hi, 0x00ff00ff
        ds_write2_b32 v{vA}, v{ACC}, v{ACC + 1} offset0:0 offset1:4
        s_mov_b64 exec, -1
        s_waitcnt lgkmcnt(0)
        s_barrier
        s_cmp_lg_u32 s{sW}, 0
        s_cbranch_scc1 L_q_pubdone
        ds_read_b128 {vr(ACC, 4)}, v{vB} offset:{L_QP}
        s_lshl_b32 s{sT0}, s{sG}, 7
        s_lshl_b32 s{sT1}, s{sJ}, 2
        s_add_u32 s{sT0}, s{sT0}, s{sT1}
        s_add_u32 s{sT0}, s{sT0}, {WS_HI}
        v_mov_b32 v{t0}, s{sT0}
        v_mov_b32 v{t1}, s{sHX}
        global_store_dword v{t0}, v{t1}, {sp(WS)}
        s_waitcnt lgkmcnt(0)
        v_add_f32 v{ACC}, v{ACC}, v{ACC + 1}
        v_add_f32 v{ACC + 2}, v{ACC + 2}, v{ACC + 3}
        v_mov_b32 v{ACC + 1}, s{sE}
        v_add_f32 v{ACC}, v{ACC}, v{ACC + 2}
        global_store_dwordx2 v{vC}, {vr(ACC, 2)}, {sp(WS)}
        v_add_u32 v{vC}, {WS_QB - WS_QA}, v{vC}
        {"" if self.qb_late else f"global_store_dwordx2 v{vC}, {vr(ACC, 2)}, {sp(WS)} sc1"}
        L_q_pubdone:
        s_barrier""")
        self.stamp(3)
        n = self.ul
        a(f"s_lshl_b32 s{sT3}, s{sW}, 12")
        if self.lfast:
            self.sleep(self.d_q)
            self.qloads(WS)
            self.census_load(0)
            a("s_barrier")
        for i in range(n):
            self.kload(i)
        if self.lp:
            a("s_barrier")
        for jj in range(self.lp):
            self.wo_load(jj)
        if self.lfast:
            a(f"s_lshl_b32 s{sT0}, s{sW}, 2\nv_mov_b32 v{vA}, s{sT0}\nv_mov_b32 v{vB}, 0\ns_waitcnt vmcnt({n + self.lp})")
            self.qcheck()
            self.qstage()
            a(f"""s_cmp_lg_u64 vcc, 0
            s_cselect_b32 s{sT0}, 1, 0
            v_mov_b32 v{t1}, s{sT0}
            ds_write_b32 v{vA}, v{t1} offset:{L_OK}
            s_waitcnt lgkmcnt(0)
            s_barrier
            ds_read_b128 {vr(t0, 4)}, v{vB} offset:{L_OK}
            s_waitcnt lgkmcnt(0)
            v_or3_b32 v{t0}, v{t0}, v{t1}, v{t2}
            v_or_b32 v{t0}, v{t0}, v{t3}
            v_readfirstlane_b32 s{sT0}, v{t0}
            s_cmp_lg_u32 s{sT0}, 0
            s_cbranch_scc1 L_l_second""")
            a(f"s_cmp_lg_u32 s{sW}, 0\ns_cbranch_scc1 L_l_first\nglobal_store_dwordx2 v{vC}, {vr(ACC, 2)}, {sp(WS)} sc1\nL_l_first:")
            self.vload_last(self.nl, n)
            a("s_barrier")
            self.qreads()
            for jj in range(self.lp, self.lw):
                self.wo_load(jj)
            self.census_eval()
            a(f"s_waitcnt vmcnt({4 + self.lw})")
            self.kreads(self.nl)
            a("s_waitcnt lgkmcnt(0)\ns_branch L_qk_l\nL_l_second:")
        lv, lq = self.lv, self.lq
        if lv:
            a("s_barrier")
        for i in range(lv):
            self.vload(i)
        a(f"s_cmp_lg_u32 s{sW}, 0\ns_cbranch_scc1 L_l_k0")
        if self.qb_late:
            a(f"global_store_dwordx2 v{vC}, {vr(ACC, 2)}, {sp(WS)} sc1")
        a(f"s_waitcnt vmcnt({n - 1 + self.lp + lv + self.qb_late})\nL_l_k0:\ns_barrier")
        self.fstamp(8)
        self.qloads(WS)
        self.census_load(0)
        a("s_barrier")
        if n < 4:
            self.vload_last(self.nl, n)
        for i in range(lv, 4 if n == 4 else 0):
            self.vload(i)
        if lq:
            a("s_barrier")
        for jj in range(self.lp, self.lp + lq):
            self.wo_load(jj)
        a(f"s_waitcnt vmcnt({3 + 4 + self.lp + lq})")
        self.fstamp(9)
        self.kreads(self.nl)
        for jj in range(self.lp + lq, self.lp + lq + self.lr):
            self.wo_load(jj)
        a(f"s_waitcnt vmcnt({4 - lv + lq + self.lr})")
        self.qcheck()
        a("s_cbranch_vccz L_qok_l")

    def attention(self, role, nt, done, younger, groups):
        a = self.a
        ns = 4 * nt
        RO = RK + 32 if nt == 1 else RK
        a(f"L_qpoll_{role}:")
        self.qloads(sQP)
        self.census_load(0)
        self.spin()
        a(f"""s_add_u32 s{sQN}, s{sQN}, 1
        s_cmp_eq_u32 s{sQN}, {self.qa_tries}
        s_cselect_b32 s{sT0}, {WS_QB - WS_QA}, 0
        s_cselect_b32 s{sCM}, 16, s{sCM}
        s_add_u32 s{sQP}, s{sQP}, s{sT0}
        s_addc_u32 s{sQP + 1}, s{sQP + 1}, 0
        s_waitcnt vmcnt(0)""")
        self.qcheck()
        a(f"s_cbranch_vccnz L_qpoll_{role}\nL_qok_{role}:")
        self.stamp(4)
        self.qstage()
        a("s_waitcnt lgkmcnt(0)\ns_barrier")
        self.qreads()
        for jj in range(self.lq + self.lr, younger if role == "l" else 0):
            self.wo_load(self.lp + jj)
        self.census_eval()
        a(f"L_qk_{role}:")
        for s in range(4):
            a(f"s_waitcnt lgkmcnt({3 - s})")
            for tau in range(nt):
                c = "0" if s == 0 else vr(RD + 4 * tau, 4)
                a(f"v_mfma_f32_16x16x32_bf16 {vr(RD + 4 * tau, 4)}, {vr(RK + 16 * tau + 4 * s, 4)}, {vr(RA + 4 * s, 4)}, {c}")
        a(f"s_mov_b32 s{sT2}, 0x3db504f3\ns_mov_b32 s{sT3}, 0x3db504f3")
        for rnd in range(2):
            for i in range(ns // 2):
                a(f"v_cvt_pk_bf16_f32 v{RP + i}, v{RD + 2 * i}, v{RD + 2 * i + 1}")
            for i in range(ns // 2):
                a(f"v_lshlrev_b32 v{RD + 2 * i}, 16, v{RP + i}\nv_and_b32 v{RD + 2 * i + 1}, 0xffff0000, v{RP + i}")
            if rnd == 0:
                for i in range(ns // 2):
                    a(f"v_pk_mul_f32 {vr(RD + 2 * i, 2)}, {vr(RD + 2 * i, 2)}, {sp(sT2)}")
        if groups < 4:
            m = ((1 << 64) - 1) ^ ((1 << 16 * groups) - 1)
            a(f"s_mov_b32 exec_lo, {hex(m & 0xffffffff)}\ns_mov_b32 exec_hi, {hex(m >> 32)}")
            for i in range(ns - 4, ns):
                a(f"v_mov_b32 v{RD + i}, 0xff7f0000")
            a("s_mov_b64 exec, -1")
        a(f"v_max3_f32 v{t0}, v{RD}, v{RD + 1}, v{RD + 2}")
        for i in range(3, ns - 1, 2):
            a(f"v_max3_f32 v{t0}, v{t0}, v{RD + i}, v{RD + i + 1}")
        a(f"v_max_f32 v{t0}, v{t0}, v{RD + ns - 1}\ns_mov_b32 s{sT2}, {LOG2E}\ns_mov_b32 s{sT3}, {LOG2E}")
        self.allred(t0, "v_max_f32", rors=())
        a(f"v_mul_f32 v{t2}, 0xbfb8aa3b, v{t0}")
        for i in range(ns // 2):
            a(f"v_pk_fma_f32 {vr(RD + 2 * i, 2)}, {vr(RD + 2 * i, 2)}, {sp(sT2)}, {vr(t2, 2)} op_sel_hi:[1,1,0]")
        for i in range(ns):
            a(f"v_exp_f32 v{RD + i}, v{RD + i}")
        a(f"v_pk_add_f32 {vr(RX, 2)}, {vr(RD, 2)}, {vr(RD + 2, 2)}")
        for i in range(4, ns, 2):
            a(f"v_pk_add_f32 {vr(RX, 2)}, {vr(RX, 2)}, {vr(RD + i, 2)}")
        cvt = [f"v_cvt_pk_bf16_f32 v{RP + i}, v{RD + 2 * i}, v{RD + 2 * i + 1}" for i in range(ns // 2)]
        a(f"v_add_f32 v{t1}, v{RX}, v{RX + 1}\nv_mov_b32 v{t3}, v{t1}")
        a(cvt[0]); a(cvt[1])
        a(f"v_permlane16_swap_b32 v{t1}, v{t3}\nv_add_f32 v{t1}, v{t1}, v{t3}\nv_mov_b32 v{t3}, v{t1}")
        for c in cvt[2:4]:
            a(c)
        a(f"v_permlane32_swap_b32 v{t1}, v{t3}\nv_add_f32 v{t1}, v{t1}, v{t3}")
        a(f"ds_write_b64 v{aMW}, {vr(t0, 2)} offset:{L_MX}")
        for c in cvt[4:]:
            a(c)
        self.stamp(5)
        npair = 2 * nt

        def mf(t, half):
            d = vr(RO + 4 * t, 4)
            if nt == 1:
                return f"v_mfma_f32_16x16x16_bf16 {d}, {vr(RP, 2)}, {vr(RB + 2 * t, 2)}, 0"
            if half == 0:
                return f"v_mfma_f32_16x16x32_bf16 {d}, {vr(RP, 4)}, {vr(RB + 4 * t, 4)}, 0"
            if nt == 3:
                return f"v_mfma_f32_16x16x16_bf16 {d}, {vr(RP + 4, 2)}, {vr(RV + 2 * t, 2)}, {d}"
            return f"v_mfma_f32_16x16x32_bf16 {d}, {vr(RP + 4, 4)}, {vr(RV + 4 * t, 4)}, {d}"

        def wait_pair(p, ml):
            a(f"s_waitcnt vmcnt({ns - 1 - (2 * p + 1) + younger + ml})")
        first = 4 if nt > 1 else 1
        for p in range(done, first):
            wait_pair(p, 0)
            self.fstamp(10)
            self.vperm(p, nt)
        done = max(done, first)
        early = [mf(t, 0) for t in range(8)] if nt > 1 else [""] * 8
        a(f"""{early[0]}
        {early[1]}
        s_waitcnt lgkmcnt(0)
        s_barrier
        ds_read_b128 {vr(RX, 4)}, v{aMR} offset:{L_MX}
        ds_read_b128 {vr(RX + 4, 4)}, v{aMR} offset:{L_MX + 16}
        {early[2]}
        {early[3]}
        {early[4]}
        s_waitcnt lgkmcnt(0)
        v_max3_f32 v{t0}, v{RX}, v{RX + 2}, v{RX + 4}
        v_max_f32 v{t0}, v{t0}, v{RX + 6}
        {early[5]}
        v_mul_f32 v{t3}, 0xbfb8aa3b, v{t0}
        v_fma_f32 v{vF}, v{RX}, s{sT2}, v{t3}
        {early[6]}
        v_fma_f32 v{vF + 1}, v{RX + 2}, s{sT2}, v{t3}
        v_fma_f32 v{vF + 2}, v{RX + 4}, s{sT2}, v{t3}
        {early[7]}
        v_fma_f32 v{vF + 3}, v{RX + 6}, s{sT2}, v{t3}""")
        for i in range(4):
            a(f"v_exp_f32 v{vF + i}, v{vF + i}")
        a(f"v_mov_b32 v{t1}, s{sE}\nv_mul_f32 v{t2}, v{vF}, v{RX + 1}\nv_mov_b32 v{t3}, s{sE}")
        for i in range(1, 4):
            a(f"v_fmac_f32 v{t2}, v{vF + i}, v{RX + 2 * i + 1}")
        self.pub("ml" + role, f"global_store_dwordx4 v{aML}, {vr(t0, 4)}, {sp(WS)}")
        for p in range(done, npair - 1):
            wait_pair(p, 1)
            self.fstamp(11)
            self.vperm(p, nt)
        last = npair - 1
        if done <= last:
            wait_pair(last, 1)
        self.stamp(6)
        s0, s1 = RV + 8 * last, RV + 8 * last + 4

        def pm(t):
            dst = {1: RB + 2 * t + 1, 3: RV + 2 * t + 1, 4: RV + 4 * t + 3}[nt]
            if done <= last:
                a(f"v_perm_b32 v{dst}, v{s1 + t // 2}, v{s0 + t // 2}, s{sPHI if t % 2 else sPLO}")

        def wr(k):
            base = aOW if k < 2 else aOX
            a(f"ds_write2_b32 v{base}, v{RO + 8 * k}, v{RO + 8 * k + 4} offset0:{2 * (k % 2) * OR_PLANE} offset1:{(2 * (k % 2) + 1) * OR_PLANE}")
        pm(0); pm(1); pm(2)
        for t in range(8):
            a(mf(t, 1))
            if t + 3 < 8:
                pm(t + 3)
        for k in range(4):
            wr(k)
        a("s_waitcnt lgkmcnt(0)\ns_barrier")
        for w in range(4):
            a(f"ds_read2_b32 {vr(RD + 2 * w, 2)}, v{self.a_or(nt) + w if w else aOR} offset0:0 offset1:{OR_PLANE}")
        self.pub_cmp()
        a(f"""s_waitcnt lgkmcnt(2)
        v_pk_mul_f32 {vr(RD, 2)}, {vr(RD, 2)}, {vr(vF, 2)} op_sel_hi:[1,0]
        v_pk_fma_f32 {vr(RD, 2)}, {vr(RD + 2, 2)}, {vr(vF, 2)}, {vr(RD, 2)} op_sel:[0,1,0] op_sel_hi:[1,1,1]
        s_waitcnt lgkmcnt(0)
        v_pk_fma_f32 {vr(RD, 2)}, {vr(RD + 4, 2)}, {vr(vF + 2, 2)}, {vr(RD, 2)} op_sel_hi:[1,0,1]
        v_pk_fma_f32 {vr(RD, 2)}, {vr(RD + 6, 2)}, {vr(vF + 2, 2)}, {vr(RD, 2)} op_sel:[0,1,0] op_sel_hi:[1,1,1]""")
        self.tag(RD, RD, sTA4)
        self.tag(RD + 1, RD + 1, sTA4)
        self.pub("a1" + role, f"global_store_dwordx2 v{aA1}, {vr(RD, 2)}, {sp(WS)}", cmp=False)
        if role == "h" or self.lw < 8:
            a("s_barrier")
        self.stamp(7)

    def notice(self):
        self.a(f"""s_lshl_b32 s{sT0}, s{sJ}, 2
        s_add_u32 s{sT0}, s{sT0}, s{sW}
        s_cmp_lg_u32 s{sT0}, 3
        s_cbranch_scc1 L_no_notice
        s_mov_b64 exec, 3
        global_store_dword v{vA}, v{vB}, {sp(WS)} sc1
        s_mov_b64 exec, -1
        L_no_notice:""")

    def w_tail(self):
        a = self.a
        if self.flag:
            a(f"""s_lshl_b32 s{sT0}, s{sG}, 7
            s_add_u32 s{sT0}, s{sT0}, {WS_FL}
            v_lshlrev_b32 v{vA}, 13, v{vL}
            v_and_b32 v{vA}, 0x2000, v{vA}
            v_add_u32 v{vA}, s{sT0}, v{vA}
            v_mov_b32 v{vB}, s{sE}
            s_lshr_b32 s{sT0}, s{sG}, 2
            s_lshl_b32 s{sT0}, s{sT0}, 13
            s_add_u32 s{sT0}, s{sT0}, {WS_FL}
            v_and_b32 v{vC}, 7, v{vL}
            v_lshlrev_b32 v{vC}, 7, v{vC}
            v_add_u32 v{vC}, s{sT0}, v{vC}""")
        for jj in range(self.lw, 8):
            self.wo_load(jj)
        a(f"v_lshlrev_b32 v{vXH}, 16, v{vXH}\nv_cmp_gt_u32 {sp(sM[0])}, 48, v{vL}")
        WT = RX + 4
        if self.wprime:
            ml_load = f"global_load_dwordx4 {vr(RX, 4)}, v{aMG}, {sp(WS)} sc1"
            a1_load = f"global_load_dwordx4 {vr(RA, 4)}, v{aAG}, {sp(WS)} sc1"
            ml_check = f"""v_mov_b32 v{t2}, v{RX}
        v_xor_b32 v{t0}, s{sE}, v{RX + 1}
        v_xor_b32 v{t1}, s{sE}, v{RX + 3}
        v_or_b32 v{t0}, v{t0}, v{t1}
        v_cmp_ne_u32 vcc, 0, v{t0}"""
            for p in range(4):
                last = 2 * p + 1
                a(f"s_waitcnt vmcnt({7 - last + (2 if last < self.lw else 0)})")
                if p == 3:
                    a(ml_load)
                    a(a1_load)
                    self.census_load(64)
                self.perm_pair(RW + 8 * p, RW + 8 * p + 4, RWB, 4, p)
            self.stamp(8)
            a(f"s_waitcnt vmcnt(2)\n{ml_check}\ns_cbranch_vccz L_mlok\nL_mlpoll:\n{ml_load}")
            self.spin()
            a(f"s_waitcnt vmcnt(0)\n{ml_check}\ns_cbranch_vccnz L_mlpoll\n{a1_load}\nL_mlok:")
        else:
            for p in range(4):
                last = 2 * p + 1
                extra = 2 if p == 3 else 0
                a(f"s_waitcnt vmcnt({7 - last + (2 if last < self.lw else 0) + extra})")
                self.perm_pair(RW + 8 * p, RW + 8 * p + 4, RWB, 4, p)
                if p == 2:
                    self.census_load(64)
                    a(f"global_load_dwordx4 {vr(RX, 4)}, v{aMG}, {sp(WS)} sc1")
            self.stamp(8)
            a(f"s_branch L_mlwait\nL_mlpoll:\nglobal_load_dwordx4 {vr(RX, 4)}, v{aMG}, {sp(WS)} sc1")
            self.spin()
            a("L_mlwait:\ns_waitcnt vmcnt(0)")
            a(f"""v_xor_b32 v{t0}, s{sE}, v{RX + 1}
        v_xor_b32 v{t1}, s{sE}, v{RX + 3}
        v_or_b32 v{t0}, v{t0}, v{t1}
        v_cmp_ne_u32 vcc, 0, v{t0}
        v_mov_b32 v{t2}, v{RX}
        s_cbranch_vccnz L_mlpoll""")
            a(f"global_load_dwordx4 {vr(RA, 4)}, v{aAG}, {sp(WS)} sc1")
        self.allred(t2, "v_max_f32", rors=(8, 4, 2))
        a(f"""v_sub_f32 v{WT}, v{RX}, v{t2}
        v_mul_f32 v{WT}, {LOG2E}, v{WT}
        v_exp_f32 v{WT}, v{WT}
        v_mul_f32 v{t2}, v{WT}, v{RX + 2}""")
        self.allred(t2, "v_add_f32", rors=(8, 4, 2))
        a(f"v_rcp_f32 v{t2}, v{t2}\nv_mul_f32 v{WT}, v{WT}, v{t2}")
        self.poll("a1poll", [f"global_load_dwordx4 {{}}, v{aAG}, {sp(WS)} sc1"], sTA4, RD, 1, [RA], primed=True)
        self.stamp(9)
        if self.flag == 1:
            self.notice()
        for i in (0, 2):
            a(f"v_pk_mul_f32 {vr(RD + i, 2)}, {vr(RD + i, 2)}, {vr(WT, 2)} op_sel_hi:[1,0]")
        self.rs4(RD)
        for k in (8, 4, 2):
            a(f"v_add_f32_dpp v{RD}, v{RD}, v{RD} row_ror:{k} {DPP}")
        a(f"""v_cvt_pk_bf16_f32 v{RD}, v{RD}, v{RD}
        ds_write_b16 v{aVW}, v{RD} offset:{L_OV}
        s_waitcnt lgkmcnt(0)
        s_barrier
        ds_read_b128 {vr(RX, 4)}, v{aVR} offset:{L_OV}""")
        self.pub_cmp()
        a("s_waitcnt lgkmcnt(0)")
        self.matvec8(lambda t: f"v_mfma_f32_16x16x32_bf16 {vr(RWD + 4 * t, 4)}, {vr(RX, 4)}, {vr(RWB + 4 * t, 4)}, 0", RWD, RD, sTB4)
        self.pub("b1", f"global_store_dwordx4 v{aB1}, {vr(RD, 4)}, {sp(WS)}", cmp=False)
        if self.flag == 2:
            self.notice()
        self.stamp(10)
        a(f"""s_cmp_ge_u32 s{sW}, 2
        s_cbranch_scc1 L_exit
        s_cmp_eq_u32 s{sW}, 1
        s_cbranch_scc1 L_final""")
        self.sleep(self.d_b1)
        self.poll("b1poll", [f"global_load_dwordx4 {{}}, v{aBG}, {sp(WS)} sc1", f"global_load_dwordx4 {{}}, v{aBG}, {sp(WS)} offset:1024 sc1"],
                  sTB4, RV, 1, [RA])
        self.stamp(11)
        a(f"""v_pk_add_f32 {vr(RV, 2)}, {vr(RV, 2)}, {vr(RV + 4, 2)}
        v_pk_add_f32 {vr(RV + 2, 2)}, {vr(RV + 2, 2)}, {vr(RV + 6, 2)}""")
        self.rs4(RV)
        a(f"v_add_f32_dpp v{RV}, v{RV}, v{RV} row_ror:8 {DPP}")
        self.tag(RV, RV, sTA4)
        a(f"global_store_dword v{aB2}, v{RV}, {sp(WS)} sc1")
        self.census_eval(keep=True)
        if self.d_cl:
            a(f"s_sub_u32 s{sQN}, s{sSPIN}, 1")
        if self.flag:
            a(f"L_notices:\nglobal_load_dword v{t2}, v{vC}, {sp(WS)} sc1")
            self.spin()
            a(f"s_waitcnt vmcnt(0)\nv_cmp_ne_u32 vcc, s{sE}, v{t2}\ns_cbranch_vccnz L_notices")
            self.sleep(self.d_fl)
        else:
            self.sleep(self.d_b2a)
        if self.b2mask:
            a(f"L_b2poll:\nglobal_load_dwordx4 {vr(RA, 4)}, v{aHG}, {sp(WS)} sc1")
            self.spin()
            a("s_waitcnt vmcnt(0)")
            self.check4(RA, sTA4)
            for e in range(4):
                a(f"v_and_b32 v{RV + e}, 0xffffff00, v{RA + e}")
            a("s_mov_b64 exec, vcc\ns_cbranch_execnz L_b2poll\ns_mov_b64 exec, -1")
        else:
            self.poll("b2poll", [f"global_load_dwordx4 {{}}, v{aHG}, {sp(WS)} sc1"], sTA4, RV, 1, [RA])
        self.stamp(12)
        self.rs4(RV)
        self.pub_cmp()
        a(f"v_add_f32_dpp v{RV}, v{RV}, v{RV} row_ror:8 {DPP}")
        self.bf16r(RV, RV)
        a(f"""v_add_f32 v{RV}, v{RV}, v{vXH}
        v_cvt_pk_bf16_f32 v{RV}, 0, v{RV}""")
        self.tag(RV + 1, RV, sTH4)
        self.pub("b2b", f"global_store_dword v{aHB}, v{RV + 1}, {sp(WS)}", cmp=False)
        if self.d_cl:
            a(f"""s_sub_u32 s{sQN}, s{sQN}, s{sSPIN}
            v_mov_b32 v{t0}, 0
            v_mov_b32 v{t1}, s{sQN}
            ds_write_b32 v{t0}, v{t1} offset:{L_HV + 128}""")
        a(f"""ds_write_b32 v{aHW}, v{RV} offset:{L_HV}
        L_final:
        s_cmp_ge_u32 s{sG}, 4
        s_cbranch_scc1 L_exit
        s_waitcnt lgkmcnt(0)
        s_barrier
        ds_read_b32 v{vXH}, v{aHR} offset:{L_HV}
        s_lshl_b32 s{sT0}, s2, 1
        s_add_u32 s{sT0}, s{sT0}, s{sW}
        s_cmp_lg_u32 s{sT0}, 1
        s_cbranch_scc1 L_epoch_done
        s_mov_b64 exec, 1
        v_mov_b32 v{t0}, 0
        v_mov_b32 v{t1}, s{sE}
        global_store_dword v{t0}, v{t1}, {sp(WS)} sc1
        s_mov_b64 exec, -1
        L_epoch_done:""")
        if self.ctrig == 1:
            a(f"""s_add_u32 s{sT0}, s{sA1G}, {16 * 2048}
            v_lshl_add_u32 v{aBG}, v{vL}, 4, s{sT0}""")
            self.poll("hseen", [f"global_load_dwordx4 {{}}, v{aBG}, {sp(WS)} sc1", f"global_load_dwordx4 {{}}, v{aBG}, {sp(WS)} offset:1024 sc1"],
                      sTH4, RV, 1, [RA])
        else:
            a(f"""s_lshl_b32 s{sT0}, s{sG}, 13
            s_lshl_b32 s{sT1}, s{sJ}, 9
            s_add_u32 s{sT0}, s{sT0}, s{sT1}
            s_add_u32 s{sT0}, s{sT0}, {WS_E}
            v_and_b32 v{aBG}, 31, v{vL}
            v_lshl_add_u32 v{aBG}, v{aBG}, 4, s{sT0}""")
            self.poll("eseen", [f"global_load_dwordx4 {{}}, v{aBG}, {sp(WS)} sc1"], sTA4, RV, 1, [RA])
        if self.d_cl:
            a(f"""v_mov_b32 v{t0}, 0
            ds_read_b32 v{t1}, v{t0} offset:{L_HV + 128}
            s_waitcnt lgkmcnt(0)
            v_readfirstlane_b32 s{sT0}, v{t1}
            s_cmp_lg_u32 s{sT0}, 0
            s_cbranch_scc1 L_not_last""")
            self.sleep(self.d_cl)
            a("L_not_last:")
        if self.out_pw:
            a(f"global_load_ushort v{t2}, v{aOut}, {sp(OUT)}")
        a("s_waitcnt lgkmcnt(0)")
        self.sleep(self.d_c)
        self.poll("cpoll", [f"global_load_dwordx4 {{}}, v{aC0}, {sp(WS)} sc1", f"global_load_dwordx4 {{}}, v{aC1}, {sp(WS)} sc1"],
                  sTA4, RV, 1, [RA])
        self.stamp(13)
        a(f"""s_mov_b64 exec, {sp(sM[0])}
        v_pk_add_f32 {vr(RV, 2)}, {vr(RV, 2)}, {vr(RV + 4, 2)}
        v_pk_add_f32 {vr(RV + 2, 2)}, {vr(RV + 2, 2)}, {vr(RV + 6, 2)}
        s_mov_b64 exec, -1""")
        self.rs4(RV)
        for k in (8, 4, 2, 1):
            a(f"v_add_f32_dpp v{RV}, v{RV}, v{RV} row_ror:{k} {DPP}")
        self.bf16r(RV, RV)
        a(f"""v_add_f32 v{RV}, v{RV}, v{vXH}
        {"s_mov_b32 exec_lo, 0x10001" if self.out_sc else ""}
        {"s_mov_b32 exec_hi, 0x10001" if self.out_sc else ""}
        v_cvt_pk_bf16_f32 v{RV}, v{RV}, v{RV}
        global_store_short v{aOut}, v{RV}, {sp(OUT)}
        s_branch L_exit""")

    def f_tail(self):
        a = self.a
        BG, BU, DW, BD, DR = RK, RK + 16, RV, RV + 16, RB
        ONES, CSG, CSU = RX + 8, RX + 9, RX + 10
        H0, H1, HA = DW, DW + 4, RX
        a(f"""s_cmp_eq_u32 s{sG}, 7
        s_cbranch_scc1 L_exit
        s_lshl_b32 s{sT2}, s{sW}, 12""")
        for i in range(4):
            for base, ptr in ((L_G, GA), (L_U, UP)):
                a(f"s_add_u32 m0, s{sT2}, {base + 1024 * i}\nglobal_load_lds_dwordx4 v{aFG}, {sp(ptr)}{self.nt}")
            if i < 3:
                a(f"v_add_u32 v{aFG}, {8 * 3584}, v{aFG}")
        if self.dn_early:
            DW = RDN
        for jj in range(0 if self.dn_early else 4):
            a(f"global_load_dwordx4 {vr(DW + 4 * jj, 4)}, v{aFD}, {sp(DN)} offset:{1024 * jj}{self.nt}")
        a(f"global_load_dwordx4 {vr(DR + 8, 4)}, v{aEG}, {sp(WS)} sc1")
        self.census_load(64)
        a(f"""v_mov_b32 v{ONES}, 0x3f803f80
        v_mov_b32 v{RX}, 0x3f803f80
        v_mov_b32 v{RX + 1}, 0x3f803f80
        v_mov_b32 v{RX + 2}, 0x3f803f80
        v_mov_b32 v{RX + 3}, 0x3f803f80
        s_waitcnt vmcnt({2 if self.dn_early else 6})
        s_barrier""")
        for base, B in ((L_G, BG), (L_U, BU)):
            for s in range(4):
                for hf in range(2):
                    a(f"ds_read_b64_tr_b16 {vr(B + 4 * s + 2 * hf, 2)}, v{aTR} offset:{base + 8192 * hf + 512 * s}")
        a("s_waitcnt lgkmcnt(0)")
        for s in range(4):
            for B, D in ((BG, DR), (BU, DR + 4)):
                a(f"v_mfma_f32_16x16x32_bf16 {vr(D, 4)}, {vr(RX, 4)}, {vr(B + 4 * s, 4)}, {'0' if s == 0 else vr(D, 4)}")
        a("s_waitcnt vmcnt(0)")
        self.stamp(8)
        for dd in range(4):
            rows = ((0, 1), (2, 3)) if dd < 2 else ((1, 2), (3, 0))
            for p, (lo, hi) in enumerate(rows):
                a(f"v_perm_b32 v{BD + 2 * (2 * dd) + p}, v{DW + 4 * hi + dd}, v{DW + 4 * lo + dd}, s{sPLO}")
                a(f"v_perm_b32 v{BD + 2 * (2 * dd + 1) + p}, v{DW + 4 * hi + dd}, v{DW + 4 * lo + dd}, s{sPHI}")
        a(f"v_mov_b32 v{CSG}, v{DR}\nv_mov_b32 v{CSU}, v{DR + 4}")
        self.census_eval(keep=True)
        a(f"""L_hpoll:
        global_load_dwordx4 {vr(H0, 4)}, v{aHP}, {sp(WS)} sc1
        global_load_dwordx4 {vr(H1, 4)}, v{aHP}, {sp(WS)} offset:256 sc1""")
        self.spin()
        a("s_waitcnt vmcnt(1)")
        self.check4(H0, sTH4, sp(sT2))
        a(f"""v_perm_b32 v{HA}, v{H0 + 1}, v{H0}, s{sPHI}
        v_perm_b32 v{HA + 1}, v{H0 + 3}, v{H0 + 2}, s{sPHI}
        s_waitcnt vmcnt(0)
        v_perm_b32 v{HA + 2}, v{H1 + 1}, v{H1}, s{sPHI}
        v_perm_b32 v{HA + 3}, v{H1 + 3}, v{H1 + 2}, s{sPHI}""")
        self.check4(H1, sTH4)
        a(f"s_or_b64 vcc, vcc, {sp(sT2)}\ns_cbranch_vccnz L_hpoll")
        self.stamp(9)
        SA, SB = RX + 4, RX + 5
        mf = [f"v_mfma_f32_16x16x32_bf16 {vr(D + 4 * s, 4)}, {vr(HA, 4)}, {vr(B + 4 * s, 4)}, 0" for s in range(4) for B, D in ((BG, DR), (BU, DR + 16))]
        a(f"v_dot2_f32_bf16 v{SA}, v{HA}, v{ONES}, 0\nv_dot2_f32_bf16 v{SB}, v{HA}, v{HA}, 0")
        for i in range(1, 4):
            a(f"v_dot2_f32_bf16 v{SA}, v{HA + i}, v{ONES}, v{SA}\nv_dot2_f32_bf16 v{SB}, v{HA + i}, v{HA + i}, v{SB}")
        a(mf[0]); a(mf[1])
        a(f"v_permlane16_swap_b32 v{SA}, v{SB}\nv_add_f32 v{SA}, v{SA}, v{SB}")
        for k, m in zip((8, 4, 2, 1), mf[2:6]):
            a(m)
            a(f"v_add_f32_dpp v{SA}, v{SA}, v{SA} row_ror:{k} {DPP}")
        a(f"v_mov_b32 v{SB}, v{SA}")
        a(mf[6])
        a(f"v_permlane32_swap_b32 v{SA}, v{SB}\nv_add_f32 v{SA}, v{SA}, v{SB}\nv_mul_f32 v{t0}, 0x3b000000, v{SA}\nv_mul_f32 v{t1}, 0x3b000000, v{SA}")
        a(mf[7])
        RS = RX + 6
        a(f"""v_add_f32 v{SA}, v{DR}, v{DR + 5}
        v_permlane16_swap_b32 v{t0}, v{t1}
        v_add_f32 v{SB}, v{DR + 16}, v{DR + 21}
        v_cvt_pk_bf16_f32 v{t2}, v{t0}, v{t0}
        v_add_f32 v{SA}, v{SA}, v{DR + 10}
        v_and_b32 v{t2}, 0xffff0000, v{t2}
        v_add_f32 v{SB}, v{SB}, v{DR + 26}
        v_add_f32 v{SA}, v{SA}, v{DR + 15}
        s_cmp_eq_u32 s{sFAST}, 0
        v_fma_f32 v{SA}, -v{t2}, v{CSG}, v{SA}
        v_fma_f32 v{SB}, -v{t2}, v{CSU}, v{SB}
        v_add_f32 v{SB}, v{SB}, v{DR + 31}
        s_mov_b64 exec, {sp(sKM)}""")
        self.tag(SA, SA, sTA4)
        self.tag(SB, SB, sTA4)
        self.pub("e", f"global_store_dwordx2 v{aES}, {vr(SA, 2)}, {sp(WS)}", cmp=False)
        a("s_mov_b64 exec, -1")
        self.stamp(11)
        a(f"v_fma_f32 v{t1}, -v{t0}, v{t0}, v{t1}\nv_max_f32 v{t1}, 0, v{t1}")
        self.ln_scale(t0, t1, t2)
        a(f"v_rcp_f32 v{RS}, v{t1}")
        self.sleep(self.d_e)
        self.poll("epoll", [f"global_load_dwordx4 {{}}, v{aEG}, {sp(WS)} sc1"], sTA4, H0, 1, [RA])
        self.stamp(12)
        a(f"""v_pk_add_f32 {vr(t2, 2)}, {vr(H0, 2)}, {vr(H0 + 2, 2)}
        v_add_f32_dpp v{t2}, v{t2}, v{t2} quad_perm:[1,0,3,2] {DPP}
        v_add_f32_dpp v{t3}, v{t3}, v{t3} quad_perm:[1,0,3,2] {DPP}
        v_pk_mul_f32 {vr(t2, 2)}, {vr(t2, 2)}, {vr(RS, 2)} op_sel_hi:[1,0]
        v_cvt_pk_bf16_f32 v{t3}, v{t2}, v{t3}
        v_lshlrev_b32 v{t2}, 16, v{t3}
        v_and_b32 v{t3}, 0xffff0000, v{t3}
        v_mul_f32 v{t0}, 0xbfb8aa3b, v{t2}
        v_exp_f32 v{t0}, v{t0}
        v_add_f32 v{t0}, 1.0, v{t0}
        v_rcp_f32 v{t0}, v{t0}
        v_mul_f32 v{t2}, v{t2}, v{t0}""")
        self.bf16r(t2, t2)
        a(f"""v_mul_f32 v{t2}, v{t2}, v{t3}
        v_cvt_pk_bf16_f32 v{t2}, v{t2}, v{t2}
        v_mov_b32_dpp v{t3}, v{t2} row_ror:12 {DPP}
        v_perm_b32 v{HA}, v{t3}, v{t2}, s{sPHI}
        v_mov_b32_dpp v{HA + 1}, v{HA} row_ror:8 {DPP}""")
        self.matvec8(lambda t: f"v_mfma_f32_16x16x16_bf16 {vr(DR + 4 * t, 4)}, {vr(HA, 2)}, {vr(BD + 2 * t, 2)}, 0", DR, H0, sTA4,
                     after="s_mov_b32 exec_hi, 0")
        a(f"global_store_dwordx4 v{aCS}, {vr(H0, 4)}, {sp(WS)} sc1\ns_mov_b64 exec, -1")
        self.stamp(10)
        a("s_branch L_exit")

    def helper(self):
        a = self.a
        per_wg = self.code_bytes // 32
        a(f"""L_helper:
        s_getpc_b64 {sp(sCODE)}
        L_pc:
        s_sub_u32 s{sCODE}, s{sCODE}, L_pc-{NAME}_kernel
        s_subb_u32 s{sCODE + 1}, s{sCODE + 1}, 0
        """)
        if self.codepf == 3:
            a(f"""s_and_b32 s{sT0}, s{sJ}, 15
            s_lshl_b32 s{sT0}, s{sT0}, 10
            v_lshl_add_u32 v{t2}, v{vL}, 4, s{sT0}
            v_min_u32 v{t2}, L_code_end-{NAME}_kernel-4, v{t2}
            s_cmp_lt_u32 s{sJ}, 16
            s_cbranch_scc1 L_nopf
            global_load_dword v{RK}, v{t2}, {sp(sCODE)}
            L_nopf:""")
        else:
            a(f"""s_mul_i32 s{sT0}, s{sJ}, {per_wg}
        v_lshl_add_u32 v{t2}, v{vL}, {(per_wg // 64).bit_length() - 1}, s{sT0}
        v_min_u32 v{t2}, L_code_end-{NAME}_kernel-4, v{t2}""")
            if self.codepf:
                a(f"global_load_dword v{RK}, v{t2}, {sp(sCODE)}")
        a(f"""s_waitcnt lgkmcnt(0)
        s_cmp_lt_u32 s{sJ}, 16
        s_cbranch_scc1 L_helper_l
        s_lshl_b32 s{sT0}, s{sG}, 7
        s_add_u32 s{sT0}, s{sT0}, {WS_HI}
        v_and_b32 v{t0}, 31, v{vL}
        v_lshl_add_u32 v{vB}, v{t0}, 2, s{sT0}
        s_and_b32 s{sJ}, s{sJ}, 15
        s_lshl_b32 s{sT0}, s{sG}, 13
        s_lshl_b32 s{sT1}, s{sJ}, 9
        s_add_u32 s{sT0}, s{sT0}, s{sT1}
        s_add_u32 s{sT0}, s{sT0}, {WS_QA}
        v_lshl_add_u32 v{t0}, v{vL}, 3, s{sT0}
        s_lshl_b32 s{sT1}, s{sJ}, 7
        s_lshl_b32 s{sT0}, s{sG}, 16
        s_add_u32 s{sT0}, s{sT0}, s{sT1}
        s_add_u32 s{sT0}, s{sT0}, {WS_A1}
        v_lshrrev_b32 v{t1}, 3, v{vL}
        v_lshlrev_b32 v{t1}, 11, v{t1}
        v_and_b32 v{t2}, 7, v{vL}
        v_lshl_add_u32 v{t1}, v{t2}, 4, v{t1}
        v_add_u32 v{t1}, s{sT0}, v{t1}
        s_lshl_b32 s{sT0}, s{sG}, 11
        s_lshl_b32 s{sT1}, s{sJ}, 7
        s_add_u32 s{sT0}, s{sT0}, s{sT1}
        s_add_u32 s{sT0}, s{sT0}, {WS_ML}
        v_lshl_add_u32 v{t2}, v{vN}, 3, s{sT0}
        s_barrier
        global_load_dword v{RK + 21}, v{vB}, {sp(WS)}
        global_load_dword v{RK + 1}, v{t0}, {sp(WS)}""")
        for i in range(4):
            a(f"global_load_dwordx4 {vr(RK + 4 + 4 * i, 4)}, v{t1}, {sp(WS)}")
            if i < 3:
                a(f"v_add_u32 v{t1}, 0x4000, v{t1}")
        a(f"""global_load_dword v{RK + 2}, v{t2}, {sp(WS)}
        s_endpgm
        L_helper_l:
        v_mov_b32 v{t0}, {WS_QB}
        s_barrier""")
        if self.b2pw:
            a(f"""v_lshrrev_b32 v{t1}, 3, v{vL}
            v_and_b32 v{t2}, 4, v{t1}
            v_add_u32 v{t1}, v{t2}, v{t1}
            v_lshlrev_b32 v{t1}, 11, v{t1}
            v_and_b32 v{t2}, 7, v{vL}
            v_lshl_add_u32 v{t1}, v{t2}, 4, v{t1}
            s_lshr_b32 s{sT0}, s{sG}, 2
            s_lshl_b32 s{sT0}, s{sT0}, 13
            s_lshl_b32 s{sT1}, s{sJ}, 7
            s_add_u32 s{sT0}, s{sT0}, s{sT1}
            s_add_u32 s{sT0}, s{sT0}, {WS_B2A}
            v_add_u32 v{t1}, s{sT0}, v{t1}
            global_load_dword v{RK + 10}, v{t1}, {sp(WS)} sc1""")
        if self.qtouch:
            a(f"""s_lshl_b32 s{sT0}, s{sG}, 24
            s_add_u32 s{sT0}, s{sT0}, 0xF00000
            v_mov_b32 v{t3}, s{sT0}
            global_load_dword v{RK + 8}, v{t3}, {sp(KP)}{self.nt}
            global_load_dword v{RK + 1}, v{t0}, {sp(WS)} sc1
            global_load_dword v{RK + 9}, v{t3}, {sp(VP)}{self.nt}""")
        a("s_endpgm")

    def exit(self):
        a = self.a
        a("L_exit:")
        if self.leak[0] >= 0:
            self.stamp(14)
            a(f"""s_lshl_b32 s{sT0}, s2, 2
            s_add_u32 s{sT0}, s{sT0}, s{sW}
            s_cmp_lg_u32 s{sT0}, {self.leak[0] * 4}
            s_cbranch_scc1 L_end
            s_memrealtime {sp(ST0 + 4)}
            s_waitcnt lgkmcnt(0)
            s_sub_u32 s{sT0}, s{ST0 + 2}, s{ST0}""")
            if self.leak[3] == 1:
                a(f"s_mul_i32 s{sT0}, s{sT0}, 2731\ns_lshr_b32 s{sT0}, s{sT0}, 16")
            if self.leak[3] >= 2:
                a(f"""s_mov_b64 exec, -1
                v_and_b32 v{t0}, 7, v{vL}
                v_lshlrev_b32 v{t0}, 7, v{t0}
                v_add_u32 v{t0}, {WS_ST}, v{t0}
                global_load_dword v{t1}, v{t0}, {sp(WS)} sc1
                s_waitcnt vmcnt(0)
                v_subrev_u32 v{t1}, s{ST0}, v{t1}
                v_add_u32 v{t1}, 1000, v{t1}
                s_nop 1
                v_readlane_b32 s{sT0}, v{t1}, 0
                s_mov_b32 s{sT1}, s{sT0}""")
                for i in range(1, 8):
                    a(f"v_readlane_b32 s{sT2}, v{t1}, {i}\ns_nop 1\ns_max_u32 s{sT0}, s{sT0}, s{sT2}\ns_min_u32 s{sT1}, s{sT1}, s{sT2}")
                a(f"s_sub_u32 s{sT0}, s{sT0}, s{sT1}" if self.leak[3] == 2 else f"s_sub_u32 s{sT0}, 1000, s{sT1}")
            a(f"""s_min_u32 s{sT0}, s{sT0}, 5000
            s_mul_i32 s{sT0}, s{sT0}, 10
            s_add_u32 s{sT0}, s{sT0}, 2000
            L_leak:
            s_memrealtime {sp(ST0 + 6)}
            s_waitcnt lgkmcnt(0)
            s_sub_u32 s{sT1}, s{ST0 + 6}, s{ST0 + 4}
            s_cmp_lt_u32 s{sT1}, s{sT0}
            s_cbranch_scc1 L_leak""")
        if self.prof:
            self.stamp(14)
            a(f"""s_memrealtime {sp(ST0 + 32)}
            s_mov_b64 exec, 1
            s_lshl_b32 s{sT0}, s2, 2
            s_add_u32 s{sT0}, s{sT0}, s{sW}
            s_lshl_b32 s{sT0}, s{sT0}, 7
            s_add_u32 s{sT0}, s{sT0}, {WS_ST}
            v_mov_b32 v{t0}, s{sT0}
            s_waitcnt lgkmcnt(0)""")
            for k in (range(17) if self.prof == 1 else (15, 16)):
                a(f"v_mov_b32 v{t1}, s{ST0 + 2 * k}\nglobal_store_dword v{t0}, v{t1}, {sp(WS)} offset:{4 * k}")
            a(f"v_mov_b32 v{t1}, s{sFAST}\nglobal_store_dword v{t0}, v{t1}, {sp(WS)} offset:68")
            a(f"v_mov_b32 v{t1}, s{sQN}\nglobal_store_dword v{t0}, v{t1}, {sp(WS)} offset:72")
            a(f"v_mov_b32 v{t1}, s{sSPIN}\nglobal_store_dword v{t0}, v{t1}, {sp(WS)} offset:76")
        a("L_end:\ns_endpgm")

    def build(self):
        head = open("cdna_kernels/" + NAME + ".s.ref").read().split("; Override launch")[0]
        if self.prof == 1:
            for k in range(17):
                self.a(f"s_mov_b32 s{ST0 + 2 * k}, 0")
        self.prologue()
        self.h_issue()
        self.l_issue()
        self.l_rest()
        self.attention("l", self.nl, 0, self.lw - self.lp, self.ul)
        self.w_tail()
        done = self.h_rest()
        self.attention("h", self.nh, done, 4 if self.dn_early else 0, self.uh - 4 * self.nh + 4)
        self.f_tail()
        self.exit()
        self.helper()
        for c in self.cold:
            self.a(c)
        self.a("L_code_end:")
        padded = pad(self.L)
        for p in check_branches(padded):
            print("HAZARD", p, file=sys.stderr)
        body = "\n".join(padded)
        doc = """; One launch, 256 workgroups of 4 + 1 waves, all resident. Group g = id & 7 owns kv head g; inside it the
"""
        return f"""{head}{doc}; @launch grid=(256,1,1) block=(320,1,1) lds={LDS_BASE + 16384 * self.nh}
.amdgcn_target "amdgcn-amd-amdhsa--gfx950"
.text
.globl {NAME}_kernel
.p2align 8
.type {NAME}_kernel,@function
{NAME}_kernel:
{body}
.section .rodata,"a"
.p2align 6
.amdhsa_kernel {NAME}_kernel
  .amdhsa_next_free_vgpr {NVGPR}
  .amdhsa_next_free_sgpr 102
  .amdhsa_accum_offset {NVGPR}
  .amdhsa_group_segment_fixed_size 0
  .amdhsa_kernarg_size 96
  .amdhsa_user_sgpr_count 2
  .amdhsa_user_sgpr_kernarg_segment_ptr 1
  .amdhsa_system_sgpr_workgroup_id_x 1
.end_amdhsa_kernel
"""


if __name__ == "__main__":
    out = sys.argv[1]
    kw = {}
    for arg in sys.argv[2:]:
        k, v = arg.split("=")
        kw[k] = int(v)
    open(out, "w").write(Gen(**kw).build())
```

```python
import sys
from asmlib import check_branches, pad

NAME = "sequential_preLN__sliding_block_cached__swiglu_ffn__decode"

WS_HI, WS_ML, WS_B2A, WS_A1, WS_C, WS_QA, WS_QB, WS_E, WS_ST = 0x1000, 0x2000, 0x8000, 0x10000, 0x100000, 0xD0000, 0xE0000, 0xF0000, 0x180000
WS_FL = 0xC8000
L_QS, L_MX, L_OK, L_OV, L_HV, L_QP = 0, 1024, 1536, 1664, 1792, 4096
L_OR, OR_PLANE = 4096, 68
OR_STRIDE = 8 * 4 * OR_PLANE
L_G, L_U, L_K = 16384, 32768, 16384
LDS_BASE = 16384

sW, sG, sJ, sE, sXCC, sHX, sFAST = 3, 28, 29, 30, 31, 32, 33
sTA4, sTQ, sTB4, sTH4 = 34, 35, 36, 37
sSLO, sSHI, sPLO, sPHI = 38, 39, 40, 41
sM = [42, 44, 46, 48]
sG1 = 50
sQP = 52
sT0, sT1, sT2, sT3 = 54, 55, 56, 57
sQN, sSPIN = 59, 60
sA1G, sF, sKQ, sKM = 58, 58, 61, 98
sCM = 24
sCODE = 62
ST0 = 64
X, KP, VP, WQ, WO, GA, UP, DN, OUT, DBG, WS = 4, 6, 8, 10, 12, 16, 18, 20, 22, 24, 26
KB, VB = [KP, 0, 14, 10], [VP, 62, 100, 12]
REGION = 1 << 16

vL, vK, vV, vN, vGp, vSEL, vQ = 0, 1, 2, 3, 4, 5, 6
vA, vB, vC, vD, vXH = 7, 8, 9, 10, 11
t0, t1, t2, t3 = 12, 13, 14, 15
RK, RV, RB, RA, RD, RP, RX = 16, 80, 144, 176, 192, 208, 216
RW, RWB, RWD = RV + 16, RK + 16, RB
RDN = RV + 48
vKD, vF, vHI, vHA, aOX, aMR = 228, 232, 236, 237, 253, 254
aKR, aQW, aQR, aMW, aOW, aOR, aA1, aML, aFG, aFD, aTR, aHP, aES, aEG, aCS = range(238, 253)
aWO, aMG, aAG, aVW, aVR, aB1, aBG, aB2, aHG, aHB, aHW, aC0, aC1, aHR, aOut = range(RV + 48, RV + 63)
NVGPR = 256
LOG2E = "0x3fb8aa3b"
DPP = "row_mask:0xf bank_mask:0xf"
TILE = 4 << 16


def sp(r):
    return f"s[{r}:{r + 1}]"


def vr(r, n):
    return f"v[{r}:{r + n - 1}]"


class Gen:
    def __init__(self, prof=0, nt=1, qa_tries=24, d_b1=0, d_b2a=11, d_c=20, d_e=0, force_slow=0, code_bytes=16384,
                 codepf=1, qtouch=1, fine=0, leak_wg=-1, leak_a=0, leak_b=14, leak_clk=0,
                 uh=12, depth=10, d0=8, hq_at=8, hq_wait=3, lw=8, lp=1, ciod=1, biod=1, lfast=0, d_q=2, d_cl=0, wprime=1, flag=0, d_fl=0, qb_late=1, out_pw=0, out_sc=0, ctrig=2, only=0, b2pw=0, b2mask=0, align=0, jitter=0, dn_early=0, lv=0, lq=2, lr=2, qkfill=2, b2atom=0):
        self.L, self.cold = [], []
        self.prof, self.fine, self.nt = prof, fine, " nt" if nt else ""
        self.qa_tries, self.force_slow = qa_tries, force_slow
        self.d_b1, self.d_b2a, self.d_c, self.d_e = d_b1, d_b2a, d_c, d_e
        self.code_bytes, self.codepf, self.qtouch = code_bytes, codepf, qtouch
        self.leak = (leak_wg, leak_a, leak_b, leak_clk)
        assert uh in (12, 14)
        self.uh, self.ul, self.nh, self.nl = uh, 16 - uh, (uh + 3) // 4, 1
        self.depth, self.hq_at, self.hq_wait, self.lw = depth, hq_at, hq_wait, lw
        self.gap, self.d0, self.lp = 0, d0, lp
        self.ciod, self.biod, self.lfast, self.d_q = ciod, biod, lfast, d_q
        self.lv, self.lq, self.lr, self.qkfill = lv, lq, lr, qkfill
        self.b2atom = b2atom
        self.align, self.jitter, self.nj, self.dn_early = align, jitter, 0, dn_early
        self.ctrig, self.only, self.b2pw, self.b2mask = ctrig, only, b2pw, b2mask
        self.qb_late, self.out_pw, self.out_sc = qb_late, out_pw, out_sc
        self.d_cl, self.wprime, self.flag, self.d_fl = d_cl, wprime, flag, d_fl

    def a(self, s):
        for ln in s.strip("\n").split("\n"):
            ln = ln.strip()
            if ln:
                self.L.append(ln if ln.endswith(":") or ln.startswith(".") or ln.startswith(";") else "  " + ln)

    def stamp(self, k, early=False):
        if k in (0, 1, 3, 4, 5, 6, 7, 8, 9, 10, 11, 12) and not early:
            self.shake()
        if self.fine and 8 <= k <= 13 and not early:
            return
        if self.prof == 1 and (not self.only or self.only >> k & 1 or k in (0, 14)):
            self.a(f"s_memtime {sp(ST0 + 2 * k)}")
        if self.leak[0] >= 0 and k in self.leak[1:3]:
            self.a(f"{'s_memtime' if self.leak[3] == 1 else 's_memrealtime'} {sp(ST0 + (0 if k == self.leak[1] else 2))}")

    def shake(self):
        if not self.jitter:
            return
        self.nj += 1
        self.a(f"""s_memtime s[90:91]
        s_waitcnt lgkmcnt(0)
        s_lshr_b32 s91, s90, 3
        s_xor_b32 s90, s90, s91
        s_lshr_b32 s91, s90, 7
        s_xor_b32 s90, s90, s91
        s_and_b32 s91, s90, {self.jitter - 1}
        s_cmp_lg_u32 s91, 0
        s_cbranch_scc1 L_shake{self.nj}
        s_sleep 127
        s_bitcmp1_b32 s90, 9
        s_cbranch_scc1 L_shake{self.nj}
        s_sleep 127
        s_sleep 127
        L_shake{self.nj}:""")

    def fstamp(self, k):
        if self.fine:
            self.stamp(k, True)

    def sleep(self, n):
        if n:
            self.a(f"s_sleep {n}")

    def spin(self):
        self.a(f"s_sub_u32 s{sSPIN}, s{sSPIN}, 1\ns_cbranch_scc1 L_exit")

    def check4(self, r, tag, dst="vcc"):
        self.a(f"""v_perm_b32 v{t0}, v{r + 1}, v{r}, s{sSLO}
        v_perm_b32 v{t1}, v{r + 3}, v{r + 2}, s{sSHI}
        v_or_b32 v{t0}, v{t0}, v{t1}
        v_cmp_ne_u32 {dst}, s{tag}, v{t0}""")

    def tag(self, dst, src, tag):
        self.a(f"v_perm_b32 v{dst}, v{src}, s{tag}, v{vSEL}")

    def pub_cmp(self):
        self.a(f"s_cmp_eq_u32 s{sFAST}, 0")

    def pub(self, name, store, cmp=True):
        if cmp:
            self.pub_cmp()
        self.a(f"s_cbranch_scc1 L_slow_{name}\n{store}\nL_back_{name}:")
        self.cold.append(f"L_slow_{name}:\n{store} sc1\ns_branch L_back_{name}")

    def poll(self, name, loads, tag, dst, depth, slots, primed=False):
        a, n = self.a, len(loads)

        def issue(k):
            for i, ld in enumerate(loads):
                a(ld.format(vr(slots[k] + 4 * i, 4)))

        def test(k, younger):
            for i in range(n):
                a(f"s_waitcnt vmcnt({younger + n - 1 - i})")
                self.check4(slots[k] + 4 * i, tag, "vcc" if i == n - 1 else sp(sT2))
                for e in range(4):
                    a(f"v_and_b32 v{dst + 4 * i + e}, 0xffffff00, v{slots[k] + 4 * i + e}")
            if n > 1:
                a(f"s_or_b64 vcc, vcc, {sp(sT2)}")
        if depth == 1:
            if primed:
                a(f"s_branch L_{name}_w")
            a(f"L_{name}:")
            issue(0)
            self.spin()
            if primed:
                a(f"L_{name}_w:")
            test(0, 0)
            a(f"s_cbranch_vccnz L_{name}")
            return
        for k in range(1 if primed else 0, depth - 1):
            issue(k)
            self.sleep(self.gap)
        a(f"L_{name}:")
        for k in range(depth):
            issue((k + depth - 1) % depth)
            if k == 0:
                self.spin()
            test(k, (depth - 1) * n)
            a(f"s_cbranch_vccz L_{name}_ok" if k < depth - 1 else f"s_cbranch_vccnz L_{name}")
        a(f"L_{name}_ok:")

    def bf16r(self, dst, src):
        self.a(f"v_cvt_pk_bf16_f32 v{dst}, v{src}, v{src}\nv_and_b32 v{dst}, 0xffff0000, v{dst}")

    def allred(self, r, op, rors=(8, 4, 2, 1), tmp=t3):
        for k in rors:
            self.a(f"{op}_dpp v{r}, v{r}, v{r} row_ror:{k} {DPP}")
        for sw in ("v_permlane16_swap_b32", "v_permlane32_swap_b32"):
            self.a(f"v_mov_b32 v{tmp}, v{r}\n{sw} v{r}, v{tmp}\n{op} v{r}, v{r}, v{tmp}")

    def rs4(self, r):
        self.a(f"""v_permlane32_swap_b32 v{r}, v{r + 2}
        v_permlane32_swap_b32 v{r + 1}, v{r + 3}
        v_add_f32 v{r}, v{r}, v{r + 2}
        v_add_f32 v{r + 1}, v{r + 1}, v{r + 3}
        v_permlane16_swap_b32 v{r}, v{r + 1}
        v_add_f32 v{r}, v{r}, v{r + 1}""")

    def matvec8(self, mf, D, out, tag, after=None):
        order = [0, 4, 1, 5, 2, 6, 3, 7]
        sel = [f"v_cndmask_b32 v{out + i}, v{D + 4 * i}, v{D + 16 + 4 * i}, {sp(sG1)}" for i in range(4)]
        for t in order:
            self.a(mf(t))
        if after:
            self.a(after)
        for i in range(4):
            self.a(sel[i])
            if i:
                self.tag(out + i - 1, out + i - 1, tag)
        self.tag(out + 3, out + 3, tag)

    def ln_scale(self, mean, var, tmp):
        self.a(f"v_cvt_pk_bf16_f32 v{tmp}, v{mean}, v{var}")
        self.a(f"v_lshlrev_b32 v{mean}, 16, v{tmp}\nv_and_b32 v{var}, 0xffff0000, v{tmp}")
        self.a(f"v_add_f32 v{var}, 0x3727c5ac, v{var}")
        self.bf16r(var, var)
        self.a(f"v_sqrt_f32 v{var}, v{var}")
        self.bf16r(var, var)

    def perm_pair(self, src0, src1, dst, stride, slot):
        for dd in range(4):
            self.a(f"v_perm_b32 v{dst + stride * (2 * dd) + slot}, v{src1 + dd}, v{src0 + dd}, s{sPLO}")
            self.a(f"v_perm_b32 v{dst + stride * (2 * dd + 1) + slot}, v{src1 + dd}, v{src0 + dd}, s{sPHI}")

    def consts(self):
        self.a('; constants: byte selectors for tag checks and bf16 packing, poll bound, census and query addresses')
        self.a(f"""s_mov_b32 s{sSLO}, 0x0c0c0400
        s_mov_b32 s{sSHI}, 0x04000c0c
        s_mov_b32 s{sPLO}, 0x05040100
        s_mov_b32 s{sPHI}, 0x07060302
        s_mov_b32 s{sG1}, 0xffff0000
        s_mov_b32 s{sG1 + 1}, 0xffff0000
        s_mov_b32 s{sSPIN}, 0x20000
        s_mov_b32 s{sQN}, 0
        s_mov_b32 s{sCM}, 2
        v_mov_b32 v{vSEL}, 0x07060500
        s_getreg_b32 s{sXCC}, hwreg(HW_REG_XCC_ID, 0, 4)
        s_lshl_b32 s{sT0}, s{sG}, 7
        s_add_u32 s{sT0}, s{sT0}, {WS_HI}
        v_lshl_add_u32 v{vHA}, v{vN}, 2, s{sT0}
        s_lshl_b32 s{sT0}, s{sG}, 13
        s_lshl_b32 s{sT1}, s{sW}, 10
        s_add_u32 s{sT0}, s{sT0}, s{sT1}
        s_add_u32 s{sT0}, s{sT0}, {WS_QA + 2048}
        v_lshl_add_u32 v{vQ}, v{vL}, 4, s{sT0}
        s_mov_b64 {sp(sQP)}, {sp(WS)}""")

    def a_or(self, nt):
        return vA - 1 if nt == 4 else RD + 12

    def addr_att(self, nt):
        self.a('; addresses of the attention stage (LDS images, (max,sum) record, partial-output record)')
        self.a(f"""v_xor_b32 v{t0}, v{vN}, v{vGp}
        v_lshlrev_b32 v{t0}, 4, v{t0}
        v_lshl_add_u32 v{t0}, v{vN}, 8, v{t0}
        s_mul_i32 s{sT0}, s{sW}, {4096 * nt}
        v_add_u32 v{aKR}, s{sT0}, v{t0}
        s_lshl_b32 s{sT0}, s{sW}, 8
        v_lshl_add_u32 v{aQW}, v{vL}, 2, s{sT0}
        v_lshrrev_b32 v{t0}, 2, v{vN}
        v_lshlrev_b32 v{t1}, 8, v{t0}
        v_lshl_add_u32 v{aQR}, v{vGp}, 4, v{t1}
        s_lshl_b32 s{sT1}, s{sW}, 3
        v_lshl_add_u32 v{aMW}, v{t0}, 5, s{sT1}
        s_mul_i32 s{sT1}, s{sW}, {OR_STRIDE}
        s_add_u32 s{sT1}, s{sT1}, {L_OR}
        v_lshl_add_u32 v{aOW}, v{vL}, 2, s{sT1}
        v_add_u32 v{aOX}, {16 * OR_PLANE}, v{aOW}
        s_lshl_b32 s{sT1}, s{sW}, 5
        v_mov_b32 v{aMR}, s{sT1}
        s_lshl_b32 s{sT1}, s{sW}, 6
        s_add_u32 s{sT1}, s{sT1}, {L_OR}
        v_and_b32 v{t0}, 0x3c, v{vL}
        v_add_u32 v{aOR}, s{sT1}, v{t0}
        v_and_b32 v{t0}, 3, v{vL}
        v_mul_u32_u24 v{t0}, {8 * OR_PLANE}, v{t0}
        v_add_u32 v{aOR}, v{t0}, v{aOR}
        v_add_u32 v{self.a_or(nt) + 1}, {OR_STRIDE}, v{aOR}
        v_add_u32 v{self.a_or(nt) + 2}, {2 * OR_STRIDE}, v{aOR}
        v_add_u32 v{self.a_or(nt) + 3}, {3 * OR_STRIDE}, v{aOR}
        s_lshl_b32 s{sT0}, s{sG}, 16
        s_lshl_b32 s{sT1}, s{sJ}, 11
        s_add_u32 s{sT0}, s{sT0}, s{sT1}
        s_lshl_b32 s{sT1}, s{sW}, 9
        s_add_u32 s{sT0}, s{sT0}, s{sT1}
        s_add_u32 s{sT0}, s{sT0}, {WS_A1}
        v_lshl_add_u32 v{aA1}, v{vL}, 3, s{sT0}
        s_lshl_b32 s{sT0}, s{sG}, 11
        s_lshl_b32 s{sT1}, s{sJ}, 6
        s_add_u32 s{sT0}, s{sT0}, s{sT1}
        s_lshl_b32 s{sT1}, s{sW}, 4
        s_add_u32 s{sT0}, s{sT0}, s{sT1}
        s_add_u32 s{sT0}, s{sT0}, {WS_ML}
        v_mov_b32 v{aML}, s{sT0}""")

    def addr_w(self):
        self.a('; addresses of the output projection, the two reductions of its result and the final stage')
        self.a(f"""s_lshl_b32 s{sT0}, s{sG}, 19
        s_lshl_b32 s{sT1}, s{sJ}, 15
        s_add_u32 s{sT0}, s{sT0}, s{sT1}
        s_lshl_b32 s{sT1}, s{sW}, 8
        s_add_u32 s{sT0}, s{sT0}, s{sT1}
        s_add_u32 s{sT0}, s{sT0}, 4096
        v_lshlrev_b32 v{t0}, 13, v{vGp}
        v_lshl_add_u32 v{t0}, v{vN}, 4, v{t0}
        v_add_u32 v{aWO}, s{sT0}, v{t0}
        v_lshrrev_b32 v{t0}, 1, v{vL}
        s_lshl_b32 s{sT0}, s{sG}, 11
        s_lshr_b32 s{sT1}, s{sJ}, 2
        s_lshl_b32 s{sT1}, s{sT1}, 4
        s_add_u32 s{sT0}, s{sT0}, s{sT1}
        s_add_u32 s{sT0}, s{sT0}, {WS_ML}
        v_lshl_add_u32 v{aMG}, v{t0}, 6, s{sT0}
        s_lshl_b32 s{sA1G}, s{sG}, 16
        s_add_u32 s{sA1G}, s{sA1G}, {WS_A1}
        s_lshl_b32 s{sT1}, s{sJ}, 7
        s_add_u32 s{sT2}, s{sA1G}, s{sT1}
        s_lshl_b32 s{sT1}, s{sW}, 5
        s_add_u32 s{sT0}, s{sT2}, s{sT1}
        v_lshlrev_b32 v{aAG}, 11, v{t0}
        v_and_b32 v{t1}, 1, v{vL}
        v_lshl_add_u32 v{aAG}, v{t1}, 4, v{aAG}
        v_add_u32 v{aAG}, s{sT0}, v{aAG}
        v_lshlrev_b32 v{aVW}, 3, v{t1}
        v_lshl_add_u32 v{aVW}, v{vGp}, 1, v{aVW}
        s_lshl_b32 s{sT1}, s{sW}, 4
        v_add_u32 v{aVW}, s{sT1}, v{aVW}
        v_lshlrev_b32 v{aVR}, 4, v{vGp}
        v_lshrrev_b32 v{t0}, 2, v{vN}
        v_lshlrev_b32 v{aB1}, 11, v{t0}
        v_and_b32 v{t0}, 3, v{vN}
        v_lshl_add_u32 v{aB1}, v{t0}, 5, v{aB1}
        v_and_b32 v{t0}, 1, v{vGp}
        v_lshl_add_u32 v{aB1}, v{t0}, 4, v{aB1}
        s_lshl_b32 s{sT1}, s{sW}, 13
        s_add_u32 s{sT0}, s{sT2}, s{sT1}
        v_add_u32 v{aB1}, s{sT0}, v{aB1}
        s_add_u32 s{sT2}, s{sT2}, {16 * 2048}
        v_lshl_add_u32 v{aHB}, v{vD}, 2, s{sT2}
        v_lshlrev_b32 v{aHW}, 2, v{vD}
        s_lshl_b32 s{sT1}, s{sJ}, 11
        s_add_u32 s{sT0}, s{sA1G}, s{sT1}
        v_lshl_add_u32 v{aBG}, v{vL}, 4, s{sT0}
        v_and_b32 v{t0}, 7, v{vL}
        v_lshlrev_b32 v{aB2}, 2, v{t0}
        v_lshl_add_u32 v{aB2}, v{vGp}, 5, v{aB2}
        v_bfe_u32 v{t1}, v{vL}, 3, {1 if self.biod else 0}
        v_lshl_add_u32 v{aB2}, v{t1}, 13, v{aB2}
        s_and_b32 s{sT0}, s{sG}, 4
        s_add_u32 s{sT0}, s{sT0}, s{sG}
        s_lshl_b32 s{sT0}, s{sT0}, 11
        s_lshl_b32 s{sT1}, s{sJ}, 7
        s_add_u32 s{sT1}, s{sT1}, {WS_B2A}
        s_add_u32 s{sT0}, s{sT0}, s{sT1}
        v_add_u32 v{aB2}, s{sT0}, v{aB2}
        v_lshrrev_b32 v{aHG}, 3, v{vL}
        v_and_b32 v{t1}, 4, v{aHG}
        v_add_u32 v{aHG}, v{t1}, v{aHG}
        v_lshlrev_b32 v{aHG}, 11, v{aHG}
        v_lshl_add_u32 v{aHG}, v{t0}, 4, v{aHG}
        s_lshr_b32 s{sT0}, s{sG}, 2
        s_mul_i32 s{sT0}, s{sT0}, {0x2000 if self.biod else 0}
        s_add_u32 s{sT1}, s{sT1}, s{sT0}
        v_add_u32 v{aHG}, s{sT1}, v{aHG}
        s_lshl_b32 s{sT0}, s{sG}, 9
        s_lshl_b32 s{sT1}, s{sJ}, 5
        s_add_u32 s{sT0}, s{sT0}, s{sT1}
        s_lshl_b32 s{sT1}, s{sW}, 4
        s_add_u32 s{sT0}, s{sT0}, s{sT1}
        s_add_u32 s{sT0}, s{sT0}, {WS_C}
        v_min_u32 v{aC1}, 47, v{vL}""")
        for r, src in ((aC0, vL), (aC1, aC1)):
            if self.ciod:
                self.a(f"""v_and_b32 v{t0}, 0x3c, v{src}
                v_add_u32 v{r}, v{t0}, v{src}
                v_lshlrev_b32 v{r}, 11, v{r}""")
            else:
                self.a(f"v_lshlrev_b32 v{r}, 11, v{src}")
        self.a(f"""v_add_u32 v{aC0}, s{sT0}, v{aC0}
        s_add_u32 s{sT0}, s{sT0}, {64 * 2048 * (2 if self.ciod else 1)}
        v_add_u32 v{aC1}, s{sT0}, v{aC1}
        s_lshl_b32 s{sT0}, s{sG}, 3
        s_lshl_b32 s{sT1}, s{sW}, 2
        s_add_u32 s{sT0}, s{sT0}, s{sT1}
        v_add_u32 v{t2}, s{sT0}, v{vGp}
        v_lshlrev_b32 v{aHR}, 2, v{t2}
        s_lshl_b32 s{sT1}, s{sJ}, 6
        v_lshl_add_u32 v{aOut}, v{t2}, 1, s{sT1}""")

    def addr_f(self):
        self.a('; addresses of the feed-forward stage: f = 16g + j - 16 owns hidden columns 16f..16f+15 and,')
        self.a(f"""s_lshl_b32 s{sF}, s{sG}, 4
        s_add_u32 s{sF}, s{sF}, s{sJ}
        s_sub_u32 s{sF}, s{sF}, 16
        s_and_b32 s{sKQ}, s{sF}, 3
        s_lshl_b32 s{sT0}, s{sKQ}, 2
        s_add_u32 s{sT0}, s{sT0}, s{sW}
        s_mul_i32 s{sT0}, s{sT0}, {32 * 3584}
        s_lshr_b32 s{sT1}, s{sF}, 2
        s_lshl_b32 s{sT1}, s{sT1}, 7
        s_add_u32 s{sT0}, s{sT0}, s{sT1}
        v_lshrrev_b32 v{t0}, 3, v{vL}
        v_mul_u32_u24 v{t0}, 3584, v{t0}
        v_and_b32 v{t1}, 7, v{vL}
        v_lshl_add_u32 v{t0}, v{t1}, 4, v{t0}
        v_add_u32 v{aFG}, s{sT0}, v{t0}
        s_lshl_b32 s{sT0}, s{sF}, 14
        s_lshl_b32 s{sT1}, s{sW}, 8
        s_add_u32 s{sT0}, s{sT0}, s{sT1}
        v_lshlrev_b32 v{t0}, 12, v{vGp}
        v_lshl_add_u32 v{t0}, v{vN}, 4, v{t0}
        v_add_u32 v{aFD}, s{sT0}, v{t0}
        v_lshrrev_b32 v{t0}, 2, v{vN}
        v_and_b32 v{t1}, 3, v{vL}
        v_lshlrev_b32 v{aTR}, 11, v{vGp}
        v_lshl_add_u32 v{aTR}, v{t0}, 7, v{aTR}
        v_lshl_add_u32 v{aTR}, v{t1}, 3, v{aTR}
        s_lshl_b32 s{sT0}, s{sW}, 5
        v_add_u32 v{aTR}, s{sT0}, v{aTR}
        v_lshlrev_b32 v{aHP}, 9, v{t0}
        v_lshl_add_u32 v{aHP}, v{vGp}, 6, v{aHP}
        v_lshl_add_u32 v{aHP}, v{t1}, 4, v{aHP}
        s_lshl_b32 s{sT0}, s{sG}, 16
        s_add_u32 s{sT0}, s{sT0}, {WS_A1 + 16 * 2048}
        v_add_u32 v{aHP}, s{sT0}, v{aHP}
        s_and_b32 s{sT0}, s{sF}, 0xfc
        s_add_u32 s{sT0}, s{sT0}, s{sW}
        s_lshl_b32 s{sT0}, s{sT0}, 9
        s_lshl_b32 s{sT1}, s{sKQ}, 3
        s_add_u32 s{sT0}, s{sT0}, s{sT1}
        s_add_u32 s{sT0}, s{sT0}, {WS_E}
        v_lshl_add_u32 v{aES}, v{vN}, 5, s{sT0}
        s_lshl_b32 s{sT0}, s{sF}, 9
        s_add_u32 s{sT0}, s{sT0}, {WS_E}
        v_lshrrev_b32 v{t2}, 2, v{vL}
        v_lshl_add_u32 v{aEG}, v{t2}, 5, s{sT0}
        v_and_b32 v{t2}, 1, v{vL}
        v_lshl_add_u32 v{aEG}, v{t2}, 4, v{aEG}
        v_lshlrev_b32 v{aCS}, 9, v{t1}
        v_lshl_add_u32 v{aCS}, v{t0}, 5, v{aCS}
        v_and_b32 v{t1}, 1, v{vGp}
        v_lshl_add_u32 v{aCS}, v{t1}, 4, v{aCS}
        s_and_b32 s{sT0}, s{sF}, {0xfc if self.ciod else 0}
        s_add_u32 s{sT0}, s{sT0}, s{sF}
        s_lshl_b32 s{sT0}, s{sT0}, 11
        s_lshl_b32 s{sT1}, s{sW}, 7
        s_add_u32 s{sT0}, s{sT0}, s{sT1}
        s_add_u32 s{sT0}, s{sT0}, {WS_C}
        v_add_u32 v{aCS}, s{sT0}, v{aCS}
        s_lshl_b32 s{sT0}, s{sKQ}, 4
        s_mov_b64 {sp(sKM)}, 0xffff
        s_lshl_b64 {sp(sKM)}, {sp(sKM)}, s{sT0}""")

    def tags(self):
        self.a("; tags of this launch from epoch word + 1: low byte and two variants of it, a hashed word, the census word")
        self.a(f"""s_add_u32 s{sE}, s{sE}, 1
        s_and_b32 s{sT0}, s{sE}, 0xff
        s_mul_i32 s{sTA4}, s{sT0}, 0x01010101
        s_mul_i32 s{sTQ}, s{sE}, 0x9e3779b1
        s_xor_b32 s{sTB4}, s{sTA4}, 0x40404040
        s_xor_b32 s{sTH4}, s{sTA4}, 0x80808080
        s_lshl_b32 s{sHX}, s{sE}, 4
        s_or_b32 s{sHX}, s{sHX}, s{sXCC}""")

    def census_load(self, off):
        self.a(f"global_load_dword v{vHI}, v{vHA}, {sp(WS)} offset:{off} sc1")

    def census_eval(self, keep=False):
        if self.force_slow:
            self.a(f"s_mov_b32 s{sFAST}, 0")
        else:
            self.a(f"v_cmp_ne_u32 vcc, s{sHX}, v{vHI}\ns_cmp_eq_u64 vcc, 0\ns_cselect_b32 s{sFAST}, {f's{sFAST}' if keep else 1}, 0")

    def kload(self, i):
        self.a(f"s_add_u32 m0, s{sT3}, {L_K + 1024 * i}\nglobal_load_lds_dwordx4 v{vKD + i % 4}, {sp(KB[i // 4])}{self.nt}")

    def live(self, groups):
        m = (1 << 16 * groups) - 1
        self.a(f"s_mov_b32 exec_lo, {hex(m & 0xffffffff)}\ns_mov_b32 exec_hi, {hex(m >> 32)}")

    def vload(self, i):
        self.a(f"global_load_dwordx4 {vr(RV + 4 * i, 4)}, v{vV}, {sp(VB[i // 4])} offset:{256 * (i % 4)}{self.nt}")

    def vload_last(self, nt, groups):
        if groups < 4:
            self.live(groups)
        for i in range(4 * nt - 4, 4 * nt):
            self.vload(i)
        if groups < 4:
            self.a("s_mov_b64 exec, -1")

    def vzero(self, nt):
        if self.uh % 4 == 0:
            return
        for r in range(RV + 16 * nt - 16, RV + 16 * nt):
            self.a(f"v_mov_b32 v{r}, 0")

    def tile_bases(self, nt, ptrs):
        for tau in range(1, nt):
            self.a(f"s_add_u32 s{ptrs[tau]}, s{ptrs[0]}, {tau * TILE}\ns_addc_u32 s{ptrs[tau] + 1}, s{ptrs[0] + 1}, 0")

    def kreads(self, nt):
        for s in range(4):
            if s:
                self.a(f"v_xor_b32 v{t1}, {64 * s}, v{aKR}")
            for tau in range(nt):
                self.a(f"ds_read_b128 {vr(RK + 16 * tau + 4 * s, 4)}, v{t1 if s else aKR} offset:{L_K + 4096 * tau}")

    def vperm(self, p, nt):
        if nt == 1:
            self.perm_pair(RV + 8 * p, RV + 8 * p + 4, RB, 2, p)
        elif nt == 3 and p >= 4:
            self.perm_pair(RV + 8 * p, RV + 8 * p + 4, RV, 2, p - 4)
        else:
            self.perm_pair(RV + 8 * p, RV + 8 * p + 4, RB if p < 4 else RV, 4, p % 4)

    def wo_load(self, jj):
        self.a(f"global_load_dwordx4 {vr(RW + 4 * jj, 4)}, v{aWO}, {sp(WO)} offset:{1024 * jj - 4096}{self.nt}")

    def qloads(self, base):
        self.a(f"global_load_dwordx4 {vr(RX, 4)}, v{vQ}, {sp(base)} offset:-2048 sc1")
        self.a(f"global_load_dwordx4 {vr(RX + 4, 4)}, v{vQ}, {sp(base)} offset:2048 sc1")

    def qstage(self):
        self.a(f"""v_add_f32 v{t0}, v{RX}, v{RX + 4}
        v_add_f32 v{t1}, v{RX + 2}, v{RX + 6}
        v_cvt_pk_bf16_f32 v{t0}, v{t0}, v{t1}
        ds_write_b32 v{aQW}, v{t0} offset:{L_QS}""")

    def qreads(self):
        for s in range(4):
            self.a(f"ds_read_b128 {vr(RA + 4 * s, 4)}, v{aQR} offset:{L_QS + 64 * s}")

    def qcheck(self):
        self.a(f"""v_xor_b32 v{t0}, s{sTQ}, v{RX + 1}
        v_xor_b32 v{t1}, s{sTQ}, v{RX + 3}
        v_xor_b32 v{t2}, s{sTQ}, v{RX + 5}
        v_xor_b32 v{t3}, s{sTQ}, v{RX + 7}
        v_or3_b32 v{t0}, v{t0}, v{t1}, v{t2}
        v_xor_b32 v{t1}, s{sHX}, v{vHI}
        v_or_b32 v{t0}, v{t0}, v{t3}
        v_lshrrev_b32 v{t1}, s{sCM}, v{t1}
        v_lshrrev_b32 v{t1}, s{sCM}, v{t1}
        v_or_b32 v{t0}, v{t0}, v{t1}
        v_cmp_ne_u32 vcc, 0, v{t0}""")

    def prologue(self):
        a = self.a
        if self.align:
            a(f"""s_memrealtime s[54:55]
            s_waitcnt lgkmcnt(0)
            s_add_u32 s56, s54, 1224
            s_and_b32 s56, s56, 0xfffffc00
            s_and_b32 s57, s2, 7
            s_mul_i32 s57, s57, 5
            s_and_b32 s57, s57, 7
            s_mul_i32 s57, s57, {self.align - 1}
            s_add_u32 s56, s56, s57
            L_align:
            s_memrealtime s[54:55]
            s_waitcnt lgkmcnt(0)
            s_sub_u32 s54, s54, s56
            s_cmp_lt_i32 s54, 0
            s_cbranch_scc1 L_align""")
        if self.prof:
            a(f"s_memrealtime {sp(ST0 + 30)}")
        self.stamp(0)
        a(f"""s_cmpk_ge_u32 s2, 0x100
        s_cbranch_scc1 L_end
        s_load_dwordx16 s[4:19], s[0:1], 0
        s_load_dwordx8 s[20:27], s[0:1], 64
        v_lshrrev_b32 v{t0}, 6, v0
        v_and_b32 v{vL}, 63, v0
        v_readfirstlane_b32 s{sW}, v{t0}
        s_and_b32 s{sG}, s2, 7
        s_lshr_b32 s{sJ}, s2, 3
        v_and_b32 v{vN}, 15, v{vL}
        v_lshrrev_b32 v{vGp}, 4, v{vL}
        s_lshl_b32 s{sT0}, s{sG}, 24
        s_and_b32 s{sT1}, s{sJ}, 15
        s_lshl_b32 s{sT1}, s{sT1}, 12
        s_add_u32 s{sT0}, s{sT0}, s{sT1}
        s_lshl_b32 s{sT1}, s{sW}, 10
        s_add_u32 s{sT0}, s{sT0}, s{sT1}
        s_cmp_lt_u32 s{sJ}, 16
        s_cselect_b32 s{sT1}, {self.uh * REGION}, 0
        s_add_u32 s{sT0}, s{sT0}, s{sT1}
        s_add_u32 s{sT0}, s{sT0}, 0xF00000
        v_xor_b32 v{t0}, v{vN}, v{vGp}
        v_lshlrev_b32 v{t0}, 4, v{t0}
        v_lshl_add_u32 v{t0}, v{vGp}, 8, v{t0}
        v_add_u32 v{vKD}, s{sT0}, v{t0}""")
        for i in range(1, 4):
            a(f"v_xor_b32 v{vKD + i}, {64 * i + (i << 16) + 0x2000 * (i & 1)}, v{vKD}")
        a(f"""v_lshlrev_b32 v{vV}, 16, v{vGp}
        v_lshl_add_u32 v{vV}, v{vN}, 4, v{vV}
        v_add_u32 v{vV}, s{sT0}, v{vV}
        v_lshlrev_b32 v{t0}, 9, v{vL}
        v_and_b32 v{t0}, 0x2000, v{t0}
        v_xor_b32 v{vV}, v{t0}, v{vV}
        s_cmp_eq_u32 s{sW}, 4
        s_cbranch_scc1 L_helper
        s_cmp_lt_u32 s{sJ}, 16
        s_cbranch_scc1 L_l_start""")

    def h_issue(self):
        a = self.a
        a(f"s_mul_i32 s{sT3}, s{sW}, {4096 * self.nh}\ns_waitcnt lgkmcnt(0)")
        for i in range(self.d0):
            if i == 4:
                self.tile_bases(self.nh, KB)
            self.kload(i)
        if self.d0 <= 4:
            self.tile_bases(self.nh, KB)
        a(f"s_load_dword s{sE}, {sp(WS)}, 0\ns_branch L_h_rest")

    def h_rest(self):
        a, n, d, at = self.a, self.uh, self.depth, self.hq_at
        nv = 4 * self.nh
        assert at <= nv - 4
        a("L_h_rest:\ns_barrier")
        self.stamp(1)
        self.tile_bases(self.nh, VB)
        self.consts()
        self.addr_att(self.nh)
        self.addr_f()
        self.vzero(self.nh)
        done = 0
        for i in range(self.d0, d):
            a(f"s_waitcnt vmcnt({self.d0 - 1 + (i - self.d0 + 1) // 2})")
            self.kload(i)
        for i in range(d, n + at):
            a(f"s_waitcnt vmcnt({d - 1})")
            if i == d:
                self.fstamp(8)
            self.kload(i) if i < n else self.vload(i - n)
            if i == n - 1:
                a("s_waitcnt lgkmcnt(0)")
                self.tags()
                a(f"""s_cmp_lg_u32 s{sW}, 3
                s_cbranch_scc1 L_h_census
                s_lshl_b32 s{sT0}, s{sG}, 7
                s_lshl_b32 s{sT1}, s{sJ}, 2
                s_add_u32 s{sT0}, s{sT0}, s{sT1}
                s_add_u32 s{sT0}, s{sT0}, {WS_HI}
                v_mov_b32 v{t0}, s{sT0}
                v_mov_b32 v{t1}, s{sHX}
                global_store_dword v{t0}, v{t1}, {sp(WS)}
                L_h_census:""")
            if i == n + d - 1:
                self.stamp(2)
                self.kreads(self.nh)
            while 2 * done + 1 <= i - d - n:
                self.vperm(done, self.nh)
                done += 1
        a(f"s_waitcnt vmcnt({self.hq_wait})\ns_barrier")
        self.fstamp(9)
        self.qloads(WS)
        self.census_load(0)
        a("s_barrier")
        for i in range(at, nv - 4):
            self.vload(i)
        self.vload_last(self.nh, n - (nv - 4))
        rest = nv - at
        if self.dn_early:
            a(f"s_barrier\ns_min_u32 s{sT0}, s{sG}, 6\ns_sub_u32 s{sT0}, s{sG}, s{sT0}\ns_lshl_b32 s{sT0}, s{sT0}, 18\nv_subrev_u32 v{aFD}, s{sT0}, v{aFD}")
            for jj in range(4):
                a(f"global_load_dwordx4 {vr(RDN + 4 * jj, 4)}, v{aFD}, {sp(DN)} offset:{1024 * jj}{self.nt}")
            rest += 4
        if at < d:
            a(f"s_waitcnt vmcnt({at + 3 + rest})")
            self.stamp(2)
            self.kreads(self.nh)
        while 2 * done + 1 < at and not (self.qkfill and done >= 4 - self.qkfill - 1):
            a(f"s_waitcnt vmcnt({at - 1 - (2 * done + 1) + 3 + rest})")
            self.vperm(done, self.nh)
            done += 1
        a(f"s_waitcnt vmcnt({rest})")
        self.stamp(3)
        self.qcheck()
        a("s_cbranch_vccz L_qok_h")
        return done

    def l_issue(self):
        a = self.a
        XA, XB = RA, RA + 4
        a("L_l_start:")
        a(f"""v_lshlrev_b32 v{t0}, 4, v{vL}
        v_lshrrev_b32 v{t2}, 3, v{vL}
        s_and_b32 s{sT2}, s{sJ}, 1
        s_lshl_b32 s{sT2}, s{sT2}, 2
        s_add_u32 s{sT2}, s{sT2}, s{sW}
        s_lshl_b32 s{sT0}, s{sT2}, 7
        v_lshl_add_u32 v{t1}, v{t2}, 4, s{sT0}
        s_lshl_b32 s{sT0}, s{sT2}, 19
        s_lshl_b32 s{sT1}, s{sG}, 10
        s_add_u32 s{sT0}, s{sT0}, s{sT1}
        s_bfe_u32 s{sT1}, s{sJ}, 0x30001
        s_lshl_b32 s{sT1}, s{sT1}, 7
        s_add_u32 s{sT0}, s{sT0}, s{sT1}
        v_lshlrev_b32 v{t2}, 16, v{t2}
        v_and_b32 v{t3}, 7, v{vL}
        v_lshl_add_u32 v{t2}, v{t3}, 4, v{t2}
        v_add_u32 v{t2}, s{sT0}, v{t2}
        """)
        a(f"""v_and_b32 v{t3}, 1, v{vL}
        v_lshlrev_b32 v{vD}, 4, v{t3}
        v_lshl_add_u32 v{vD}, v{vGp}, 2, v{vD}
        v_bfe_u32 v{t3}, v{vL}, 1, 2
        v_add_u32 v{vD}, v{t3}, v{vD}""")
        a(f"""
        s_lshl_b32 s{sT0}, s{sJ}, 6
        v_lshl_add_u32 v{t3}, v{vD}, 1, s{sT0}
        s_waitcnt lgkmcnt(0)""")
        a(f"""global_load_dwordx4 {vr(XA, 4)}, v{t0}, {sp(X)}
        global_load_dwordx4 {vr(XB, 4)}, v{t1}, {sp(X)}
        global_load_ushort v{vXH}, v{t3}, {sp(X)}""")
        for i in range(8):
            a(f"global_load_dwordx4 {vr(RW + 4 * i, 4)}, v{t2}, {sp(WQ)}{self.nt}")
            if i < 7:
                a(f"v_add_u32 v{t2}, 0x2000, v{t2}")
        a(f"s_load_dword s{sE}, {sp(WS)}, 0\ns_branch L_l_rest")

    def l_rest(self):
        a = self.a
        XA, XB, XF, ACC, XN = RA, RA + 4, RA + 8, RK + 16, RD
        RV = RW
        a("L_l_rest:\ns_barrier")
        self.stamp(1)
        self.consts()
        self.addr_att(self.nl)
        self.addr_w()
        self.vzero(self.nl)
        a("s_waitcnt vmcnt(8)")
        for i in range(4):
            a(f"v_lshlrev_b32 v{XF + 2 * i}, 16, v{XA + i}\nv_and_b32 v{XF + 2 * i + 1}, 0xffff0000, v{XA + i}")
        a(f"v_add_f32 v{t0}, v{XF}, v{XF + 1}")
        for i in range(2, 8):
            a(f"v_add_f32 v{t0}, v{t0}, v{XF + i}")
        self.allred(t0, "v_add_f32")
        a(f"v_mul_f32 v{t0}, 0x3b000000, v{t0}")
        for i in range(8):
            a(f"v_sub_f32 v{XF + i}, v{XF + i}, v{t0}")
        a(f"v_mul_f32 v{t1}, v{XF}, v{XF}")
        for i in range(1, 8):
            a(f"v_fmac_f32 v{t1}, v{XF + i}, v{XF + i}")
        self.allred(t1, "v_add_f32")
        a(f"v_mul_f32 v{t1}, 0x3b000000, v{t1}")
        self.ln_scale(t0, t1, t2)
        a(f"""v_rcp_f32 v{t2}, v{t1}
        v_fma_f32 v{t3}, -v{t1}, v{t2}, 1.0
        v_fmac_f32 v{t2}, v{t3}, v{t2}""")
        for i in range(4):
            a(f"v_lshlrev_b32 v{XF + 2 * i}, 16, v{XB + i}\nv_and_b32 v{XF + 2 * i + 1}, 0xffff0000, v{XB + i}")
        for i in range(8):
            a(f"v_sub_f32 v{XF + i}, v{XF + i}, v{t0}")
        for i in range(4):
            a(f"v_cvt_pk_bf16_f32 v{XB + i}, v{XF + 2 * i}, v{XF + 2 * i + 1}")
        for i in range(4):
            a(f"v_lshlrev_b32 v{XF + 2 * i}, 16, v{XB + i}\nv_and_b32 v{XF + 2 * i + 1}, 0xffff0000, v{XB + i}")
        for i in range(8):
            a(f"""v_mul_f32 v{ACC + i}, v{XF + i}, v{t2}
            v_fma_f32 v{XF + i}, -v{ACC + i}, v{t1}, v{XF + i}
            v_fmac_f32 v{ACC + i}, v{XF + i}, v{t2}""")
        for i in range(4):
            a(f"v_cvt_pk_bf16_f32 v{XN + i}, v{ACC + 2 * i}, v{ACC + 2 * i + 1}")
        for i in range(8):
            a(f"v_mov_b32 v{ACC + i}, 0")
        a(f"""v_and_b32 v{t0}, 7, v{vL}
        v_lshlrev_b32 v{t0}, 7, v{t0}
        v_lshl_add_u32 v{t0}, v{vGp}, 5, v{t0}
        s_lshl_b32 s{sT0}, s{sW}, 2
        s_add_u32 s{sT0}, s{sT0}, {L_QP}
        v_add_u32 v{vA}, s{sT0}, v{t0}
        v_lshlrev_b32 v{vB}, 4, v{vL}
        s_lshl_b32 s{sT0}, s{sG}, 13
        s_and_b32 s{sT1}, s{sJ}, 1
        s_lshl_b32 s{sT1}, s{sT1}, 12
        s_add_u32 s{sT0}, s{sT0}, s{sT1}
        s_bfe_u32 s{sT1}, s{sJ}, 0x30001
        s_lshl_b32 s{sT1}, s{sT1}, 9
        s_add_u32 s{sT0}, s{sT0}, s{sT1}
        s_add_u32 s{sT0}, s{sT0}, {WS_QA}
        v_lshl_add_u32 v{vC}, v{vL}, 3, s{sT0}""")
        a("s_waitcnt lgkmcnt(0)")
        self.tags()
        PR = RK + 24
        for p in range(4):
            a(f"s_waitcnt vmcnt({6 - 2 * p})")
            if p == 3:
                self.stamp(2)
            self.perm_pair(RV + 8 * p, RV + 8 * p + 4, PR, 1, 0)
            for t in range(8):
                a(f"v_dot2c_f32_bf16 v{ACC + t}, v{PR + t}, v{XN + p}")
        for t in range(4):
            a(f"v_permlane32_swap_b32 v{ACC + t}, v{ACC + t + 4}")
        for t in range(4):
            a(f"v_add_f32 v{ACC + t}, v{ACC + t}, v{ACC + t + 4}")
        for t in range(2):
            a(f"v_permlane16_swap_b32 v{ACC + t}, v{ACC + t + 2}")
        for t in range(2):
            a(f"v_add_f32 v{ACC + t}, v{ACC + t}, v{ACC + t + 2}")
        for t in range(2):
            a(f"v_add_f32_dpp v{ACC + t}, v{ACC + t}, v{ACC + t} row_ror:8 {DPP}")
        a(f"""s_mov_b32 exec_lo, 0x00ff00ff
        s_mov_b32 exec_hi, 0x00ff00ff
        ds_write2_b32 v{vA}, v{ACC}, v{ACC + 1} offset0:0 offset1:4
        s_mov_b64 exec, -1
        s_waitcnt lgkmcnt(0)
        s_barrier
        s_cmp_lg_u32 s{sW}, 0
        s_cbranch_scc1 L_q_pubdone
        ds_read_b128 {vr(ACC, 4)}, v{vB} offset:{L_QP}
        s_lshl_b32 s{sT0}, s{sG}, 7
        s_lshl_b32 s{sT1}, s{sJ}, 2
        s_add_u32 s{sT0}, s{sT0}, s{sT1}
        s_add_u32 s{sT0}, s{sT0}, {WS_HI}
        v_mov_b32 v{t0}, s{sT0}
        v_mov_b32 v{t1}, s{sHX}
        global_store_dword v{t0}, v{t1}, {sp(WS)}
        s_waitcnt lgkmcnt(0)
        v_add_f32 v{ACC}, v{ACC}, v{ACC + 1}
        v_add_f32 v{ACC + 2}, v{ACC + 2}, v{ACC + 3}
        v_mov_b32 v{ACC + 1}, s{sTQ}
        v_add_f32 v{ACC}, v{ACC}, v{ACC + 2}
        global_store_dwordx2 v{vC}, {vr(ACC, 2)}, {sp(WS)}
        v_add_u32 v{vC}, {WS_QB - WS_QA}, v{vC}
        {"" if self.qb_late else f"global_store_dwordx2 v{vC}, {vr(ACC, 2)}, {sp(WS)} sc1"}
        L_q_pubdone:
        s_barrier""")
        self.stamp(3)
        n = self.ul
        a(f"s_lshl_b32 s{sT3}, s{sW}, 12")
        if self.lfast:
            self.sleep(self.d_q)
            self.qloads(WS)
            self.census_load(0)
            a("s_barrier")
        for i in range(n):
            self.kload(i)
        if self.lp:
            a("s_barrier")
        for jj in range(self.lp):
            self.wo_load(jj)
        if self.lfast:
            a(f"s_lshl_b32 s{sT0}, s{sW}, 2\nv_mov_b32 v{vA}, s{sT0}\nv_mov_b32 v{vB}, 0\ns_waitcnt vmcnt({n + self.lp})")
            self.qcheck()
            self.qstage()
            a(f"""s_cmp_lg_u64 vcc, 0
            s_cselect_b32 s{sT0}, 1, 0
            v_mov_b32 v{t1}, s{sT0}
            ds_write_b32 v{vA}, v{t1} offset:{L_OK}
            s_waitcnt lgkmcnt(0)
            s_barrier
            ds_read_b128 {vr(t0, 4)}, v{vB} offset:{L_OK}
            s_waitcnt lgkmcnt(0)
            v_or3_b32 v{t0}, v{t0}, v{t1}, v{t2}
            v_or_b32 v{t0}, v{t0}, v{t3}
            v_readfirstlane_b32 s{sT0}, v{t0}
            s_cmp_lg_u32 s{sT0}, 0
            s_cbranch_scc1 L_l_second""")
            a(f"s_cmp_lg_u32 s{sW}, 0\ns_cbranch_scc1 L_l_first\nglobal_store_dwordx2 v{vC}, {vr(ACC, 2)}, {sp(WS)} sc1\nL_l_first:")
            self.vload_last(self.nl, n)
            a("s_barrier")
            self.qreads()
            for jj in range(self.lp, self.lw):
                self.wo_load(jj)
            self.census_eval()
            a(f"s_waitcnt vmcnt({4 + self.lw})")
            self.kreads(self.nl)
            a("s_waitcnt lgkmcnt(0)\ns_branch L_qk_l\nL_l_second:")
        lv, lq = self.lv, self.lq
        if lv:
            a("s_barrier")
        for i in range(lv):
            self.vload(i)
        a(f"s_cmp_lg_u32 s{sW}, 0\ns_cbranch_scc1 L_l_k0")
        if self.qb_late:
            a(f"global_store_dwordx2 v{vC}, {vr(ACC, 2)}, {sp(WS)} sc1")
        a(f"s_waitcnt vmcnt({n - 1 + self.lp + lv + self.qb_late})\nL_l_k0:\ns_barrier")
        self.fstamp(8)
        self.qloads(WS)
        self.census_load(0)
        a("s_barrier")
        if n < 4:
            self.vload_last(self.nl, n)
        for i in range(lv, 4 if n == 4 else 0):
            self.vload(i)
        if lq:
            a("s_barrier")
        for jj in range(self.lp, self.lp + lq):
            self.wo_load(jj)
        a(f"s_waitcnt vmcnt({3 + 4 + self.lp + lq})")
        self.fstamp(9)
        self.kreads(self.nl)
        for jj in range(self.lp + lq, self.lp + lq + self.lr):
            self.wo_load(jj)
        a(f"s_waitcnt vmcnt({4 - lv + lq + self.lr})")
        self.qcheck()
        a("s_cbranch_vccz L_qok_l")

    def attention(self, role, nt, done, younger, groups):
        a = self.a
        ns = 4 * nt
        RO = RK + 32 if nt == 1 else RK
        a(f"L_qpoll_{role}:")
        self.qloads(sQP)
        self.census_load(0)
        self.spin()
        a(f"""s_add_u32 s{sQN}, s{sQN}, 1
        s_cmp_eq_u32 s{sQN}, {self.qa_tries}
        s_cselect_b32 s{sT0}, {WS_QB - WS_QA}, 0
        s_cselect_b32 s{sCM}, 16, s{sCM}
        s_add_u32 s{sQP}, s{sQP}, s{sT0}
        s_addc_u32 s{sQP + 1}, s{sQP + 1}, 0
        s_waitcnt vmcnt(0)""")
        self.qcheck()
        a(f"s_cbranch_vccnz L_qpoll_{role}\nL_qok_{role}:")
        self.stamp(4)
        self.qstage()
        a("s_waitcnt lgkmcnt(0)\ns_barrier")
        self.qreads()
        for jj in range(self.lq + self.lr, younger if role == "l" else 0):
            self.wo_load(self.lp + jj)
        self.census_eval()
        a(f"L_qk_{role}:")
        fill = []
        if role == "h" and self.qkfill:
            keep, self.L = self.L, []
            while 2 * done + 1 < self.hq_at:
                self.vperm(done, nt)
                done += 1
            fill, self.L = self.L, keep
        for s in range(4):
            a(f"s_waitcnt lgkmcnt({3 - s})")
            for tau in range(nt):
                c = "0" if s == 0 else vr(RD + 4 * tau, 4)
                a(f"v_mfma_f32_16x16x32_bf16 {vr(RD + 4 * tau, 4)}, {vr(RK + 16 * tau + 4 * s, 4)}, {vr(RA + 4 * s, 4)}, {c}")
                for ln in fill[:2]:
                    a(ln)
                fill = fill[2:]
        for ln in fill:
            a(ln)
        a(f"s_mov_b32 s{sT2}, 0x3db504f3\ns_mov_b32 s{sT3}, 0x3db504f3")
        for rnd in range(2):
            for i in range(ns // 2):
                a(f"v_cvt_pk_bf16_f32 v{RP + i}, v{RD + 2 * i}, v{RD + 2 * i + 1}")
            for i in range(ns // 2):
                a(f"v_lshlrev_b32 v{RD + 2 * i}, 16, v{RP + i}\nv_and_b32 v{RD + 2 * i + 1}, 0xffff0000, v{RP + i}")
            if rnd == 0:
                for i in range(ns // 2):
                    a(f"v_pk_mul_f32 {vr(RD + 2 * i, 2)}, {vr(RD + 2 * i, 2)}, {sp(sT2)}")
        if groups < 4:
            m = ((1 << 64) - 1) ^ ((1 << 16 * groups) - 1)
            a(f"s_mov_b32 exec_lo, {hex(m & 0xffffffff)}\ns_mov_b32 exec_hi, {hex(m >> 32)}")
            for i in range(ns - 4, ns):
                a(f"v_mov_b32 v{RD + i}, 0xff7f0000")
            a("s_mov_b64 exec, -1")
        a(f"v_max3_f32 v{t0}, v{RD}, v{RD + 1}, v{RD + 2}")
        for i in range(3, ns - 1, 2):
            a(f"v_max3_f32 v{t0}, v{t0}, v{RD + i}, v{RD + i + 1}")
        a(f"v_max_f32 v{t0}, v{t0}, v{RD + ns - 1}\ns_mov_b32 s{sT2}, {LOG2E}\ns_mov_b32 s{sT3}, {LOG2E}")
        self.allred(t0, "v_max_f32", rors=())
        a(f"v_mul_f32 v{t2}, 0xbfb8aa3b, v{t0}")
        for i in range(ns // 2):
            a(f"v_pk_fma_f32 {vr(RD + 2 * i, 2)}, {vr(RD + 2 * i, 2)}, {sp(sT2)}, {vr(t2, 2)} op_sel_hi:[1,1,0]")
        for i in range(ns):
            a(f"v_exp_f32 v{RD + i}, v{RD + i}")
        a(f"v_pk_add_f32 {vr(RX, 2)}, {vr(RD, 2)}, {vr(RD + 2, 2)}")
        for i in range(4, ns, 2):
            a(f"v_pk_add_f32 {vr(RX, 2)}, {vr(RX, 2)}, {vr(RD + i, 2)}")
        cvt = [f"v_cvt_pk_bf16_f32 v{RP + i}, v{RD + 2 * i}, v{RD + 2 * i + 1}" for i in range(ns // 2)]
        a(f"v_add_f32 v{t1}, v{RX}, v{RX + 1}\nv_mov_b32 v{t3}, v{t1}")
        a(cvt[0]); a(cvt[1])
        a(f"v_permlane16_swap_b32 v{t1}, v{t3}\nv_add_f32 v{t1}, v{t1}, v{t3}\nv_mov_b32 v{t3}, v{t1}")
        for c in cvt[2:4]:
            a(c)
        a(f"v_permlane32_swap_b32 v{t1}, v{t3}\nv_add_f32 v{t1}, v{t1}, v{t3}")
        a(f"ds_write_b64 v{aMW}, {vr(t0, 2)} offset:{L_MX}")
        for c in cvt[4:]:
            a(c)
        self.stamp(5)
        npair = 2 * nt

        def mf(t, half):
            d = vr(RO + 4 * t, 4)
            if nt == 1:
                return f"v_mfma_f32_16x16x16_bf16 {d}, {vr(RP, 2)}, {vr(RB + 2 * t, 2)}, 0"
            if half == 0:
                return f"v_mfma_f32_16x16x32_bf16 {d}, {vr(RP, 4)}, {vr(RB + 4 * t, 4)}, 0"
            if nt == 3:
                return f"v_mfma_f32_16x16x16_bf16 {d}, {vr(RP + 4, 2)}, {vr(RV + 2 * t, 2)}, {d}"
            return f"v_mfma_f32_16x16x32_bf16 {d}, {vr(RP + 4, 4)}, {vr(RV + 4 * t, 4)}, {d}"

        def wait_pair(p, ml):
            a(f"s_waitcnt vmcnt({ns - 1 - (2 * p + 1) + younger + ml})")
        first = 4 if nt > 1 else 1
        for p in range(done, first):
            wait_pair(p, 0)
            self.fstamp(10)
            self.vperm(p, nt)
        done = max(done, first)
        early = [mf(t, 0) for t in range(8)] if nt > 1 else [""] * 8
        a(f"""{early[0]}
        {early[1]}
        s_waitcnt lgkmcnt(0)
        s_barrier
        ds_read_b128 {vr(RX, 4)}, v{aMR} offset:{L_MX}
        ds_read_b128 {vr(RX + 4, 4)}, v{aMR} offset:{L_MX + 16}
        {early[2]}
        {early[3]}
        {early[4]}
        s_waitcnt lgkmcnt(0)
        v_max3_f32 v{t0}, v{RX}, v{RX + 2}, v{RX + 4}
        v_max_f32 v{t0}, v{t0}, v{RX + 6}
        {early[5]}
        v_mul_f32 v{t3}, 0xbfb8aa3b, v{t0}
        v_fma_f32 v{vF}, v{RX}, s{sT2}, v{t3}
        {early[6]}
        v_fma_f32 v{vF + 1}, v{RX + 2}, s{sT2}, v{t3}
        v_fma_f32 v{vF + 2}, v{RX + 4}, s{sT2}, v{t3}
        {early[7]}
        v_fma_f32 v{vF + 3}, v{RX + 6}, s{sT2}, v{t3}""")
        for i in range(4):
            a(f"v_exp_f32 v{vF + i}, v{vF + i}")
        a(f"v_mov_b32 v{t1}, s{sTQ}\nv_mul_f32 v{t2}, v{vF}, v{RX + 1}\nv_mov_b32 v{t3}, s{sTQ}")
        for i in range(1, 4):
            a(f"v_fmac_f32 v{t2}, v{vF + i}, v{RX + 2 * i + 1}")
        self.pub("ml" + role, f"global_store_dwordx4 v{aML}, {vr(t0, 4)}, {sp(WS)}")
        for p in range(done, npair - 1):
            wait_pair(p, 1)
            self.fstamp(11)
            self.vperm(p, nt)
        last = npair - 1
        if done <= last:
            wait_pair(last, 1)
        self.stamp(6)
        s0, s1 = RV + 8 * last, RV + 8 * last + 4

        def pm(t):
            dst = {1: RB + 2 * t + 1, 3: RV + 2 * t + 1, 4: RV + 4 * t + 3}[nt]
            if done <= last:
                a(f"v_perm_b32 v{dst}, v{s1 + t // 2}, v{s0 + t // 2}, s{sPHI if t % 2 else sPLO}")

        def wr(k):
            base = aOW if k < 2 else aOX
            a(f"ds_write2_b32 v{base}, v{RO + 8 * k}, v{RO + 8 * k + 4} offset0:{2 * (k % 2) * OR_PLANE} offset1:{(2 * (k % 2) + 1) * OR_PLANE}")
        pm(0); pm(1); pm(2)
        for t in range(8):
            a(mf(t, 1))
            if t + 3 < 8:
                pm(t + 3)
        for k in range(4):
            wr(k)
        a("s_waitcnt lgkmcnt(0)\ns_barrier")
        for w in range(4):
            a(f"ds_read2_b32 {vr(RD + 2 * w, 2)}, v{self.a_or(nt) + w if w else aOR} offset0:0 offset1:{OR_PLANE}")
        self.pub_cmp()
        a(f"""s_waitcnt lgkmcnt(2)
        v_pk_mul_f32 {vr(RD, 2)}, {vr(RD, 2)}, {vr(vF, 2)} op_sel_hi:[1,0]
        v_pk_fma_f32 {vr(RD, 2)}, {vr(RD + 2, 2)}, {vr(vF, 2)}, {vr(RD, 2)} op_sel:[0,1,0] op_sel_hi:[1,1,1]
        s_waitcnt lgkmcnt(0)
        v_pk_fma_f32 {vr(RD, 2)}, {vr(RD + 4, 2)}, {vr(vF + 2, 2)}, {vr(RD, 2)} op_sel_hi:[1,0,1]
        v_pk_fma_f32 {vr(RD, 2)}, {vr(RD + 6, 2)}, {vr(vF + 2, 2)}, {vr(RD, 2)} op_sel:[0,1,0] op_sel_hi:[1,1,1]""")
        self.tag(RD, RD, sTA4)
        self.tag(RD + 1, RD + 1, sTA4)
        self.pub("a1" + role, f"global_store_dwordx2 v{aA1}, {vr(RD, 2)}, {sp(WS)}", cmp=False)
        if role == "h" or self.lw < 8:
            a("s_barrier")
        self.stamp(7)

    def notice(self):
        self.a(f"""s_lshl_b32 s{sT0}, s{sJ}, 2
        s_add_u32 s{sT0}, s{sT0}, s{sW}
        s_cmp_lg_u32 s{sT0}, 3
        s_cbranch_scc1 L_no_notice
        s_mov_b64 exec, 3
        global_store_dword v{vA}, v{vB}, {sp(WS)} sc1
        s_mov_b64 exec, -1
        L_no_notice:""")

    def w_tail(self):
        a = self.a
        if self.flag:
            a(f"""s_lshl_b32 s{sT0}, s{sG}, 7
            s_add_u32 s{sT0}, s{sT0}, {WS_FL}
            v_lshlrev_b32 v{vA}, 13, v{vL}
            v_and_b32 v{vA}, 0x2000, v{vA}
            v_add_u32 v{vA}, s{sT0}, v{vA}
            v_mov_b32 v{vB}, s{sE}
            s_lshr_b32 s{sT0}, s{sG}, 2
            s_lshl_b32 s{sT0}, s{sT0}, 13
            s_add_u32 s{sT0}, s{sT0}, {WS_FL}
            v_and_b32 v{vC}, 7, v{vL}
            v_lshlrev_b32 v{vC}, 7, v{vC}
            v_add_u32 v{vC}, s{sT0}, v{vC}""")
        for jj in range(self.lw, 8):
            self.wo_load(jj)
        a(f"v_lshlrev_b32 v{vXH}, 16, v{vXH}\nv_cmp_gt_u32 {sp(sM[0])}, 48, v{vL}")
        WT = RX + 4
        if self.wprime:
            ml_load = f"global_load_dwordx4 {vr(RX, 4)}, v{aMG}, {sp(WS)} sc1"
            a1_load = f"global_load_dwordx4 {vr(RA, 4)}, v{aAG}, {sp(WS)} sc1"
            ml_check = f"""v_mov_b32 v{t2}, v{RX}
        v_xor_b32 v{t0}, s{sTQ}, v{RX + 1}
        v_xor_b32 v{t1}, s{sTQ}, v{RX + 3}
        v_or_b32 v{t0}, v{t0}, v{t1}
        v_cmp_ne_u32 vcc, 0, v{t0}"""
            for p in range(4):
                last = 2 * p + 1
                a(f"s_waitcnt vmcnt({7 - last + (2 if last < self.lw else 0)})")
                if p == 3:
                    a(ml_load)
                    a(a1_load)
                    self.census_load(64)
                self.perm_pair(RW + 8 * p, RW + 8 * p + 4, RWB, 4, p)
            self.stamp(8)
            a(f"s_waitcnt vmcnt(2)\n{ml_check}\ns_cbranch_vccz L_mlok\nL_mlpoll:\n{ml_load}")
            self.spin()
            a(f"s_waitcnt vmcnt(0)\n{ml_check}\ns_cbranch_vccnz L_mlpoll\n{a1_load}\nL_mlok:")
        else:
            for p in range(4):
                last = 2 * p + 1
                extra = 2 if p == 3 else 0
                a(f"s_waitcnt vmcnt({7 - last + (2 if last < self.lw else 0) + extra})")
                self.perm_pair(RW + 8 * p, RW + 8 * p + 4, RWB, 4, p)
                if p == 2:
                    self.census_load(64)
                    a(f"global_load_dwordx4 {vr(RX, 4)}, v{aMG}, {sp(WS)} sc1")
            self.stamp(8)
            a(f"s_branch L_mlwait\nL_mlpoll:\nglobal_load_dwordx4 {vr(RX, 4)}, v{aMG}, {sp(WS)} sc1")
            self.spin()
            a("L_mlwait:\ns_waitcnt vmcnt(0)")
            a(f"""v_xor_b32 v{t0}, s{sTQ}, v{RX + 1}
        v_xor_b32 v{t1}, s{sTQ}, v{RX + 3}
        v_or_b32 v{t0}, v{t0}, v{t1}
        v_cmp_ne_u32 vcc, 0, v{t0}
        v_mov_b32 v{t2}, v{RX}
        s_cbranch_vccnz L_mlpoll""")
            a(f"global_load_dwordx4 {vr(RA, 4)}, v{aAG}, {sp(WS)} sc1")
        self.allred(t2, "v_max_f32", rors=(8, 4, 2))
        a(f"""v_sub_f32 v{WT}, v{RX}, v{t2}
        v_mul_f32 v{WT}, {LOG2E}, v{WT}
        v_exp_f32 v{WT}, v{WT}
        v_mul_f32 v{t2}, v{WT}, v{RX + 2}""")
        self.allred(t2, "v_add_f32", rors=(8, 4, 2))
        a(f"v_rcp_f32 v{t2}, v{t2}\nv_mul_f32 v{WT}, v{WT}, v{t2}")
        self.poll("a1poll", [f"global_load_dwordx4 {{}}, v{aAG}, {sp(WS)} sc1"], sTA4, RD, 1, [RA], primed=True)
        self.stamp(9)
        if self.flag == 1:
            self.notice()
        for i in (0, 2):
            a(f"v_pk_mul_f32 {vr(RD + i, 2)}, {vr(RD + i, 2)}, {vr(WT, 2)} op_sel_hi:[1,0]")
        self.rs4(RD)
        for k in (8, 4, 2):
            a(f"v_add_f32_dpp v{RD}, v{RD}, v{RD} row_ror:{k} {DPP}")
        a(f"""v_cvt_pk_bf16_f32 v{RD}, v{RD}, v{RD}
        ds_write_b16 v{aVW}, v{RD} offset:{L_OV}
        s_waitcnt lgkmcnt(0)
        s_barrier
        ds_read_b128 {vr(RX, 4)}, v{aVR} offset:{L_OV}""")
        self.pub_cmp()
        a("s_waitcnt lgkmcnt(0)")
        self.matvec8(lambda t: f"v_mfma_f32_16x16x32_bf16 {vr(RWD + 4 * t, 4)}, {vr(RX, 4)}, {vr(RWB + 4 * t, 4)}, 0", RWD, RD, sTB4)
        self.pub("b1", f"global_store_dwordx4 v{aB1}, {vr(RD, 4)}, {sp(WS)}", cmp=False)
        if self.flag == 2:
            self.notice()
        self.stamp(10)
        a(f"""s_cmp_ge_u32 s{sW}, 2
        s_cbranch_scc1 L_exit
        s_cmp_eq_u32 s{sW}, 1
        s_cbranch_scc1 L_final""")
        self.sleep(self.d_b1)
        self.poll("b1poll", [f"global_load_dwordx4 {{}}, v{aBG}, {sp(WS)} sc1", f"global_load_dwordx4 {{}}, v{aBG}, {sp(WS)} offset:1024 sc1"],
                  sTB4, RV, 1, [RA])
        self.stamp(11)
        a(f"""v_pk_add_f32 {vr(RV, 2)}, {vr(RV, 2)}, {vr(RV + 4, 2)}
        v_pk_add_f32 {vr(RV + 2, 2)}, {vr(RV + 2, 2)}, {vr(RV + 6, 2)}""")
        self.rs4(RV)
        a(f"v_add_f32_dpp v{RV}, v{RV}, v{RV} row_ror:8 {DPP}")
        self.tag(RV, RV, sTA4)
        a(f"global_store_dword v{aB2}, v{RV}, {sp(WS)} sc1")
        self.census_eval(keep=True)
        if self.d_cl:
            a(f"s_sub_u32 s{sQN}, s{sSPIN}, 1")
        if self.flag:
            a(f"L_notices:\nglobal_load_dword v{t2}, v{vC}, {sp(WS)} sc1")
            self.spin()
            a(f"s_waitcnt vmcnt(0)\nv_cmp_ne_u32 vcc, s{sE}, v{t2}\ns_cbranch_vccnz L_notices")
            self.sleep(self.d_fl)
        else:
            self.sleep(self.d_b2a)
        if self.b2atom:
            a("L_b2poll:")
            for e in range(4):
                a(f"v_mov_b32 v{RA + 4 + e}, 0")
            a(f"""global_atomic_or_x2 {vr(RA, 2)}, v{aHG}, {vr(RA + 4, 2)}, {sp(WS)} sc0 sc1
            global_atomic_or_x2 {vr(RA + 2, 2)}, v{aHG}, {vr(RA + 6, 2)}, {sp(WS)} offset:8 sc0 sc1""")
            self.spin()
            a("s_waitcnt vmcnt(0)")
            self.check4(RA, sTA4)
            for e in range(4):
                a(f"v_and_b32 v{RV + e}, 0xffffff00, v{RA + e}")
            a("s_cbranch_vccnz L_b2poll")
        elif self.b2mask:
            a(f"L_b2poll:\nglobal_load_dwordx4 {vr(RA, 4)}, v{aHG}, {sp(WS)} sc1")
            self.spin()
            a("s_waitcnt vmcnt(0)")
            self.check4(RA, sTA4)
            for e in range(4):
                a(f"v_and_b32 v{RV + e}, 0xffffff00, v{RA + e}")
            a("s_mov_b64 exec, vcc\ns_cbranch_execnz L_b2poll\ns_mov_b64 exec, -1")
        else:
            self.poll("b2poll", [f"global_load_dwordx4 {{}}, v{aHG}, {sp(WS)} sc1"], sTA4, RV, 1, [RA])
        self.stamp(12)
        self.rs4(RV)
        self.pub_cmp()
        a(f"v_add_f32_dpp v{RV}, v{RV}, v{RV} row_ror:8 {DPP}")
        self.bf16r(RV, RV)
        a(f"""v_add_f32 v{RV}, v{RV}, v{vXH}
        v_cvt_pk_bf16_f32 v{RV}, 0, v{RV}""")
        self.tag(RV + 1, RV, sTH4)
        self.pub("b2b", f"global_store_dword v{aHB}, v{RV + 1}, {sp(WS)}", cmp=False)
        if self.d_cl:
            a(f"""s_sub_u32 s{sQN}, s{sQN}, s{sSPIN}
            v_mov_b32 v{t0}, 0
            v_mov_b32 v{t1}, s{sQN}
            ds_write_b32 v{t0}, v{t1} offset:{L_HV + 128}""")
        a(f"""ds_write_b32 v{aHW}, v{RV} offset:{L_HV}
        L_final:
        s_cmp_ge_u32 s{sG}, 4
        s_cbranch_scc1 L_exit
        s_waitcnt lgkmcnt(0)
        s_barrier
        ds_read_b32 v{vXH}, v{aHR} offset:{L_HV}
        s_lshl_b32 s{sT0}, s2, 1
        s_add_u32 s{sT0}, s{sT0}, s{sW}
        s_cmp_lg_u32 s{sT0}, 1
        s_cbranch_scc1 L_epoch_done
        s_mov_b64 exec, 1
        v_mov_b32 v{t0}, 0
        v_mov_b32 v{t1}, s{sE}
        global_store_dword v{t0}, v{t1}, {sp(WS)} sc1
        s_mov_b64 exec, -1
        L_epoch_done:""")
        if self.ctrig == 1:
            a(f"""s_add_u32 s{sT0}, s{sA1G}, {16 * 2048}
            v_lshl_add_u32 v{aBG}, v{vL}, 4, s{sT0}""")
            self.poll("hseen", [f"global_load_dwordx4 {{}}, v{aBG}, {sp(WS)} sc1", f"global_load_dwordx4 {{}}, v{aBG}, {sp(WS)} offset:1024 sc1"],
                      sTH4, RV, 1, [RA])
        else:
            a(f"""s_lshl_b32 s{sT0}, s{sG}, 13
            s_lshl_b32 s{sT1}, s{sJ}, 9
            s_add_u32 s{sT0}, s{sT0}, s{sT1}
            s_add_u32 s{sT0}, s{sT0}, {WS_E}
            v_and_b32 v{aBG}, 31, v{vL}
            v_lshl_add_u32 v{aBG}, v{aBG}, 4, s{sT0}""")
            self.poll("eseen", [f"global_load_dwordx4 {{}}, v{aBG}, {sp(WS)} sc1"], sTA4, RV, 1, [RA])
        if self.d_cl:
            a(f"""v_mov_b32 v{t0}, 0
            ds_read_b32 v{t1}, v{t0} offset:{L_HV + 128}
            s_waitcnt lgkmcnt(0)
            v_readfirstlane_b32 s{sT0}, v{t1}
            s_cmp_lg_u32 s{sT0}, 0
            s_cbranch_scc1 L_not_last""")
            self.sleep(self.d_cl)
            a("L_not_last:")
        if self.out_pw:
            a(f"global_load_ushort v{t2}, v{aOut}, {sp(OUT)}")
        a("s_waitcnt lgkmcnt(0)")
        self.sleep(self.d_c)
        self.poll("cpoll", [f"global_load_dwordx4 {{}}, v{aC0}, {sp(WS)} sc1", f"global_load_dwordx4 {{}}, v{aC1}, {sp(WS)} sc1"],
                  sTA4, RV, 1, [RA])
        self.stamp(13)
        a(f"""s_mov_b64 exec, {sp(sM[0])}
        v_pk_add_f32 {vr(RV, 2)}, {vr(RV, 2)}, {vr(RV + 4, 2)}
        v_pk_add_f32 {vr(RV + 2, 2)}, {vr(RV + 2, 2)}, {vr(RV + 6, 2)}
        s_mov_b64 exec, -1""")
        self.rs4(RV)
        for k in (8, 4, 2, 1):
            a(f"v_add_f32_dpp v{RV}, v{RV}, v{RV} row_ror:{k} {DPP}")
        self.bf16r(RV, RV)
        a(f"""v_add_f32 v{RV}, v{RV}, v{vXH}
        {"s_mov_b32 exec_lo, 0x10001" if self.out_sc else ""}
        {"s_mov_b32 exec_hi, 0x10001" if self.out_sc else ""}
        v_cvt_pk_bf16_f32 v{RV}, v{RV}, v{RV}
        global_store_short v{aOut}, v{RV}, {sp(OUT)}
        s_branch L_exit""")

    def f_tail(self):
        a = self.a
        BG, BU, DW, BD, DR = RK, RK + 16, RV, RV + 16, RB
        ONES, CSG, CSU = RX + 8, RX + 9, RX + 10
        H0, H1, HA = DW, DW + 4, RX
        a(f"""s_cmp_eq_u32 s{sG}, 7
        s_cbranch_scc1 L_exit
        s_lshl_b32 s{sT2}, s{sW}, 12""")
        for i in range(4):
            for base, ptr in ((L_G, GA), (L_U, UP)):
                a(f"s_add_u32 m0, s{sT2}, {base + 1024 * i}\nglobal_load_lds_dwordx4 v{aFG}, {sp(ptr)}{self.nt}")
            if i < 3:
                a(f"v_add_u32 v{aFG}, {8 * 3584}, v{aFG}")
        if self.dn_early:
            DW = RDN
        for jj in range(0 if self.dn_early else 4):
            a(f"global_load_dwordx4 {vr(DW + 4 * jj, 4)}, v{aFD}, {sp(DN)} offset:{1024 * jj}{self.nt}")
        a(f"global_load_dwordx4 {vr(DR + 8, 4)}, v{aEG}, {sp(WS)} sc1")
        self.census_load(64)
        a(f"""v_mov_b32 v{ONES}, 0x3f803f80
        v_mov_b32 v{RX}, 0x3f803f80
        v_mov_b32 v{RX + 1}, 0x3f803f80
        v_mov_b32 v{RX + 2}, 0x3f803f80
        v_mov_b32 v{RX + 3}, 0x3f803f80
        s_waitcnt vmcnt({2 if self.dn_early else 6})
        s_barrier""")
        for base, B in ((L_G, BG), (L_U, BU)):
            for s in range(4):
                for hf in range(2):
                    a(f"ds_read_b64_tr_b16 {vr(B + 4 * s + 2 * hf, 2)}, v{aTR} offset:{base + 8192 * hf + 512 * s}")
        a("s_waitcnt lgkmcnt(0)")
        for s in range(4):
            for B, D in ((BG, DR), (BU, DR + 4)):
                a(f"v_mfma_f32_16x16x32_bf16 {vr(D, 4)}, {vr(RX, 4)}, {vr(B + 4 * s, 4)}, {'0' if s == 0 else vr(D, 4)}")
        a("s_waitcnt vmcnt(0)")
        self.stamp(8)
        for dd in range(4):
            rows = ((0, 1), (2, 3)) if dd < 2 else ((1, 2), (3, 0))
            for p, (lo, hi) in enumerate(rows):
                a(f"v_perm_b32 v{BD + 2 * (2 * dd) + p}, v{DW + 4 * hi + dd}, v{DW + 4 * lo + dd}, s{sPLO}")
                a(f"v_perm_b32 v{BD + 2 * (2 * dd + 1) + p}, v{DW + 4 * hi + dd}, v{DW + 4 * lo + dd}, s{sPHI}")
        a(f"v_mov_b32 v{CSG}, v{DR}\nv_mov_b32 v{CSU}, v{DR + 4}")
        self.census_eval(keep=True)
        a(f"""L_hpoll:
        global_load_dwordx4 {vr(H0, 4)}, v{aHP}, {sp(WS)} sc1
        global_load_dwordx4 {vr(H1, 4)}, v{aHP}, {sp(WS)} offset:256 sc1""")
        self.spin()
        a("s_waitcnt vmcnt(1)")
        self.check4(H0, sTH4, sp(sT2))
        a(f"""v_perm_b32 v{HA}, v{H0 + 1}, v{H0}, s{sPHI}
        v_perm_b32 v{HA + 1}, v{H0 + 3}, v{H0 + 2}, s{sPHI}
        s_waitcnt vmcnt(0)
        v_perm_b32 v{HA + 2}, v{H1 + 1}, v{H1}, s{sPHI}
        v_perm_b32 v{HA + 3}, v{H1 + 3}, v{H1 + 2}, s{sPHI}""")
        self.check4(H1, sTH4)
        a(f"s_or_b64 vcc, vcc, {sp(sT2)}\ns_cbranch_vccnz L_hpoll")
        self.stamp(9)
        SA, SB = RX + 4, RX + 5
        mf = [f"v_mfma_f32_16x16x32_bf16 {vr(D + 4 * s, 4)}, {vr(HA, 4)}, {vr(B + 4 * s, 4)}, 0" for s in range(4) for B, D in ((BG, DR), (BU, DR + 16))]
        a(f"v_dot2_f32_bf16 v{SA}, v{HA}, v{ONES}, 0\nv_dot2_f32_bf16 v{SB}, v{HA}, v{HA}, 0")
        for i in range(1, 4):
            a(f"v_dot2_f32_bf16 v{SA}, v{HA + i}, v{ONES}, v{SA}\nv_dot2_f32_bf16 v{SB}, v{HA + i}, v{HA + i}, v{SB}")
        a(mf[0]); a(mf[1])
        a(f"v_permlane16_swap_b32 v{SA}, v{SB}\nv_add_f32 v{SA}, v{SA}, v{SB}")
        for k, m in zip((8, 4, 2, 1), mf[2:6]):
            a(m)
            a(f"v_add_f32_dpp v{SA}, v{SA}, v{SA} row_ror:{k} {DPP}")
        a(f"v_mov_b32 v{SB}, v{SA}")
        a(mf[6])
        a(f"v_permlane32_swap_b32 v{SA}, v{SB}\nv_add_f32 v{SA}, v{SA}, v{SB}\nv_mul_f32 v{t0}, 0x3b000000, v{SA}\nv_mul_f32 v{t1}, 0x3b000000, v{SA}")
        a(mf[7])
        RS = RX + 6
        a(f"""v_add_f32 v{SA}, v{DR}, v{DR + 5}
        v_permlane16_swap_b32 v{t0}, v{t1}
        v_add_f32 v{SB}, v{DR + 16}, v{DR + 21}
        v_cvt_pk_bf16_f32 v{t2}, v{t0}, v{t0}
        v_add_f32 v{SA}, v{SA}, v{DR + 10}
        v_and_b32 v{t2}, 0xffff0000, v{t2}
        v_add_f32 v{SB}, v{SB}, v{DR + 26}
        v_add_f32 v{SA}, v{SA}, v{DR + 15}
        s_cmp_eq_u32 s{sFAST}, 0
        v_fma_f32 v{SA}, -v{t2}, v{CSG}, v{SA}
        v_fma_f32 v{SB}, -v{t2}, v{CSU}, v{SB}
        v_add_f32 v{SB}, v{SB}, v{DR + 31}
        s_mov_b64 exec, {sp(sKM)}""")
        self.tag(SA, SA, sTA4)
        self.tag(SB, SB, sTA4)
        self.pub("e", f"global_store_dwordx2 v{aES}, {vr(SA, 2)}, {sp(WS)}", cmp=False)
        a("s_mov_b64 exec, -1")
        self.stamp(11)
        a(f"v_fma_f32 v{t1}, -v{t0}, v{t0}, v{t1}\nv_max_f32 v{t1}, 0, v{t1}")
        self.ln_scale(t0, t1, t2)
        a(f"v_rcp_f32 v{RS}, v{t1}")
        self.sleep(self.d_e)
        self.poll("epoll", [f"global_load_dwordx4 {{}}, v{aEG}, {sp(WS)} sc1"], sTA4, H0, 1, [RA])
        self.stamp(12)
        a(f"""v_pk_add_f32 {vr(t2, 2)}, {vr(H0, 2)}, {vr(H0 + 2, 2)}
        v_add_f32_dpp v{t2}, v{t2}, v{t2} quad_perm:[1,0,3,2] {DPP}
        v_add_f32_dpp v{t3}, v{t3}, v{t3} quad_perm:[1,0,3,2] {DPP}
        v_pk_mul_f32 {vr(t2, 2)}, {vr(t2, 2)}, {vr(RS, 2)} op_sel_hi:[1,0]
        v_cvt_pk_bf16_f32 v{t3}, v{t2}, v{t3}
        v_lshlrev_b32 v{t2}, 16, v{t3}
        v_and_b32 v{t3}, 0xffff0000, v{t3}
        v_mul_f32 v{t0}, 0xbfb8aa3b, v{t2}
        v_exp_f32 v{t0}, v{t0}
        v_add_f32 v{t0}, 1.0, v{t0}
        v_rcp_f32 v{t0}, v{t0}
        v_mul_f32 v{t2}, v{t2}, v{t0}""")
        self.bf16r(t2, t2)
        a(f"""v_mul_f32 v{t2}, v{t2}, v{t3}
        v_cvt_pk_bf16_f32 v{t2}, v{t2}, v{t2}
        v_mov_b32_dpp v{t3}, v{t2} row_ror:12 {DPP}
        v_perm_b32 v{HA}, v{t3}, v{t2}, s{sPHI}
        v_mov_b32_dpp v{HA + 1}, v{HA} row_ror:8 {DPP}""")
        self.matvec8(lambda t: f"v_mfma_f32_16x16x16_bf16 {vr(DR + 4 * t, 4)}, {vr(HA, 2)}, {vr(BD + 2 * t, 2)}, 0", DR, H0, sTA4,
                     after="s_mov_b32 exec_hi, 0")
        a(f"global_store_dwordx4 v{aCS}, {vr(H0, 4)}, {sp(WS)} sc1\ns_mov_b64 exec, -1")
        self.stamp(10)
        a("s_branch L_exit")

    def helper(self):
        a = self.a
        per_wg = self.code_bytes // 32
        a(f"""L_helper:
        s_getpc_b64 {sp(sCODE)}
        L_pc:
        s_sub_u32 s{sCODE}, s{sCODE}, L_pc-{NAME}_kernel
        s_subb_u32 s{sCODE + 1}, s{sCODE + 1}, 0
        """)
        if self.codepf == 3:
            a(f"""s_and_b32 s{sT0}, s{sJ}, 15
            s_lshl_b32 s{sT0}, s{sT0}, 10
            v_lshl_add_u32 v{t2}, v{vL}, 4, s{sT0}
            v_min_u32 v{t2}, L_code_end-{NAME}_kernel-4, v{t2}
            s_cmp_lt_u32 s{sJ}, 16
            s_cbranch_scc1 L_nopf
            global_load_dword v{RK}, v{t2}, {sp(sCODE)}
            L_nopf:""")
        else:
            a(f"""s_mul_i32 s{sT0}, s{sJ}, {per_wg}
        v_lshl_add_u32 v{t2}, v{vL}, {(per_wg // 64).bit_length() - 1}, s{sT0}
        v_min_u32 v{t2}, L_code_end-{NAME}_kernel-4, v{t2}""")
            if self.codepf:
                a(f"global_load_dword v{RK}, v{t2}, {sp(sCODE)}")
        a(f"""s_waitcnt lgkmcnt(0)
        s_cmp_lt_u32 s{sJ}, 16
        s_cbranch_scc1 L_helper_l
        s_lshl_b32 s{sT0}, s{sG}, 7
        s_add_u32 s{sT0}, s{sT0}, {WS_HI}
        v_and_b32 v{t0}, 31, v{vL}
        v_lshl_add_u32 v{vB}, v{t0}, 2, s{sT0}
        s_and_b32 s{sJ}, s{sJ}, 15
        s_lshl_b32 s{sT0}, s{sG}, 13
        s_lshl_b32 s{sT1}, s{sJ}, 9
        s_add_u32 s{sT0}, s{sT0}, s{sT1}
        s_add_u32 s{sT0}, s{sT0}, {WS_QA}
        v_lshl_add_u32 v{t0}, v{vL}, 3, s{sT0}
        s_lshl_b32 s{sT1}, s{sJ}, 7
        s_lshl_b32 s{sT0}, s{sG}, 16
        s_add_u32 s{sT0}, s{sT0}, s{sT1}
        s_add_u32 s{sT0}, s{sT0}, {WS_A1}
        v_lshrrev_b32 v{t1}, 3, v{vL}
        v_lshlrev_b32 v{t1}, 11, v{t1}
        v_and_b32 v{t2}, 7, v{vL}
        v_lshl_add_u32 v{t1}, v{t2}, 4, v{t1}
        v_add_u32 v{t1}, s{sT0}, v{t1}
        s_lshl_b32 s{sT0}, s{sG}, 11
        s_lshl_b32 s{sT1}, s{sJ}, 7
        s_add_u32 s{sT0}, s{sT0}, s{sT1}
        s_add_u32 s{sT0}, s{sT0}, {WS_ML}
        v_lshl_add_u32 v{t2}, v{vN}, 3, s{sT0}
        s_barrier
        global_load_dword v{RK + 21}, v{vB}, {sp(WS)}
        global_load_dword v{RK + 1}, v{t0}, {sp(WS)}""")
        for i in range(4):
            a(f"global_load_dwordx4 {vr(RK + 4 + 4 * i, 4)}, v{t1}, {sp(WS)}")
            if i < 3:
                a(f"v_add_u32 v{t1}, 0x4000, v{t1}")
        a(f"""global_load_dword v{RK + 2}, v{t2}, {sp(WS)}
        s_endpgm
        L_helper_l:
        v_mov_b32 v{t0}, {WS_QB}
        s_barrier""")
        if self.b2pw:
            a(f"""v_lshrrev_b32 v{t1}, 3, v{vL}
            v_and_b32 v{t2}, 4, v{t1}
            v_add_u32 v{t1}, v{t2}, v{t1}
            v_lshlrev_b32 v{t1}, 11, v{t1}
            v_and_b32 v{t2}, 7, v{vL}
            v_lshl_add_u32 v{t1}, v{t2}, 4, v{t1}
            s_lshr_b32 s{sT0}, s{sG}, 2
            s_lshl_b32 s{sT0}, s{sT0}, 13
            s_lshl_b32 s{sT1}, s{sJ}, 7
            s_add_u32 s{sT0}, s{sT0}, s{sT1}
            s_add_u32 s{sT0}, s{sT0}, {WS_B2A}
            v_add_u32 v{t1}, s{sT0}, v{t1}
            global_load_dword v{RK + 10}, v{t1}, {sp(WS)} sc1""")
        if self.qtouch:
            a(f"""s_lshl_b32 s{sT0}, s{sG}, 24
            s_add_u32 s{sT0}, s{sT0}, 0xF00000
            v_mov_b32 v{t3}, s{sT0}
            global_load_dword v{RK + 8}, v{t3}, {sp(KP)}{self.nt}
            global_load_dword v{RK + 1}, v{t0}, {sp(WS)} sc1
            global_load_dword v{RK + 9}, v{t3}, {sp(VP)}{self.nt}""")
        a("s_endpgm")

    def exit(self):
        a = self.a
        a("L_exit:")
        if self.leak[0] >= 0:
            self.stamp(14)
            a(f"""s_lshl_b32 s{sT0}, s2, 2
            s_add_u32 s{sT0}, s{sT0}, s{sW}
            s_cmp_lg_u32 s{sT0}, {self.leak[0] * 4}
            s_cbranch_scc1 L_end
            s_memrealtime {sp(ST0 + 4)}
            s_waitcnt lgkmcnt(0)
            s_sub_u32 s{sT0}, s{ST0 + 2}, s{ST0}""")
            if self.leak[3] == 1:
                a(f"s_mul_i32 s{sT0}, s{sT0}, 2731\ns_lshr_b32 s{sT0}, s{sT0}, 16")
            if self.leak[3] >= 2:
                a(f"""s_mov_b64 exec, -1
                v_and_b32 v{t0}, 7, v{vL}
                v_lshlrev_b32 v{t0}, 7, v{t0}
                v_add_u32 v{t0}, {WS_ST}, v{t0}
                global_load_dword v{t1}, v{t0}, {sp(WS)} sc1
                s_waitcnt vmcnt(0)
                v_subrev_u32 v{t1}, s{ST0}, v{t1}
                v_add_u32 v{t1}, 1000, v{t1}
                s_nop 1
                v_readlane_b32 s{sT0}, v{t1}, 0
                s_mov_b32 s{sT1}, s{sT0}""")
                for i in range(1, 8):
                    a(f"v_readlane_b32 s{sT2}, v{t1}, {i}\ns_nop 1\ns_max_u32 s{sT0}, s{sT0}, s{sT2}\ns_min_u32 s{sT1}, s{sT1}, s{sT2}")
                a(f"s_sub_u32 s{sT0}, s{sT0}, s{sT1}" if self.leak[3] == 2 else f"s_sub_u32 s{sT0}, 1000, s{sT1}")
            a(f"""s_min_u32 s{sT0}, s{sT0}, 5000
            s_mul_i32 s{sT0}, s{sT0}, 10
            s_add_u32 s{sT0}, s{sT0}, 2000
            L_leak:
            s_memrealtime {sp(ST0 + 6)}
            s_waitcnt lgkmcnt(0)
            s_sub_u32 s{sT1}, s{ST0 + 6}, s{ST0 + 4}
            s_cmp_lt_u32 s{sT1}, s{sT0}
            s_cbranch_scc1 L_leak""")
        if self.prof:
            self.stamp(14)
            a(f"""s_memrealtime {sp(ST0 + 32)}
            s_mov_b64 exec, 1
            s_lshl_b32 s{sT0}, s2, 2
            s_add_u32 s{sT0}, s{sT0}, s{sW}
            s_lshl_b32 s{sT0}, s{sT0}, 7
            s_add_u32 s{sT0}, s{sT0}, {WS_ST}
            v_mov_b32 v{t0}, s{sT0}
            s_waitcnt lgkmcnt(0)""")
            for k in (range(17) if self.prof == 1 else (15, 16)):
                a(f"v_mov_b32 v{t1}, s{ST0 + 2 * k}\nglobal_store_dword v{t0}, v{t1}, {sp(WS)} offset:{4 * k}")
            a(f"v_mov_b32 v{t1}, s{sFAST}\nglobal_store_dword v{t0}, v{t1}, {sp(WS)} offset:68")
            a(f"v_mov_b32 v{t1}, s{sQN}\nglobal_store_dword v{t0}, v{t1}, {sp(WS)} offset:72")
            a(f"v_mov_b32 v{t1}, s{sSPIN}\nglobal_store_dword v{t0}, v{t1}, {sp(WS)} offset:76")
        a("L_end:\ns_endpgm")

    def build(self):
        head = open("cdna_kernels/" + NAME + ".s.ref").read().split("; Override launch")[0]
        if self.prof == 1:
            for k in range(17):
                self.a(f"s_mov_b32 s{ST0 + 2 * k}, 0")
        self.prologue()
        self.h_issue()
        self.l_issue()
        self.l_rest()
        self.attention("l", self.nl, 0, self.lw - self.lp, self.ul)
        self.w_tail()
        done = self.h_rest()
        self.attention("h", self.nh, done, 4 if self.dn_early else 0, self.uh - 4 * self.nh + 4)
        self.f_tail()
        self.exit()
        self.helper()
        for c in self.cold:
            self.a(c)
        self.a("L_code_end:")
        padded = pad(self.L)
        for p in check_branches(padded):
            print("HAZARD", p, file=sys.stderr)
        body = "\n".join(padded)
        doc = """; One launch, 256 workgroups of 4 + 1 waves, all resident. Group g = id & 7 owns kv head g; inside it the
"""
        return f"""{head}{doc}; @launch grid=(256,1,1) block=(320,1,1) lds={LDS_BASE + 16384 * self.nh}
.amdgcn_target "amdgcn-amd-amdhsa--gfx950"
.text
.globl {NAME}_kernel
.p2align 8
.type {NAME}_kernel,@function
{NAME}_kernel:
{body}
.section .rodata,"a"
.p2align 6
.amdhsa_kernel {NAME}_kernel
  .amdhsa_next_free_vgpr {NVGPR}
  .amdhsa_next_free_sgpr 102
  .amdhsa_accum_offset {NVGPR}
  .amdhsa_group_segment_fixed_size 0
  .amdhsa_kernarg_size 96
  .amdhsa_user_sgpr_count 2
  .amdhsa_user_sgpr_kernarg_segment_ptr 1
  .amdhsa_system_sgpr_workgroup_id_x 1
.end_amdhsa_kernel
"""


if __name__ == "__main__":
    out = sys.argv[1]
    kw = {}
    for arg in sys.argv[2:]:
        k, v = arg.split("=")
        kw[k] = int(v)
    open(out, "w").write(Gen(**kw).build())
```
